```python
import torch

def _softmax(x, axis=-1):
    return torch.softmax(x, dim=axis)
def _gelu(x):
    return torch.nn.functional.gelu(x, approximate="tanh")
def _silu(x):
    return torch.nn.functional.silu(x)
def _sigmoid(x):
    return torch.sigmoid(x)
def _layernorm(x, axis=-1, eps=1e-5):
    m = x.mean(dim=axis, keepdim=True)
    v = x.var(dim=axis, keepdim=True, unbiased=False)
    return (x - m) / torch.sqrt(v + eps)
def _scatter_add(tgt, idx, src, axis=0):
    return tgt.clone().index_add_(axis, idx, src)
def _segment_sum(src, seg, n):
    out = torch.zeros((n,) + src.shape[1:], dtype=src.dtype)
    return out.index_add_(0, seg, src)
def _pad(x, pw):
    flat = tuple(v for pair in reversed(pw) for v in pair)
    return torch.nn.functional.pad(x, flat)

kernel_name = 'concat_heads__compressed_kv_cla__mha_block_cached__decode'

def setup_inputs():

    _w = (lambda a: (lambda t: t.to(torch.bfloat16) if t.is_floating_point() else t)(torch.as_tensor(a)))
    def _A_setup():
        B, H, Sq, Sk, D, M = 1, 32, 1, 4096, 128, 640
        Dc = 4 * D
        return {
            "x": _w((lambda *s: torch.randn(*s, dtype=torch.bfloat16) * 3.2)(B, Sq, M)),
            "c_kv": _w((lambda *s: torch.randn(*s, dtype=torch.bfloat16) * 0.1)(B, Sk, Dc)),
            "w_q": _w((lambda *s: torch.randn(*s, dtype=torch.bfloat16) * 6.4)(M, H, D) * (M ** -0.5)),
            "w_uk": _w((lambda *s: torch.randn(*s, dtype=torch.bfloat16) * 6.4)(Dc, H, D) * (Dc ** -0.5)),
            "w_uv": _w((lambda *s: torch.randn(*s, dtype=torch.bfloat16) * 0.1)(Dc, H, D) * (Dc ** -0.5)),
            "w_o": _w((lambda *s: torch.randn(*s, dtype=torch.bfloat16) * 0.1)(H, D, M) * ((H * D) ** -0.5)),
        }
    _A_in = _A_setup()

    def _B_setup():
        B, Sq, D = 1, 1, 640
        H, Sk, Dh = 32, 4096, 128
        return {
            "x": _w((lambda *s: torch.randn(*s, dtype=torch.bfloat16) * 1.6)(B, Sq, D)),
            "k_cache": _w((lambda *s: torch.randn(*s, dtype=torch.bfloat16) * 1.6)(B, H, Sk, Dh)),
            "v_cache": _w((lambda *s: torch.randn(*s, dtype=torch.bfloat16) * 0.05)(B, H, Sk, Dh)),
            "wq": _w((lambda *s: torch.randn(*s, dtype=torch.bfloat16) * 1.6)(D, H * Dh) * (D ** -0.5)),
            "wo": _w((lambda *s: torch.randn(*s, dtype=torch.bfloat16) * 0.05)(H * Dh, D) * ((H * Dh) ** -0.5)),
        }
    _B_in = _B_setup()

    return {
        "A_x": _A_in["x"],
        "A_c_kv": _A_in["c_kv"],
        "A_w_q": _A_in["w_q"],
        "A_w_uk": _A_in["w_uk"],
        "A_w_uv": _A_in["w_uv"],
        "A_w_o": _A_in["w_o"],
        "B_x": _B_in["x"],
        "B_k_cache": _B_in["k_cache"],
        "B_v_cache": _B_in["v_cache"],
        "B_wq": _B_in["wq"],
        "B_wo": _B_in["wo"],
    }

def reference(A_x, A_c_kv, A_w_q, A_w_uk, A_w_uv, A_w_o, B_x, B_k_cache, B_v_cache, B_wq, B_wo):
    def _A_ref(x, c_kv, w_q, w_uk, w_uv, w_o):
        B, Sq, M = x.shape[0], x.shape[1], x.shape[2]
        Sk = c_kv.shape[1]
        H, D = w_q.shape[1], w_q.shape[2]
        q = torch.einsum("bqm,mhd->bhqd", x, w_q)
        k = torch.einsum("bkc,chd->bhkd", c_kv, w_uk)
        v = torch.einsum("bkc,chd->bhkd", c_kv, w_uv)
        scores = torch.einsum("bhqd,bhkd->bhqk", q, k) * (D ** -0.5)
        off = Sk - Sq
        qi = torch.arange(Sq)[:, None]
        kj = torch.arange(Sk)[None, :]
        cmask = kj <= (qi + off)
        scores = torch.where(cmask[None, None], scores, -1e9)
        p = _softmax(scores, axis=-1)
        ctx = torch.einsum("bhqk,bhkd->bhqd", p, v)
        return torch.einsum("bhqd,hdm->bqm", ctx, w_o)

    def _B_ref(x, k_cache, v_cache, wq, wo):
        B, Sq, D = x.shape
        H, Dh = 32, 128
        q = (lambda x, *d: x.permute(*d))((x @ wq).reshape(B, Sq, H, Dh), 0, 2, 1, 3)
        scores = torch.einsum("bhqd,bhkd->bhqk", q, k_cache) * (Dh ** -0.5)
        p = _softmax(scores, axis=-1)
        o = torch.einsum("bhqk,bhkd->bhqd", p, v_cache)
        return (lambda x, *d: x.permute(*d))(o, 0, 2, 1, 3).reshape(B, Sq, H * Dh) @ wo

    a = _A_ref(A_x, A_c_kv, A_w_q, A_w_uk, A_w_uv, A_w_o)
    b = _B_ref(B_x, B_k_cache, B_v_cache, B_wq, B_wo)
    return torch.concatenate([a, b], axis=-1)
```

```python
import re

_TOK = re.compile(r"^(v|s|a)(?:\[(\d+):(\d+)\]|(\d+))$")


def regs_of(tok):
    tok = tok.strip()
    neg = tok.lstrip("-")
    if neg.startswith("abs(") and neg.endswith(")"):
        neg = neg[4:-1]
    if neg.startswith("|") and neg.endswith("|"):
        neg = neg[1:-1]
    m = _TOK.match(neg)
    if m:
        k = m.group(1)
        if m.group(4) is not None:
            return {(k, int(m.group(4)))}
        return {(k, i) for i in range(int(m.group(2)), int(m.group(3)) + 1)}
    if neg in ("vcc", "vcc_lo", "vcc_hi"):
        return {("s", 106), ("s", 107)}
    if neg in ("exec", "exec_lo", "exec_hi"):
        return {("x", 0)}
    if neg == "m0":
        return {("m", 0)}
    return set()


TRANS = ("v_exp_f32", "v_log_f32", "v_rcp_f32", "v_rsq_f32", "v_sqrt_f32", "v_sin_f32", "v_cos_f32")


class Inst:
    __slots__ = ("text", "op", "cls", "w", "r", "rA", "rC", "dpp", "states", "sread", "wide_store_data", "mask_r")

    def __init__(self, text):
        self.text = text
        body = text.split(";")[0].strip()
        parts = body.split(None, 1)
        self.op = op = parts[0]
        rest = parts[1] if len(parts) > 1 else ""
        ops = [o.strip() for o in rest.split(",")] if rest else []
        mods = ""
        if ops:
            last = ops[-1].split(None, 1)
            if "quad_perm:[" in rest:
                head, tail = rest.split("quad_perm:[", 1)
                ops = [o.strip() for o in head.split(",")]
                l2 = ops[-1].split(None, 1)
                ops[-1] = l2[0] if l2 else ""
                mods = "quad_perm:[" + tail
            else:
                ops[-1] = last[0] if last else ""
                mods = last[1] if len(last) > 1 else ""
        self.w, self.r = set(), set()
        self.rA, self.rC = set(), set()
        self.sread = set()
        self.mask_r = set()
        self.dpp = False
        self.states = 1
        self.wide_store_data = set()
        R = [regs_of(o) for o in ops]
        if op == "s_nop":
            self.cls = "nop"
            self.states = int(ops[0], 0) + 1
        elif op.startswith("v_mfma"):
            self.cls = "mfma"
            self.w = R[0]
            self.rA = R[1] | R[2]
            self.rC = R[3]
            self.r = self.rA | self.rC
        elif op in ("v_readlane_b32", "v_readfirstlane_b32"):
            self.cls = "readlane"
            self.w = R[0]
            self.r = set().union(*R[1:])
        elif op.startswith("v_permlane"):
            self.cls = "permlane"
            self.w = R[0] | R[1]
            self.r = R[0] | R[1]
        elif op.startswith("v_cmp"):
            self.cls = "valu"
            self.w = R[0]
            self.r = set().union(*R[1:])
        elif op.startswith("v_dot2"):
            self.cls = "dot"
            self.w = R[0]
            self.r = set().union(*R[1:])
            if op.startswith("v_dot2c"):
                self.r |= R[0]
            self.dpp = "_dpp" in op
        elif op == "v_nop":
            self.cls = "nop"
        elif op.startswith("v_"):
            self.cls = "trans" if op.replace("_e32", "").replace("_e64", "") in TRANS else "valu"
            self.w = R[0]
            self.r = set().union(*R[1:]) if len(R) > 1 else set()
            if op.startswith("v_fmac") or op.startswith("v_pk_fmac"):
                self.r |= R[0]
            self.dpp = "_dpp" in op or any(k in mods for k in ("row_", "quad_perm", "wave_"))
        elif op.startswith("buffer_load") or op.startswith("global_load"):
            self.cls = "vmem"
            if re.search(r"\blds\b", mods) or "load_lds" in op:
                self.r = set().union(*R) | {("m", 0)}
                self.cls = "vmem_lds"
            else:
                self.w = R[0]
                self.r = set().union(*R[1:])
        elif op.startswith("buffer_store") or op.startswith("global_store") or op.startswith("buffer_atomic"):
            self.cls = "vmem"
            self.r = set().union(*R)
            if "x4" in op or "x3" in op:
                self.wide_store_data = R[0] if op.startswith("buffer") else R[1]
        elif op.startswith("ds_read") or op.startswith("ds_bpermute") or op.startswith("ds_swizzle"):
            self.cls = "ds"
            self.w = R[0]
            self.r = set().union(*R[1:])
        elif op.startswith("ds_"):
            self.cls = "ds"
            self.r = set().union(*R)
        elif op.startswith("s_load") or op.startswith("s_memrealtime") or op.startswith("s_memtime"):
            self.cls = "smem"
            self.w = R[0]
            self.r = set().union(*R[1:]) if len(R) > 1 else set()
        elif op.startswith("s_cbranch") or op in ("s_branch", "s_endpgm", "s_barrier", "s_waitcnt", "s_setprio", "s_sleep"):
            self.cls = "ctl"
        elif op.startswith("s_cmp") or op.startswith("s_bitcmp"):
            self.cls = "salu"
            self.r = set().union(*R)
        elif op.startswith("s_"):
            self.cls = "salu"
            self.w = R[0] if R else set()
            self.r = set().union(*R[1:]) if len(R) > 1 else set()
            if "saveexec" in op:
                self.w |= {("x", 0)}
        else:
            raise ValueError("unknown op " + text)
        if self.cls in ("valu", "trans", "dot", "readlane", "permlane"):
            self.sread = {r for r in self.r if r[0] == "s"}


VALU_CLS = ("valu", "trans", "dot", "readlane", "permlane")


def need_states(p, c):
    n = 0
    pv = {r for r in p.w if r[0] in "va"}
    ps = {r for r in p.w if r[0] == "s"}
    if p.cls in VALU_CLS:
        if pv and c.dpp and (pv & c.r):
            n = max(n, 2)
        if pv and c.cls == "readlane" and (pv & c.r):
            n = max(n, 1)
        if pv and c.cls == "permlane" and (pv & c.r):
            n = max(n, 2)
        if pv and c.cls == "mfma" and (pv & c.r):
            n = max(n, 2)
        if ps:
            if c.cls in VALU_CLS and (ps & c.sread):
                n = max(n, 4 if c.cls == "readlane" else 2)
            if c.cls in ("vmem", "vmem_lds") and (ps & c.r):
                n = max(n, 5)
            if c.cls in ("salu", "smem") and (ps & c.r):
                n = max(n, 1)
        if p.cls == "trans" and pv and c.cls in VALU_CLS + ("mfma",) and c.cls != "trans" and (pv & c.r):
            n = max(n, 2 if c.cls == "mfma" else 1)
        if p.cls == "trans" and pv and c.cls == "trans" and (pv & c.r):
            n = max(n, 1)
        if p.cls == "dot" and pv:
            if c.cls == "dot" and c.op == p.op:
                body = c.text.split(";")[0].strip().split(None, 1)[1].split(",")
                ab = regs_of(body[1]) | regs_of(body[2].split()[0])
                if pv & ab:
                    n = max(n, 3)
            elif (pv & c.r) or (pv & {r for r in c.w if r[0] in "va"}):
                n = max(n, 3)
    if p.cls == "mfma":
        if c.cls == "mfma":
            if p.w & c.rA:
                n = max(n, 8)
            if p.w & c.rC and p.w != c.rC:
                n = max(n, 6)
            if (p.w & c.w) and p.w != c.w:
                n = max(n, 6)
        elif c.cls in VALU_CLS + ("vmem", "ds", "vmem_lds"):
            if (p.w & c.r) or (p.w & c.w):
                n = max(n, 8)
            if c.cls in VALU_CLS and (p.rC & c.w):
                n = max(n, 3)
    if p.wide_store_data:
        cw = {r for r in c.w if r[0] in "va"}
        if c.cls in VALU_CLS and (p.wide_store_data & cw):
            n = max(n, 2)
        elif (p.wide_store_data & cw) and c.cls != "vmem":
            n = max(n, 1)
    if p.cls == "salu" and ("m", 0) in p.w and c.cls == "vmem_lds":
        n = max(n, 1)
    if p.cls == "salu" and ("x", 0) in p.w and c.dpp:
        n = max(n, 1)
    return n


MAXH = 12


class Emit:
    def __init__(self):
        self.lines = []
        self.hist = []
        self.vm = []
        self.nlabel = 0
        self.nops = 0

    def raw(self, text):
        self.lines.append(text)

    def comment(self, text):
        self.lines.append("    ; " + text)

    def _pad(self, n):
        while n > 0:
            k = min(n, 8)
            i = Inst(f"s_nop {k-1}")
            self.lines.append(f"    s_nop {k-1}")
            self.hist.append(i)
            self.nops += 1
            n -= k

    def op(self, text, tag=None, count=True):
        inst = Inst(text)
        need = 0
        dist = 0
        for p in reversed(self.hist):
            req = need_states(p, inst)
            if req > dist:
                need = max(need, req - dist)
            dist += p.states
            if dist >= MAXH:
                break
        self._pad(need)
        self.lines.append("    " + text)
        self.hist.append(inst)
        if len(self.hist) > 32:
            self.hist = self.hist[-24:]
        if inst.cls in ("vmem", "vmem_lds") and count:
            self.vm.append(tag)
        return inst

    def ops(self, *texts):
        for t in texts:
            self.op(t)

    def flush_hazards(self):
        need = 0
        dist = 0
        for p in reversed(self.hist):
            worst = 0
            if p.cls == "mfma":
                worst = 8
            elif p.cls == "dot":
                worst = 3
            elif p.cls in VALU_CLS:
                worst = 5 if any(r[0] == "s" for r in p.w) else 2
            elif p.wide_store_data:
                worst = 2
            elif p.cls == "salu" and (("m", 0) in p.w or ("x", 0) in p.w):
                worst = 1
            if worst > dist:
                need = max(need, worst - dist)
            dist += p.states
            if dist >= MAXH:
                break
        self._pad(need)

    def label(self, name):
        self.flush_hazards()
        self.lines.append(name + ":")

    def newlabel(self, base):
        self.nlabel += 1
        return f"L_{base}_{self.nlabel}"

    def branch(self, op, target):
        self.flush_hazards()
        self.op(f"{op} {target}")

    def mark(self, tag):
        self.vm.append(("mark", tag))

    def vm_count_after(self, tag):
        idx = None
        for i, t in enumerate(self.vm):
            if t == tag or t == ("mark", tag):
                idx = i
        if idx is None:
            return None
        return sum(1 for t in self.vm[idx + 1:] if not (isinstance(t, tuple) and t[0] == "mark"))

    def wait_vm(self, tag, keep=False):
        n = self.vm_count_after(tag)
        if n is None:
            return
        assert n <= 63, n
        self.op(f"s_waitcnt vmcnt({n})")
        if not keep:
            idx = max(i for i, t in enumerate(self.vm) if t == tag or t == ("mark", tag))
            self.vm = self.vm[idx + 1:]

    def wait_vm_window(self, w):
        real = [t for t in self.vm if not (isinstance(t, tuple) and t[0] == "mark")]
        if len(real) <= w:
            return
        self.op(f"s_waitcnt vmcnt({w})")
        drop = len(real) - w
        out = []
        for t in self.vm:
            ism = isinstance(t, tuple) and t[0] == "mark"
            if drop > 0:
                if not ism:
                    drop -= 1
                continue
            out.append(t)
        self.vm = out

    def wait_vm_all(self):
        self.op("s_waitcnt vmcnt(0)")
        self.vm = []

    def wait_lgkm(self, n=0):
        self.op(f"s_waitcnt lgkmcnt({n})")

    def text(self):
        return "\n".join(self.lines) + "\n"
```

```python
import gen as G
from gen import (sr, vr, f32hex, SCALE, S_N, SRD_WS, P_AX, P_CKV, P_WQA, P_WUK, P_WUV, P_WOA, P_OUT, P_WS,
                 EPOCH, QA, QAF, MLA, OAF, OA, FA, FB, NONCE_STEP,
                 L_C, C_STRIDE, L_QA, L_P, P_STRIDE, L_QACC, L_MX, L_LX, L_CTX)


def gen_A(g):
    e, c = g.e, g.c
    nt = c.nt
    e.vm = []
    S_DH, S_H, S_KB, S_HG = 5, 6, 12, 13
    SX, SWQ, SUK, SUV, SWO, SCK = 52, 56, 60, 64, 68, 72
    L, Gq, N_ = 0, 1, 2
    M8, M4 = 4, 8
    ACC = 12
    A0, A1 = 16, 20
    vX, vWQ, vUK, vWO, vL16, vRHO, vK = 24, 25, 26, 27, 28, 29, 30
    QC = 32
    T = 36
    WQ = lambda t: 48 + 4 * t
    UK = lambda t: 88 + 4 * t
    UV = lambda t: 120 + 4 * t
    WO = lambda t: 152 + 4 * t
    X = lambda t: 192 + t
    BUF0, BUF1 = 192, 224
    VALID = 0xFF00FF0000FF00FF

    e.op("s_lshr_b32 s6, s2, 1")
    e.op("s_and_b32 s5, s2, 1")
    e.op("s_and_b32 s12, s2, 7")
    e.op("s_lshr_b32 s7, s2, 4")
    e.op("s_lshl_b32 s7, s7, 3")
    e.op("s_add_u32 s12, s12, s7")
    e.op("s_lshr_b32 s13, s2, 3")
    e.op("s_and_b32 s13, s13, 1")
    e.op(f"v_lshrrev_b32 v{vRHO}, 3, v{L}")
    e.op(f"v_and_b32 v{vK}, 7, v{L}")
    e.op(f"v_lshrrev_b32 v3, 1, v{vK}")
    g.make_masks(M8, 3, N_, T, T + 1)
    e.op(f"v_lshrrev_b32 v3, 1, v{N_}")
    g.make_masks(M4, 3, N_, T, T + 1)
    e.op("s_mul_i32 s7, s3, 80")
    e.op(f"v_add_u32 v{T}, s7, v{vRHO}")
    e.op(f"v_lshlrev_b32 v{vX}, 1, v{T}")
    e.op(f"v_lshlrev_b32 v{T}, 13, v{T}")
    e.op(f"v_lshlrev_b32 v{T+1}, 4, v{vK}")
    e.op(f"v_add_u32 v{vWQ}, v{T}, v{T+1}")
    e.op("s_lshl_b32 s7, s3, 6")
    e.op(f"v_lshlrev_b32 v{T}, 3, v{vRHO}")
    e.op(f"v_add_u32 v{T}, s7, v{T}")
    e.op(f"v_lshlrev_b32 v{T}, 13, v{T}")
    e.op(f"v_add_u32 v{vUK}, v{T}, v{T+1}")
    e.op("s_lshl_b32 s7, s3, 3")
    e.op(f"v_add_u32 v{T}, s7, v{Gq}")
    e.op(f"v_mul_u32_u24 v{T}, 1280, v{T}")
    e.op(f"v_lshlrev_b32 v{T+1}, 4, v{N_}")
    e.op(f"v_add_u32 v{vWO}, v{T}, v{T+1}")
    e.op(f"v_lshlrev_b32 v{vL16}, 4, v{L}")
    e.op(f"v_lshlrev_b32 v{T}, 2, v{L}")
    e.op(f"v_mov_b32 v{T+1}, 0")
    e.op(f"v_add_u32 v{T}, {L_QACC}, v{T}")
    e.op(f"ds_write_b32 v{T}, v{T+1}")
    e.op(f"ds_write_b32 v{T}, v{T+1} offset:{L_CTX-L_QACC}")
    e.op("s_waitcnt lgkmcnt(0)")
    if c.prof:
        e.op("s_mov_b32 s80, s78")
    e.op(f"s_load_dword s{S_N}, {sr(P_WS)}, {EPOCH}")
    g.srd(SX, P_AX, None, 1280)
    e.op(f"s_lshl_b32 s9, s{S_H}, 8")
    e.op(f"s_lshl_b32 s10, s{S_DH}, 7")
    e.op("s_add_u32 s9, s9, s10")
    g.srd(SWQ, P_WQA, "s9", 640 * 8192)
    for t in range(10):
        e.op(f"buffer_load_ushort v{X(t)}, v{vX}, {sr(SX,4)}, 0 offen offset:{16*t}", tag=("x", t))
    for t in range(10):
        e.op(f"s_mov_b32 s7, {t*65536}")
        e.op(f"buffer_load_dwordx4 {vr(WQ(t))}, v{vWQ}, {sr(SWQ,4)}, s7 offen {nt}", tag=("wq", t))
    g.srd(SUK, P_WUK, "s9", 512 * 8192)
    g.srd(SUV, P_WUV, "s9", 512 * 8192)
    nuk = [0]

    def issue_uk():
        t = nuk[0]
        nuk[0] += 1
        e.op(f"s_mov_b32 s7, {t*8192}")
        e.op(f"buffer_load_dwordx4 {vr(UK(t))}, v{vUK}, {sr(SUK,4)}, s7 offen {nt}", tag=("uk", t))
    for _ in range(c.A_UK1):
        issue_uk()
    g.srd(SRD_WS, P_WS, None, G.WS_USED)
    e.op(f"s_lshl_b32 s9, s{S_H}, 7")
    e.op(f"s_lshl_b32 s10, s{S_DH}, 6")
    e.op("s_add_u32 s9, s9, s10")
    e.op("s_mul_i32 s9, s9, 1280")
    g.srd(SWO, P_WOA, "s9", 64 * 1280)
    e.op(f"s_lshl_b32 s9, s{S_KB}, 17")
    g.srd(SCK, P_CKV, "s9", 128 * 1024)
    e.op("s_waitcnt lgkmcnt(0)")
    e.op(f"s_add_u32 s{S_N}, s{S_N}, 0x{NONCE_STEP:x}")
    e.op("s_barrier")
    g.stamp(1)
    for t in range(10):
        e.wait_vm(("wq", t))
        A = A0 if t % 2 == 0 else A1
        e.op(f"v_lshl_or_b32 v{X(t)}, v{X(t)}, 16, v{X(t)}")
        for r in range(4):
            e.op(f"v_and_b32 v{A+r}, v{X(t)}, v{M8+r}")
        e.op(f"v_mfma_f32_16x16x32_bf16 {vr(ACC)}, {vr(A)}, {vr(WQ(t))}, {'0' if t == 0 else vr(ACC)}")
    while nuk[0] < 8:
        issue_uk()
    e.op(f"v_lshlrev_b32 v{T}, 5, v{vK}")
    e.op(f"v_and_b32 v{T+1}, 1, v{Gq}")
    e.op(f"v_lshlrev_b32 v{T+1}, 4, v{T+1}")
    e.op(f"v_add_u32 v{T}, v{T}, v{T+1}")
    e.op(f"v_add_u32 v{T+2}, {L_QACC}, v{T}")
    e.op(f"v_add_u32 v{T+3}, {L_CTX}, v{T}")
    vCTXa = 31
    e.op(f"v_mov_b32 v{vCTXa}, v{T+3}")
    g.exec_set(VALID)
    for r in range(4):
        e.op(f"ds_add_f32 v{T+2}, v{ACC+r} offset:{4*r}")
    g.exec_set(-1)
    e.op("s_waitcnt lgkmcnt(0)")
    e.op("s_barrier")
    g.stamp(2)
    e.op(f"v_lshlrev_b32 v{T}, 5, v{vK}")
    e.op(f"v_add_u32 v{T}, {L_QACC}, v{T}")
    e.op(f"ds_read_b128 {vr(T+4)}, v{T}")
    e.op(f"ds_read_b128 {vr(T+8)}, v{T} offset:16")
    nck = [0]

    def issue_ck():
        i = nck[0]
        nck[0] += 1
        e.op(f"s_lshl_b32 s7, s3, 4")
        e.op(f"s_add_u32 s7, s7, {i}")
        e.op(f"s_mul_i32 s8, s7, {C_STRIDE}")
        e.op("s_lshl_b32 s7, s7, 10")
        e.op("s_mov_b32 m0, s8")
        e.op(f"buffer_load_dwordx4 v{vL16}, {sr(SCK,4)}, s7 offen {c.nt_ckv} lds", tag=("ck", i))
    for _ in range(c.A_CK1):
        issue_ck()
    e.op("s_waitcnt lgkmcnt(0)")
    for k in range(4):
        e.op(f"v_cvt_pk_bf16_f32 v{QC+k}, v{T+4+2*k}, v{T+5+2*k}")
    for half in range(2):
        ts = list(range(4 * half, 4 * half + 4))
        for t in ts:
            e.wait_vm(("uk", t))
        for k in range(4):
            for t in ts:
                e.op(f"v_dot2_f32_bf16 v{UK(t)}, v{UK(t)+k}, v{QC+k}, {'0' if k == 0 else 'v%d' % UK(t)}")
    for perm in ("row_half_mirror", "quad_perm:[2,3,0,1]", "quad_perm:[1,0,3,2]"):
        for t in range(8):
            e.op(f"v_add_f32_dpp v{UK(t)}, v{UK(t)}, v{UK(t)} {perm} row_mask:0xf bank_mask:0xf")
    for k in range(4):
        e.op(f"v_cvt_pk_bf16_f32 v{T+4+k}, v{UK(2*k)}, v{UK(2*k+1)}")
    assert (T + 4) % 2 == 0
    e.op(f"v_lshlrev_b32 v{T}, 4, v{vRHO}")
    e.op("s_lshl_b32 s7, s2, 10")
    e.op("s_lshl_b32 s8, s3, 7")
    e.op("s_add_u32 s7, s7, s8")
    e.op(f"s_add_u32 s7, s7, {QA}")
    g.exec_set(0x0101010101010101)
    e.op(f"buffer_store_dwordx4 {vr(T+4)}, v{T}, {sr(SRD_WS,4)}, s7 offen sc1", tag="qast")
    g.exec_set(-1)
    for _ in range(c.A_CK2):
        issue_ck()
    e.wait_vm("qast")
    e.op("s_barrier")
    g.stamp(3)
    lab = e.newlabel("fl")
    e.op("s_cmp_lg_u32 s3, 0")
    e.branch("s_cbranch_scc1", lab)
    e.op(f"v_and_b32 v{T}, 7, v{L}")
    e.op(f"v_lshrrev_b32 v{T+1}, 3, v{L}")
    e.op(f"v_lshlrev_b32 v{T+1}, 4, v{T+1}")
    e.op(f"s_lshr_b32 s7, s{S_H}, 4")
    e.op("s_lshl_b32 s7, s7, 3")
    e.op(f"v_add3_u32 v{T}, v{T}, v{T+1}, s7")
    e.op(f"v_lshlrev_b32 v{T}, 8, v{T}")
    e.op(f"s_and_b32 s7, s{S_H}, 15")
    e.op("s_lshl_b32 s7, s7, 1")
    e.op(f"s_add_u32 s7, s7, s{S_DH}")
    e.op("s_lshl_b32 s7, s7, 3")
    e.op(f"s_add_u32 s7, s7, {QAF}")
    e.op(f"v_mov_b32 v{T+2}, s{S_N}")
    e.op(f"v_mov_b32 v{T+3}, s{S_N}")
    g.exec_set(0xffffffff)
    e.op(f"buffer_store_dwordx2 {vr(T+2,2)}, v{T}, {sr(SRD_WS,4)}, s7 offen sc1", count=False)
    g.exec_set(-1)
    e.label(lab)
    while nck[0] < 16:
        e.wait_vm_window(c.WA - 1)
        issue_ck()

    def scalar_flag_poll(off_expr_setup):
        off_expr_setup()
        e.op(f"s_mov_b32 s10, s{S_N}")
        e.op(f"s_mov_b32 s11, s{S_N}")
        g.spin_init()
        poll, done = e.newlabel("fpoll"), e.newlabel("fdone")
        e.label(poll)
        e.op("s_load_dwordx8 s[92:99], s[8:9], 0 glc")
        e.op("s_waitcnt lgkmcnt(0)")
        for k in range(4):
            e.op(f"s_xor_b64 s[{92+2*k}:{93+2*k}], s[{92+2*k}:{93+2*k}], s[10:11]")
        e.op("s_or_b64 s[92:93], s[92:93], s[94:95]")
        e.op("s_or_b64 s[96:97], s[96:97], s[98:99]")
        e.op("s_or_b64 s[92:93], s[92:93], s[96:97]")
        e.op("s_cmp_eq_u64 s[92:93], 0")
        e.branch("s_cbranch_scc1", done)
        g.spin_step(done)
        e.branch("s_branch", poll)
        e.label(done)

    def qaf_addr():
        e.op("s_lshl_b32 s7, s2, 8")
        e.op("s_lshl_b32 s8, s3, 5")
        e.op("s_add_u32 s7, s7, s8")
        e.op(f"s_add_u32 s7, s7, {QAF}")
        e.op(f"s_add_u32 s8, s{P_WS}, s7")
        e.op(f"s_addc_u32 s9, s{P_WS+1}, 0")
    scalar_flag_poll(qaf_addr)
    g.stamp(4)
    e.op(f"s_lshl_b32 s7, s{S_HG}, 15")
    e.op("s_lshl_b32 s8, s3, 12")
    e.op("s_add_u32 s7, s7, s8")
    e.op(f"s_add_u32 s7, s7, {QA}")
    for u in range(4):
        e.op(f"buffer_load_dwordx4 {vr(BUF0+4*u)}, v{vL16}, {sr(SRD_WS,4)}, s7 offen offset:{1024*u} sc1", tag=("qa", u))
    nuv = [0]

    def issue_uv():
        t = nuv[0]
        nuv[0] += 1
        e.op(f"s_mov_b32 s7, {t*8192}")
        e.op(f"buffer_load_dwordx4 {vr(UV(t))}, v{vUK}, {sr(SUV,4)}, s7 offen {nt}", tag=("uv", t))
    nwo = [0]

    def issue_wo():
        t = nwo[0]
        nwo[0] += 1
        r2, cb = t // 5, t % 5
        if cb == 0:
            e.op(f"s_mov_b32 s14, {5120*r2}")
        e.op(f"buffer_load_dwordx4 {vr(WO(t))}, v{vWO}, {sr(SWO,4)}, s14 offen offset:{256*cb} {nt}", tag=("wo", t))
    for _ in range(c.A_UV1):
        issue_uv()
    e.wait_vm(("qa", 3))
    e.op("s_mov_b32 s7, 0xffff0000")
    for u in range(2):
        a, b = BUF0 + 8 * u, BUF0 + 8 * u + 4
        for k in range(4):
            e.op(f"v_lshlrev_b32 v{T}, 16, v{a+k}")
            e.op(f"v_lshlrev_b32 v{T+1}, 16, v{b+k}")
            e.op(f"v_and_b32 v{T+2}, s7, v{a+k}")
            e.op(f"v_and_b32 v{T+3}, s7, v{b+k}")
            e.op(f"v_add_f32 v{T}, v{T}, v{T+1}")
            e.op(f"v_add_f32 v{T+2}, v{T+2}, v{T+3}")
            e.op(f"v_cvt_pk_bf16_f32 v{a+k}, v{T}, v{T+2}")
    e.op(f"s_mul_i32 s7, s3, {2*C_STRIDE}")
    e.op(f"s_add_u32 s7, s7, {L_QA}")
    e.op(f"v_add_u32 v{T}, s7, v{vL16}")
    e.op(f"ds_write_b128 v{T}, {vr(BUF0)}")
    e.op(f"ds_write_b128 v{T}, {vr(BUF0+8)} offset:{C_STRIDE}")
    e.wait_vm(("ck", 15))
    e.op("s_waitcnt lgkmcnt(0)")
    e.op("s_barrier")
    g.stamp(5)
    vA, vB = T, T + 1
    e.op("s_lshl_b32 s7, s3, 4")
    e.op(f"v_add_u32 v{vA}, s7, v{N_}")
    e.op(f"v_mul_u32_u24 v{vA}, {C_STRIDE}, v{vA}")
    e.op(f"v_lshlrev_b32 v{T+2}, 4, v{Gq}")
    e.op(f"v_add_u32 v{vA}, v{vA}, v{T+2}")
    e.op(f"v_mul_u32_u24 v{vB}, {C_STRIDE}, v{N_}")
    e.op(f"v_add_u32 v{vB}, v{vB}, v{T+2}")
    e.op(f"v_add_u32 v{vB}, {L_QA}, v{vB}")

    def s_reads(b):
        buf = BUF0 if b % 2 == 0 else BUF1
        for i in range(4):
            t = 4 * b + i
            e.op(f"ds_read_b128 {vr(buf+8*i)}, v{vA} offset:{64*t}")
            e.op(f"ds_read_b128 {vr(buf+8*i+4)}, v{vB} offset:{64*t}")
    s_reads(0)
    for b in range(4):
        if b + 1 < 4:
            s_reads(b + 1)
        buf = BUF0 if b % 2 == 0 else BUF1
        for i in range(4):
            left = (8 if b + 1 < 4 else 0) + (6 - 2 * i)
            e.op(f"s_waitcnt lgkmcnt({left})")
            first = (b == 0 and i == 0)
            e.op(f"v_mfma_f32_16x16x32_bf16 {vr(ACC)}, {vr(buf+8*i)}, {vr(buf+8*i+4)}, {'0' if first else vr(ACC)}")
    SC = T + 4
    e.op(f"s_mov_b32 s7, {f32hex(SCALE)}")
    for r in range(4):
        e.op(f"v_mul_f32 v{SC+r}, s7, v{ACC+r}")
    MXr = T + 2
    e.op(f"v_max3_f32 v{MXr}, v{SC}, v{SC+1}, v{SC+2}")
    e.op(f"v_max_f32 v{MXr}, v{MXr}, v{SC+3}")
    g.xor16("v_max_f32", MXr, T + 3)
    g.xor32("v_max_f32", MXr, T + 3)
    vMX = 24
    e.op(f"v_lshlrev_b32 v{vMX}, 5, v{N_}")
    e.op(f"v_add_u32 v{vMX}, {L_MX}, v{vMX}")
    e.op("s_lshl_b32 s7, s3, 2")
    e.op(f"v_add_u32 v{T+3}, s7, v{vMX}")
    g.exec_set(0xffff)
    e.op(f"ds_write_b32 v{T+3}, v{MXr}")
    g.exec_set(-1)
    e.op("s_waitcnt lgkmcnt(0)")
    e.op("s_barrier")
    e.op(f"ds_read_b128 {vr(BUF0)}, v{vMX}")
    e.op(f"ds_read_b128 {vr(BUF0+4)}, v{vMX} offset:16")
    e.op("s_waitcnt lgkmcnt(0)")
    vM = 25
    e.op(f"v_max3_f32 v{vM}, v{BUF0}, v{BUF0+1}, v{BUF0+2}")
    e.op(f"v_max3_f32 v{vM}, v{vM}, v{BUF0+3}, v{BUF0+4}")
    e.op(f"v_max3_f32 v{vM}, v{vM}, v{BUF0+5}, v{BUF0+6}")
    e.op(f"v_max_f32 v{vM}, v{vM}, v{BUF0+7}")
    for r in range(4):
        e.op(f"v_sub_f32 v{SC+r}, v{SC+r}, v{vM}")
    for r in range(4):
        e.op(f"v_exp_f32 v{SC+r}, v{SC+r}")
    PP = T + 8
    assert PP % 2 == 0
    e.op(f"v_cvt_pk_bf16_f32 v{PP}, v{SC}, v{SC+1}")
    e.op(f"v_cvt_pk_bf16_f32 v{PP+1}, v{SC+2}, v{SC+3}")
    e.op("s_mov_b32 s7, 0xffff0000")
    e.op(f"v_lshlrev_b32 v{SC}, 16, v{PP}")
    e.op(f"v_and_b32 v{SC+1}, s7, v{PP}")
    e.op(f"v_lshlrev_b32 v{SC+2}, 16, v{PP+1}")
    e.op(f"v_and_b32 v{SC+3}, s7, v{PP+1}")
    e.op(f"v_add_f32 v{SC}, v{SC}, v{SC+1}")
    e.op(f"v_add_f32 v{SC+2}, v{SC+2}, v{SC+3}")
    e.op(f"v_add_f32 v{SC}, v{SC}, v{SC+2}")
    g.xor16("v_add_f32", SC, SC + 1)
    g.xor32("v_add_f32", SC, SC + 1)
    e.op(f"v_mul_u32_u24 v{T}, {P_STRIDE}, v{N_}")
    e.op(f"v_lshlrev_b32 v{T+1}, 4, v{Gq}")
    e.op(f"v_add_u32 v{T}, v{T}, v{T+1}")
    e.op(f"v_add_u32 v{T}, {L_P}, v{T}")
    vPR = 30
    e.op(f"v_mov_b32 v{vPR}, v{T}")
    e.op("s_lshr_b32 s7, s3, 1")
    e.op("s_lshl_b32 s7, s7, 6")
    e.op("s_and_b32 s8, s3, 1")
    e.op("s_lshl_b32 s8, s8, 3")
    e.op("s_add_u32 s7, s7, s8")
    e.op(f"v_add_u32 v{T}, s7, v{T}")
    e.op(f"ds_write_b64 v{T}, {vr(PP,2)}")
    e.op(f"v_add_u32 v{T+3}, {L_LX-L_MX}, v{T+3}")
    g.exec_set(0xffff)
    e.op(f"ds_write_b32 v{T+3}, v{SC}")
    g.exec_set(-1)
    e.op("s_waitcnt lgkmcnt(0)")
    e.op("s_barrier")
    g.stamp(6)
    PB = 48
    OACC = 64
    TR = 88
    for s in range(4):
        e.op(f"ds_read_b128 {vr(PB+4*s)}, v{vPR} offset:{64*s}")
    vT0, vT1 = T, T + 1
    e.op(f"v_lshrrev_b32 v{T+2}, 2, v{N_}")
    e.op(f"v_lshl_add_u32 v{T+2}, v{Gq}, 2, v{T+2}")
    e.op(f"v_mul_u32_u24 v{vT0}, {C_STRIDE}, v{T+2}")
    e.op(f"v_and_b32 v{T+2}, 3, v{N_}")
    e.op(f"v_lshlrev_b32 v{T+2}, 3, v{T+2}")
    e.op("s_lshl_b32 s7, s3, 7")
    e.op(f"v_add3_u32 v{vT0}, v{vT0}, v{T+2}, s7")
    e.op(f"v_add_u32 v{vT1}, {64*C_STRIDE}, v{vT0}")

    def tr_reads(tau):
        buf = TR if tau % 2 == 0 else BUF0
        for s in range(4):
            base = vT0 if s < 2 else vT1
            for u in range(2):
                off = (32 * (s & 1) + 16 * u) * C_STRIDE + 32 * tau
                e.op(f"ds_read_b64_tr_b16 {vr(buf+4*s+2*u,2)}, v{base} offset:{off}")
    tr_reads(0)
    for tau in range(4):
        if tau + 1 < 4:
            tr_reads(tau + 1)
        buf = TR if tau % 2 == 0 else BUF0
        for s in range(4):
            left = (8 if tau + 1 < 4 else 0) + (6 - 2 * s)
            e.op(f"s_waitcnt lgkmcnt({left})")
            e.op(f"v_mfma_f32_16x16x32_bf16 {vr(OACC+4*tau)}, {vr(buf+4*s)}, {vr(PB+4*s)}, {'0' if s == 0 else vr(OACC+4*tau)}")
    e.op(f"v_mul_u32_u24 v{T}, {C_STRIDE}, v{N_}")
    e.op(f"v_lshlrev_b32 v{T+1}, 3, v{Gq}")
    e.op("s_lshl_b32 s7, s3, 7")
    e.op(f"s_add_u32 s7, s7, {L_QA}")
    e.op(f"v_add3_u32 v{T}, v{T}, v{T+1}, s7")
    for tau in range(4):
        o = OACC + 4 * tau
        e.op(f"v_cvt_pk_bf16_f32 v{o}, v{o}, v{o+1}")
        e.op(f"v_cvt_pk_bf16_f32 v{o+1}, v{o+2}, v{o+3}")
        e.op(f"ds_write_b64 v{T}, {vr(o,2)} offset:{32*tau}")
    e.op("s_waitcnt lgkmcnt(0)")
    e.op("s_barrier")
    g.stamp(7)
    e.op(f"s_mul_i32 s7, s3, {2*C_STRIDE}")
    e.op(f"s_add_u32 s7, s7, {L_QA}")
    e.op(f"v_add_u32 v{T}, s7, v{vL16}")
    e.op(f"ds_read_b128 {vr(BUF1)}, v{T}")
    e.op(f"ds_read_b128 {vr(BUF1+4)}, v{T} offset:{C_STRIDE}")
    e.op(f"v_add_u32 v{T+1}, {L_LX-L_MX}, v{vMX}")
    e.op(f"ds_read_b128 {vr(BUF1+8)}, v{T+1}")
    e.op(f"ds_read_b128 {vr(BUF1+12)}, v{T+1} offset:16")
    e.op(f"s_lshl_b32 s7, s{S_HG}, 4")
    e.op("s_lshl_b32 s8, s3, 1")
    e.op("s_add_u32 s7, s7, s8")
    e.op("s_lshl_b32 s7, s7, 5")
    e.op(f"s_add_u32 s7, s7, s{S_KB}")
    e.op("s_lshl_b32 s7, s7, 10")
    e.op(f"s_add_u32 s7, s7, {OA}")
    e.op("s_add_u32 s8, s7, 32768")
    e.op("s_waitcnt lgkmcnt(0)")
    e.op(f"buffer_store_dwordx4 {vr(BUF1)}, v{vL16}, {sr(SRD_WS,4)}, s7 offen sc1", tag="ost0")
    e.op(f"buffer_store_dwordx4 {vr(BUF1+4)}, v{vL16}, {sr(SRD_WS,4)}, s8 offen sc1", tag="ost1")
    lab = e.newlabel("ml")
    e.op("s_cmp_lg_u32 s3, 0")
    e.branch("s_cbranch_scc1", lab)
    b = BUF1 + 8
    e.op(f"v_add_f32 v{b}, v{b}, v{b+1}")
    e.op(f"v_add_f32 v{b+2}, v{b+2}, v{b+3}")
    e.op(f"v_add_f32 v{b+4}, v{b+4}, v{b+5}")
    e.op(f"v_add_f32 v{b+6}, v{b+6}, v{b+7}")
    e.op(f"v_add_f32 v{b}, v{b}, v{b+2}")
    e.op(f"v_add_f32 v{b+4}, v{b+4}, v{b+6}")
    e.op(f"v_add_f32 v{T+3}, v{b}, v{b+4}")
    e.op(f"v_mov_b32 v{T+2}, v{vM}")
    assert (T + 2) % 2 == 0
    e.op(f"v_lshlrev_b32 v{T+1}, 8, v{N_}")
    e.op(f"s_lshl_b32 s7, s{S_HG}, 12")
    e.op(f"s_lshl_b32 s8, s{S_KB}, 3")
    e.op("s_add_u32 s7, s7, s8")
    e.op(f"s_add_u32 s7, s7, {MLA}")
    g.exec_set(0xffff)
    e.op(f"buffer_store_dwordx2 {vr(T+2,2)}, v{T+1}, {sr(SRD_WS,4)}, s7 offen sc1", count=False)
    g.exec_set(-1)
    e.op("s_waitcnt vmcnt(0)")
    e.label(lab)
    e.wait_vm("ost1")
    e.op("s_barrier")
    g.stamp(8)
    lab = e.newlabel("fl2")
    e.op("s_cmp_lg_u32 s3, 0")
    e.branch("s_cbranch_scc1", lab)
    e.op(f"v_lshlrev_b32 v{T}, 8, v{L}")
    e.op(f"s_lshl_b32 s7, s{S_HG}, 13")
    e.op(f"s_lshl_b32 s8, s{S_KB}, 3")
    e.op("s_add_u32 s7, s7, s8")
    e.op(f"s_add_u32 s7, s7, {OAF}")
    e.op(f"v_mov_b32 v{T+2}, s{S_N}")
    e.op(f"v_mov_b32 v{T+3}, s{S_N}")
    g.exec_set(0xffffffff)
    e.op(f"buffer_store_dwordx2 {vr(T+2,2)}, v{T}, {sr(SRD_WS,4)}, s7 offen sc1", count=False)
    g.exec_set(-1)
    e.label(lab)
    for _ in range(c.A_UV2):
        if nuv[0] < 8:
            issue_uv()
    for _ in range(c.A_WO1):
        issue_wo()

    def oaf_addr():
        e.op("s_lshl_b32 s7, s2, 8")
        e.op("s_lshl_b32 s8, s3, 5")
        e.op("s_add_u32 s7, s7, s8")
        e.op(f"s_add_u32 s7, s7, {OAF}")
        e.op(f"s_add_u32 s8, s{P_WS}, s7")
        e.op(f"s_addc_u32 s9, s{P_WS+1}, 0")
    scalar_flag_poll(oaf_addr)
    e.op("s_barrier")
    g.stamp(9)
    vKk = 30
    e.op(f"v_and_b32 v{vKk}, 7, v{L}")
    ML = T + 2
    e.op(f"v_and_b32 v{T}, 31, v{L}")
    e.op(f"v_lshlrev_b32 v{T}, 3, v{T}")
    e.op(f"s_lshl_b32 s7, s{S_H}, 8")
    e.op(f"s_add_u32 s7, s7, {MLA}")
    e.op(f"buffer_load_dwordx2 {vr(ML,2)}, v{T}, {sr(SRD_WS,4)}, s7 offen sc1", tag="ml")
    e.op(f"v_lshlrev_b32 v{T}, 10, v{vRHO}")
    e.op(f"v_lshlrev_b32 v{T+1}, 4, v{vKk}")
    e.op("s_lshl_b32 s7, s3, 7")
    e.op(f"v_add3_u32 v{T}, v{T}, v{T+1}, s7")
    e.op(f"s_lshl_b32 s7, s{S_H}, 15")
    e.op(f"s_add_u32 s7, s7, {OA}")
    OT = 48
    for t in range(4):
        e.op(f"buffer_load_dwordx4 {vr(OT+4*t)}, v{T}, {sr(SRD_WS,4)}, s7 offen sc1", tag=("ot", t))
        if t < 3:
            e.op("s_addk_i32 s7, 0x2000")
    while nuv[0] < 8:
        issue_uv()
    while nwo[0] < 10:
        issue_wo()
    e.wait_vm("ml")
    W_ = T + 4
    e.op(f"v_mov_b32 v{W_}, v{ML}")
    g.wave_reduce("v_max_f32", W_, W_ + 1, lanes=32)
    e.op(f"v_sub_f32 v{W_}, v{ML}, v{W_}")
    e.op(f"v_exp_f32 v{W_}, v{W_}")
    e.op(f"v_mul_f32 v{W_+1}, v{W_}, v{ML+1}")
    g.wave_reduce("v_add_f32", W_ + 1, W_ + 2, lanes=32)
    e.op(f"v_rcp_f32 v{W_+1}, v{W_+1}")
    e.op(f"v_mul_f32 v{W_}, v{W_}, v{W_+1}")
    e.op(f"v_cvt_pk_bf16_f32 v{W_}, v{W_}, v{W_}")
    e.op(f"v_lshlrev_b32 v{W_+1}, 2, v{vRHO}")
    WB = 64
    for t in range(4):
        if t:
            e.op(f"v_add_u32 v{W_+1}, 32, v{W_+1}")
        e.op(f"ds_bpermute_b32 v{WB+t}, v{W_+1}, v{W_}")
    e.op("s_waitcnt lgkmcnt(0)")
    for t in range(4):
        e.wait_vm(("ot", t))
        A = A0 if t % 2 == 0 else A1
        for r in range(4):
            e.op(f"v_and_b32 v{A+r}, v{WB+t}, v{M8+r}")
        e.op(f"v_mfma_f32_16x16x32_bf16 {vr(ACC)}, {vr(A)}, {vr(OT+4*t)}, {'0' if t == 0 else vr(ACC)}")
    e.op(f"v_lshlrev_b32 v{T}, 5, v{vKk}")
    e.op(f"v_lshlrev_b32 v{T+1}, 4, v{Gq}")
    e.op(f"v_and_b32 v{T+2}, 1, v{Gq}")
    e.op(f"v_lshlrev_b32 v{T+2}, 4, v{T+2}")
    e.op(f"v_lshrrev_b32 v{T+3}, 1, v{Gq}")
    e.op(f"v_lshlrev_b32 v{T+3}, 8, v{T+3}")
    e.op(f"v_add3_u32 v{T}, v{T}, v{T+2}, v{T+3}")
    e.op("s_lshl_b32 s7, s3, 9")
    e.op(f"v_add_u32 v{T}, s7, v{T}")
    g.exec_set(VALID)
    e.op(f"ds_write_b128 v{T}, {vr(ACC)}")
    g.exec_set(-1)
    e.op(f"v_lshlrev_b32 v{T+1}, 5, v{vRHO}")
    e.op(f"v_add_u32 v{T+1}, s7, v{T+1}")
    e.op("s_waitcnt lgkmcnt(0)")
    CC = 68
    e.op(f"ds_read_b128 {vr(CC)}, v{T+1}")
    e.op(f"ds_read_b128 {vr(CC+4)}, v{T+1} offset:16")
    e.op(f"ds_read_b128 {vr(CC+8)}, v{T+1} offset:256")
    e.op(f"ds_read_b128 {vr(CC+12)}, v{T+1} offset:272")
    e.op("s_waitcnt lgkmcnt(0)")
    for t in range(8):
        e.op(f"v_add_f32 v{CC+t}, v{CC+t}, v{CC+8+t}")
    for t in range(8):
        e.op(f"v_cvt_pk_bf16_f32 v{CC+t}, v{CC+t}, v{CC+t}")
    for t in range(8):
        e.wait_vm(("uv", t))
        A = A0 if t % 2 == 0 else A1
        for r in range(4):
            e.op(f"v_and_b32 v{A+r}, v{CC+t}, v{M8+r}")
        e.op(f"v_mfma_f32_16x16x32_bf16 {vr(ACC)}, {vr(A)}, {vr(UV(t))}, {'0' if t == 0 else vr(ACC)}")
    g.exec_set(VALID)
    for r in range(4):
        e.op(f"ds_add_f32 v{vCTXa}, v{ACC+r} offset:{4*r}")
    g.exec_set(-1)
    e.op("s_waitcnt lgkmcnt(0)")
    e.op("s_barrier")
    g.stamp(10)
    e.op("s_lshl_b32 s7, s3, 3")
    e.op(f"v_add_u32 v{T}, s7, v{Gq}")
    e.op(f"v_lshlrev_b32 v{T}, 2, v{T}")
    e.op(f"v_add_u32 v{T}, {L_CTX}, v{T}")
    e.op(f"ds_read_b32 v{T+2}, v{T}")
    e.op(f"ds_read_b32 v{T+3}, v{T} offset:16")
    e.op("s_waitcnt lgkmcnt(0)")
    e.op(f"v_cvt_pk_bf16_f32 v{T+2}, v{T+2}, v{T+2}")
    e.op(f"v_cvt_pk_bf16_f32 v{T+3}, v{T+3}, v{T+3}")
    for r in range(4):
        e.op(f"v_and_b32 v{A0+r}, v{T+2}, v{M4+r}")
    for r in range(4):
        e.op(f"v_and_b32 v{A1+r}, v{T+3}, v{M4+r}")
    OA5 = 64
    for r2 in range(2):
        for cb in range(5):
            t = 5 * r2 + cb
            e.wait_vm(("wo", t))
            A = A0 if r2 == 0 else A1
            e.op(f"v_mfma_f32_16x16x32_bf16 {vr(OA5+4*cb)}, {vr(A)}, {vr(WO(t))}, {'0' if r2 == 0 else vr(OA5+4*cb)}")
    LF = 8192
    e.op(f"v_lshlrev_b32 v{T}, 5, v{N_}")
    e.op(f"v_lshlrev_b32 v{T+1}, 4, v{Gq}")
    e.op(f"s_mul_i32 s7, s3, 2560")
    e.op(f"s_add_u32 s7, s7, {LF}")
    e.op(f"v_add3_u32 v{T}, v{T}, v{T+1}, s7")
    g.exec_set(0xffffffff)
    for cb in range(5):
        e.op(f"ds_write_b128 v{T}, {vr(OA5+4*cb)} offset:{512*cb}")
    g.exec_set(-1)
    e.op("s_waitcnt lgkmcnt(0)")
    e.op("s_barrier")
    nopub = e.newlabel("nopub")
    e.op("s_cmp_ge_u32 s3, 5")
    e.branch("s_cbranch_scc1", nopub)
    a = 48
    e.op("s_lshl_b32 s7, s3, 9")
    e.op(f"v_lshlrev_b32 v{T}, 3, v{L}")
    e.op(f"v_add_u32 v{T}, s7, v{T}")
    for w in range(8):
        e.op(f"ds_read_b64 {vr(a+2*w,2)}, v{T} offset:{LF+2560*w}")
    gq = T + 4
    e.op(f"v_mov_b32 v{gq+1}, s{S_N}")
    e.op(f"v_mov_b32 v{gq+3}, s{S_N}")
    e.op("s_mul_i32 s7, s2, 5120")
    e.op("s_lshl_b32 s8, s3, 10")
    e.op("s_add_u32 s7, s7, s8")
    e.op(f"s_add_u32 s7, s7, {FA}")
    e.op("s_waitcnt lgkmcnt(0)")
    for w in (1, 3, 5, 7):
        e.op(f"v_add_f32 v{a+2*(w-1)}, v{a+2*(w-1)}, v{a+2*w}")
        e.op(f"v_add_f32 v{a+2*(w-1)+1}, v{a+2*(w-1)+1}, v{a+2*w+1}")
    for w in (2, 6):
        e.op(f"v_add_f32 v{a+2*(w-2)}, v{a+2*(w-2)}, v{a+2*w}")
        e.op(f"v_add_f32 v{a+2*(w-2)+1}, v{a+2*(w-2)+1}, v{a+2*w+1}")
    e.op(f"v_add_f32 v{gq}, v{a}, v{a+8}")
    e.op(f"v_add_f32 v{gq+2}, v{a+1}, v{a+9}")
    e.op(f"buffer_store_dwordx4 {vr(gq)}, v{vL16}, {sr(SRD_WS,4)}, s7 offen sc1", count=False)
    e.label(nopub)
    e.vm = []
    fin = e.newlabel("fin")
    e.op("s_cmp_ge_u32 s2, 40")
    e.branch("s_cbranch_scc1", fin)
    g.srd(SX, P_OUT, None, 2560)
    la, lb = e.newlabel("redA"), e.newlabel("redB")
    e.op("s_cmp_eq_u32 s3, 6")
    e.branch("s_cbranch_scc1", la)
    e.op("s_cmp_eq_u32 s3, 5")
    e.branch("s_cbranch_scc0", fin)

    def reducer(nload, stride, base_setup, out_off):
        D = 48
        e.op(f"v_mul_u32_u24 v{T}, {stride}, v{vRHO}")
        e.op(f"v_and_b32 v{T+1}, 7, v{L}")
        e.op(f"v_lshlrev_b32 v{T+1}, 4, v{T+1}")
        e.op(f"v_add_u32 v{T}, v{T}, v{T+1}")
        base_setup()
        g.spin_init()
        poll, done = e.newlabel("rpoll"), e.newlabel("rdone")
        e.label(poll)
        e.op("s_mov_b32 s7, s14")
        for u in range(nload):
            e.op(f"buffer_load_dwordx4 {vr(D+4*u)}, v{T}, {sr(SRD_WS,4)}, s7 offen sc1", count=False)
            if u + 1 < nload:
                e.op(f"s_add_u32 s7, s7, {8*stride}")
        e.op("s_waitcnt vmcnt(0)")
        g.tags_bad(T + 2, [D + 4 * u + k for u in range(nload) for k in (1, 3)])
        e.op(f"v_cmp_ne_u32 vcc, 0, v{T+2}")
        e.op("s_cmp_eq_u64 vcc, 0")
        e.branch("s_cbranch_scc1", done)
        g.spin_step(done)
        e.branch("s_branch", poll)
        e.label(done)
        n = nload
        while n > 1:
            h = n // 2
            for u in range(h):
                for k in (0, 2):
                    e.op(f"v_add_f32 v{D+4*u+k}, v{D+4*u+k}, v{D+4*(u+h)+k}")
            n = h
        for k in (0, 2):
            e.op(f"v_add_f32_dpp v{D+k}, v{D+k}, v{D+k} row_ror:8 row_mask:0xf bank_mask:0xf")
        for k in (0, 2):
            g.xor16("v_add_f32", D + k, T + 2)
        for k in (0, 2):
            g.xor32("v_add_f32", D + k, T + 2)
        e.op(f"v_cvt_pk_bf16_f32 v{D}, v{D}, v{D+2}")
        e.op(f"v_lshlrev_b32 v{T}, 2, v{L}")
        e.op("s_lshl_b32 s7, s2, 5")
        if out_off:
            e.op(f"s_add_u32 s7, s7, {out_off}")
        g.exec_set(0xff)
        e.op(f"buffer_store_dword v{D}, v{T}, {sr(SX,4)}, s7 offen", count=False)
        g.exec_set(-1)

    def baseB():
        e.op("s_lshr_b32 s7, s2, 3")
        e.op("s_lshl_b32 s7, s7, 15")
        e.op("s_and_b32 s8, s2, 7")
        e.op("s_lshl_b32 s8, s8, 7")
        e.op("s_add_u32 s7, s7, s8")
        e.op(f"s_add_u32 s14, s7, {FB}")

    def baseA():
        e.op("s_lshl_b32 s7, s2, 7")
        e.op(f"s_add_u32 s14, s7, {FA}")
    if c.only != "A":
        reducer(4, 1024, baseB, 1280)
    e.branch("s_branch", fin)
    e.label(la)
    if c.only != "B":
        reducer(8, 5120, baseA, 0)
    e.label(fin)
    lend = e.newlabel("aend")
    e.op("s_cmp_lg_u32 s2, 0")
    e.branch("s_cbranch_scc1", lend)
    e.op("s_barrier")
    e.op("s_cmp_lg_u32 s3, 5")
    e.branch("s_cbranch_scc1", lend)
    e.op(f"v_mov_b32 v{T}, {EPOCH}")
    e.op(f"v_mov_b32 v{T+1}, s{S_N}")
    g.exec_set(1)
    e.op(f"buffer_store_dword v{T+1}, v{T}, {sr(SRD_WS,4)}, 0 offen sc1", count=False)
    g.exec_set(-1)
    e.label(lend)
    g.stamp(11)
    g.dump_stamps("A")
    e.op("s_endpgm")
```

```python
import argparse
from emit import Emit

NAME = "concat_heads__compressed_kv_cla__mha_block_cached__decode_kernel"

EPOCH = 0
QB = 0x1000
MLG = 0x31000
OB = 0x32000
FB = 0x62000
FA = 0x8A000
QA = 0xDA000
QAF = 0xEA000
MLA = 0xEE000
OAF = 0xF0000
OA = 0x100000
PROF = 0x200000
WS_USED = 0x240000
NONCE_STEP = 0x9E3779B1
SCALE = 0.08838834764831845 * 1.4426950408889634


def f32hex(x):
    import struct
    return "0x%08x" % struct.unpack("<I", struct.pack("<f", x))[0]


class Cfg:
    def __init__(self, **kw):
        self.nt = "nt"
        self.nt_ckv = "nt"
        self.W = 4
        self.K0 = 3
        self.POLL_A = 9
        self.PREV = 2
        self.WA = 6
        self.prof = False
        self.spin = 200000
        self.only = None
        self.A_UK1, self.A_CK1, self.A_CK2, self.A_UV1, self.A_UV2, self.A_WO1 = 4, 2, 2, 4, 4, 0
        self.__dict__.update(kw)


S_WG, S_WAVE, S_N = 2, 3, 4
P_AX, P_CKV, P_WQA, P_WUK, P_WUV, P_WOA = 16, 18, 20, 22, 24, 26
P_BX, P_BK, P_BV, P_BWQ, P_BWO, P_OUT, P_DBG, P_WS = 32, 34, 36, 38, 40, 42, 44, 46
SRD_WS = 48
S_SPIN = 15


def sr(n, k=2):
    return f"s[{n}:{n+k-1}]"


def vr(n, k=4):
    return f"v[{n}:{n+k-1}]"


class Gen:
    def __init__(self, cfg):
        self.c = cfg
        self.e = Emit()
        self.nstamp = 0

    def srd(self, dst, ptr, off_sgpr, nrec):
        e = self.e
        if off_sgpr is None:
            e.op(f"s_mov_b32 s{dst}, s{ptr}")
            e.op(f"s_mov_b32 s{dst+1}, s{ptr+1}")
        else:
            e.op(f"s_add_u32 s{dst}, s{ptr}, {off_sgpr}")
            e.op(f"s_addc_u32 s{dst+1}, s{ptr+1}, 0")
        e.op(f"s_mov_b32 s{dst+2}, {nrec}")
        e.op(f"s_mov_b32 s{dst+3}, 0x20000")

    def stamp(self, idx):
        if not self.c.prof:
            return
        e = self.e
        e.op("s_memrealtime s[78:79]")
        e.op("s_waitcnt lgkmcnt(0)")
        e.op(f"s_mov_b32 s{80+idx}, s78")

    def dump_stamps(self):
        if not self.c.prof:
            return
        e = self.e
        e.op("s_mov_b64 exec, -1")
        e.op("v_mbcnt_lo_u32_b32 v2, -1, 0")
        e.op("v_mbcnt_hi_u32_b32 v2, -1, v2")
        e.op("s_lshl_b32 s5, s2, 3")
        e.op("s_add_u32 s5, s5, s3")
        e.op("s_lshl_b32 s5, s5, 6")
        e.op(f"s_add_u32 s5, s5, {PROF}")
        e.op("v_mov_b32 v3, 0")
        for i in range(16):
            e.op(f"v_mov_b32 v4, s{80+i}")
            e.op(f"v_cmp_eq_u32 vcc, {i}, v2")
            e.op("v_cndmask_b32 v3, v3, v4, vcc")
        e.op("v_lshlrev_b32 v2, 2, v2")
        e.op("v_add_u32 v2, s5, v2")
        e.op("s_mov_b32 exec_lo, 0xffff".replace("exec_lo", "exec_lo"))
        e.op("s_mov_b32 exec_hi, 0")
        e.op(f"buffer_store_dword v3, v2, {sr(SRD_WS,4)}, 0 offen")
        e.op("s_mov_b64 exec, -1")

    def spin_init(self):
        self.e.op(f"s_mov_b32 s{S_SPIN}, 0")

    def spin_step(self, out_label):
        e = self.e
        e.op(f"s_add_u32 s{S_SPIN}, s{S_SPIN}, 1")
        e.op(f"s_cmp_gt_u32 s{S_SPIN}, {self.c.spin}")
        e.branch("s_cbranch_scc1", out_label)

    def wave_reduce(self, op, v, t, lanes=64):
        e = self.e
        for k in (8, 4, 2, 1):
            e.op(f"{op}_dpp v{v}, v{v}, v{v} row_ror:{k} row_mask:0xf bank_mask:0xf")
        self.xor16(op, v, t)
        if lanes == 64:
            self.xor32(op, v, t)

    def xor16(self, op, v, t):
        e = self.e
        e.op(f"v_mov_b32 v{t}, v{v}")
        e.op(f"v_permlane16_swap_b32 v{v}, v{t}")
        e.op(f"{op} v{v}, v{v}, v{t}")

    def xor32(self, op, v, t):
        e = self.e
        e.op(f"v_mov_b32 v{t}, v{v}")
        e.op(f"v_permlane32_swap_b32 v{v}, v{t}")
        e.op(f"{op} v{v}, v{v}, v{t}")

    def make_masks(self, dst, idx_reg, n_reg, t0, t1):
        e = self.e
        e.op(f"v_and_b32 v{t0}, 1, v{n_reg}")
        e.op(f"v_lshlrev_b32 v{t0}, 4, v{t0}")
        e.op(f"v_mov_b32 v{t1}, 0xffff")
        e.op(f"v_lshlrev_b32 v{t0}, v{t0}, v{t1}")
        for r in range(4):
            e.op(f"v_cmp_eq_u32 vcc, {r}, v{idx_reg}")
            e.op(f"v_cndmask_b32 v{dst+r}, 0, v{t0}, vcc")

    def tags_bad(self, acc, tags, first=True):
        e = self.e
        tags = list(tags)
        while tags:
            a = tags.pop(0)
            e.op(f"v_xor_b32 v{a}, s{S_N}, v{a}")
            if tags:
                b = tags.pop(0)
                e.op(f"v_xor_b32 v{b}, s{S_N}, v{b}")
                if first:
                    e.op(f"v_or_b32 v{acc}, v{a}, v{b}")
                else:
                    e.op(f"v_or3_b32 v{acc}, v{acc}, v{a}, v{b}")
            else:
                if first:
                    e.op(f"v_mov_b32 v{acc}, v{a}")
                else:
                    e.op(f"v_or_b32 v{acc}, v{acc}, v{a}")
            first = False

    def exec_set(self, mask):
        e = self.e
        if mask == -1 or mask == (1 << 64) - 1:
            e.op("s_mov_b64 exec, -1")
        else:
            e.op(f"s_mov_b32 exec_lo, 0x{mask & 0xffffffff:x}")
            e.op(f"s_mov_b32 exec_hi, 0x{mask >> 32:x}")

    def build(self):
        e = self.e
        c = self.c
        e.raw(f"; @launch grid=(256,1,1) block=(512,1,1) lds={LDS_TOTAL}")
        e.raw('.amdgcn_target "amdgcn-amd-amdhsa--gfx950"')
        e.raw(".text")
        e.raw(f".globl {NAME}")
        e.raw(".p2align 8")
        e.raw(f".type {NAME},@function")
        e.raw(f"{NAME}:")
        e.op("s_cmp_ge_u32 s2, 256")
        e.op("s_cbranch_scc1 L_end")
        e.op("s_load_dwordx16 s[16:31], s[0:1], 0")
        e.op("s_load_dwordx16 s[32:47], s[0:1], 48")
        if c.prof:
            e.op("s_memrealtime s[78:79]")
        e.op("v_lshrrev_b32 v1, 6, v0")
        e.op("v_and_b32 v0, 63, v0")
        e.op("v_readfirstlane_b32 s3, v1")
        if c.prof:
            for i in range(16):
                e.op(f"s_mov_b32 s{80+i}, 0")
        e.op("v_lshrrev_b32 v1, 4, v0")
        e.op("v_and_b32 v2, 15, v0")
        e.op("s_cmp_lt_u32 s2, 64")
        e.op("s_cbranch_scc1 L_A")
        self.gen_B()
        e.label("L_A")
        self.gen_A()
        e.raw("L_end:")
        e.raw("    s_endpgm")
        e.raw('.section .rodata,"a"')
        e.raw(".p2align 6")
        e.raw(f".amdhsa_kernel {NAME}")
        e.raw("  .amdhsa_next_free_vgpr 256")
        e.raw("  .amdhsa_next_free_sgpr 102")
        e.raw("  .amdhsa_accum_offset 256")
        e.raw("  .amdhsa_group_segment_fixed_size 0")
        e.raw("  .amdhsa_kernarg_size 112")
        e.raw("  .amdhsa_user_sgpr_count 2")
        e.raw("  .amdhsa_user_sgpr_kernarg_segment_ptr 1")
        e.raw("  .amdhsa_system_sgpr_workgroup_id_x 1")
        e.raw(".end_amdhsa_kernel")
        return e.text()

    def gen_B(self):
        e, c = self.e, self.c
        S_J, S_H = 5, 6
        e.op("s_sub_u32 s7, s2, 64")
        e.op("s_and_b32 s8, s7, 7")
        e.op("s_lshr_b32 s7, s7, 3")
        e.op("s_mul_i32 s9, s7, 43")
        e.op("s_lshr_b32 s9, s9, 8")
        e.op("s_mul_i32 s10, s9, 6")
        e.op(f"s_sub_u32 s{S_J}, s7, s10")
        e.op("s_lshl_b32 s8, s8, 2")
        e.op(f"s_add_u32 s{S_H}, s8, s9")
        B = self.B = type("R", (), {})()
        B.L, B.G, B.Nn = 0, 1, 2
        B.MASK = 4
        B.Q = 8
        B.ACC = 12
        B.A0, B.A1 = 16, 20
        B.vKV, B.vWQ, B.vX, B.vLDS, B.vWS = 24, 25, 26, 27, 28
        B.T = 29
        B.P0, B.P1, B.PD0, B.PD1, B.M, B.Lw = 40, 41, 42, 43, 44, 45
        B.FW = 46
        B.MW = 47
        B.WO = 48
        B.K = 64
        e.op(f"v_lshrrev_b32 v3, 1, v{B.Nn}")
        self.make_masks(B.MASK, 3, B.Nn, B.T, B.T + 1)
        e.op(f"s_lshl_b32 s7, s3, 10")
        e.op(f"v_lshlrev_b32 v{B.vKV}, 4, v{B.L}")
        e.op(f"v_add_u32 v{B.vKV}, s7, v{B.vKV}")
        e.op("s_lshl_b32 s7, s3, 2")
        e.op(f"v_add_u32 v{B.T}, s7, v{B.G}")
        e.op(f"v_lshlrev_b32 v{B.vWQ}, 13, v{B.T}")
        e.op(f"v_lshlrev_b32 v{B.T+1}, 4, v{B.Nn}")
        e.op(f"v_add_u32 v{B.vWQ}, v{B.vWQ}, v{B.T+1}")
        e.op(f"s_mul_i32 s7, s{S_J}, 108")
        e.op(f"s_cmp_eq_u32 s{S_J}, 5")
        e.op("s_cselect_b32 s7, 536, s7")
        e.op(f"s_cmp_ge_u32 s{S_J}, 4")
        e.op("s_mov_b32 s8, 108")
        e.op("s_cselect_b32 s8, 104, s8")
        e.op(f"v_add_u32 v{B.vX}, s7, v{B.T}")
        e.op(f"v_lshlrev_b32 v{B.vX}, 1, v{B.vX}")
        e.op("s_lshl_b32 s9, s3, 9")
        e.op(f"v_lshlrev_b32 v{B.vLDS}, 5, v{B.Nn}")
        e.op(f"v_lshlrev_b32 v{B.T+1}, 4, v{B.G}")
        e.op(f"v_add3_u32 v{B.vLDS}, v{B.vLDS}, v{B.T+1}, s9")
        e.op(f"v_lshlrev_b32 v{B.vWS}, 4, v{B.L}")
        e.op("s_waitcnt lgkmcnt(0)")
        if c.prof:
            e.op("s_mov_b32 s80, s78")
        e.op(f"s_load_dword s{S_N}, {sr(P_WS)}, {EPOCH}")
        SK, SV, SWQ, SWO, SX = 52, 56, 60, 64, 68
        self.SK, self.SV, self.SWQ, self.SWO, self.SX = SK, SV, SWQ, SWO, SX
        self.srd(SX, P_BX, None, 1280)
        e.op("s_lshl_b32 s9, s7, 13")
        e.op(f"s_lshl_b32 s10, s{S_H}, 8")
        e.op("s_add_u32 s9, s9, s10")
        e.op("s_lshl_b32 s8, s8, 13")
        self.srd(SWQ, P_BWQ, "s9", "s8")
        e.op(f"s_lshl_b32 s9, s{S_H}, 20")
        e.op(f"s_mul_i32 s10, s{S_J}, {168*1024}")
        e.op("s_add_u32 s9, s9, s10")
        self.srd(SK, P_BK, "s9", 184 * 1024)
        self.srd(SV, P_BV, "s9", 184 * 1024)
        self.srd(SRD_WS, P_WS, None, WS_USED)
        e.op(f"s_mul_i32 s9, s{S_H}, {128*1280}")
        e.op(f"s_lshl_b32 s10, s{S_J}, 8")
        e.op("s_add_u32 s9, s9, s10")
        self.srd(SWO, P_BWO, "s9", 128 * 1280)
        e.op(f"s_cmp_eq_u32 s{S_J}, 5")
        e.branch("s_cbranch_scc1", "L_B5")
        saved = list(e.vm)
        self.gen_B_variant(21, True)
        e.label("L_B5")
        e.vm = saved
        self.gen_B_variant(23, False)

    def gen_B_variant(self, NR, has_wo):
        e, c, B = self.e, self.c, self.B
        S_J, S_H = 5, 6
        SK, SV, SWQ, SWO, SX = self.SK, self.SV, self.SWQ, self.SWO, self.SX
        nt = c.nt
        K = lambda t: B.K + 4 * t
        V = lambda t: B.K + 4 * NR + 4 * t
        assert V(NR - 1) + 3 <= 255
        WQ = lambda t: V(NR - 4 + t)
        POLL = lambda p: V(NR - 6 + p)
        X = lambda t: B.T + 4 + t
        LQP, LOP, LFP, LQF, LML = 0, 4096, 8192, 12288, 12544
        COMM = 7
        S_KO, S_VO, S_T = 72, 73, 7

        def comm_begin():
            lab = e.newlabel("nc")
            e.op(f"s_cmp_lg_u32 s3, {COMM}")
            e.branch("s_cbranch_scc1", lab)
            return lab

        def comm_end(lab):
            e.label(lab)

        nK = [0]
        nV = [0]

        def issue_K():
            t = nK[0]
            nK[0] += 1
            e.op(f"buffer_load_dwordx4 {vr(K(t))}, v{B.vKV}, {sr(SK,4)}, s{S_KO} offen {nt}", tag=("K", t))
            e.op(f"s_addk_i32 s{S_KO}, 0x2000")

        def issue_V():
            t = nV[0]
            nV[0] += 1
            e.op(f"buffer_load_dwordx4 {vr(V(t))}, v{B.vKV}, {sr(SV,4)}, s{S_VO} offen {nt}", tag=("V", t))
            e.op(f"s_addk_i32 s{S_VO}, 0x2000")

        e.op(f"s_mov_b32 s{S_KO}, 0")
        e.op(f"s_mov_b32 s{S_VO}, 0")
        for t in range(4):
            e.op(f"buffer_load_ushort v{X(t)}, v{B.vX}, {sr(SX,4)}, 0 offen offset:{64*t}", tag=("x", t))
        for t in range(4):
            e.op(f"s_mov_b32 s{S_T}, {t*0x40000}")
            e.op(f"buffer_load_dwordx4 {vr(WQ(t))}, v{B.vWQ}, {sr(SWQ,4)}, s{S_T} offen {nt}", tag=("wq", t))
        for _ in range(c.K0):
            issue_K()
        self.stamp(1)
        e.op("s_waitcnt lgkmcnt(0)")
        e.op(f"s_add_u32 s{S_N}, s{S_N}, 0x{NONCE_STEP:x}")
        for t in range(4):
            e.wait_vm(("wq", t))
            A = B.A0 if t % 2 == 0 else B.A1
            e.op(f"v_lshl_or_b32 v{X(t)}, v{X(t)}, 16, v{X(t)}")
            for r in range(4):
                e.op(f"v_and_b32 v{A+r}, v{X(t)}, v{B.MASK+r}")
            e.op(f"v_mfma_f32_16x16x32_bf16 {vr(B.ACC)}, {vr(A)}, {vr(WQ(t))}, {'0' if t == 0 else vr(B.ACC)}")
        self.exec_set(0xffffffff)
        e.op(f"ds_write_b128 v{B.vLDS}, {vr(B.ACC)} offset:{LQP}")
        self.exec_set(-1)
        e.op("s_waitcnt lgkmcnt(0)")
        e.op("s_barrier")
        self.stamp(2)
        lab = comm_begin()
        e.op("s_setprio 2")
        e.op(f"v_lshlrev_b32 v{B.T}, 3, v{B.L}")
        for w in range(8):
            e.op(f"ds_read_b64 {vr(POLL(0)+2*w,2)}, v{B.T} offset:{LQP+512*w}")
        e.op("s_waitcnt lgkmcnt(0)")
        a = POLL(0)
        for w in (1, 3, 5, 7):
            e.op(f"v_add_f32 v{a+2*(w-1)}, v{a+2*(w-1)}, v{a+2*w}")
            e.op(f"v_add_f32 v{a+2*(w-1)+1}, v{a+2*(w-1)+1}, v{a+2*w+1}")
        for w in (2, 6):
            e.op(f"v_add_f32 v{a+2*(w-2)}, v{a+2*(w-2)}, v{a+2*w}")
            e.op(f"v_add_f32 v{a+2*(w-2)+1}, v{a+2*(w-2)+1}, v{a+2*w+1}")
        gq = B.T + 7
        assert gq % 2 == 0
        e.op(f"v_add_f32 v{gq}, v{a}, v{a+8}")
        e.op(f"v_add_f32 v{gq+2}, v{a+1}, v{a+9}")
        e.op(f"v_mov_b32 v{gq+1}, s{S_N}")
        e.op(f"v_mov_b32 v{gq+3}, s{S_N}")
        e.op(f"s_mul_i32 s8, s{S_H}, 6")
        e.op(f"s_add_u32 s9, s8, s{S_J}")
        e.op("s_lshl_b32 s9, s9, 10")
        e.op(f"s_add_u32 s9, s9, {QB}")
        e.op(f"buffer_store_dwordx4 {vr(gq)}, v{B.vWS}, {sr(SRD_WS,4)}, s9 offen sc1", count=False)
        e.op("s_setprio 0")
        comm_end(lab)
        while nK[0] < NR:
            e.wait_vm_window(c.W - 1)
            issue_K()
            if nK[0] == c.POLL_A:
                lab = comm_begin()
                e.op(f"s_mul_i32 s8, s{S_H}, {6*1024}")
                e.op(f"s_add_u32 s8, s8, {QB}")
                for p in range(6):
                    e.op(f"buffer_load_dwordx4 {vr(POLL(p))}, v{B.vWS}, {sr(SRD_WS,4)}, s8 offen sc1", count=False)
                    if p < 5:
                        e.op("s_addk_i32 s8, 0x400")
                comm_end(lab)
                e.mark("qpoll")
        for _ in range(c.PREV):
            e.wait_vm_window(c.W - 1)
            issue_V()
        lab = comm_begin()
        e.op("s_setprio 2")
        e.wait_vm("qpoll", keep=True)
        self.spin_init()
        chk, done = e.newlabel("qchk"), e.newlabel("qdone")
        e.label(chk)
        self.tags_bad(B.T, [POLL(p) + k for p in range(6) for k in (1, 3)])
        e.op(f"v_cmp_ne_u32 vcc, 0, v{B.T}")
        e.op("s_cmp_eq_u64 vcc, 0")
        e.branch("s_cbranch_scc1", done)
        self.spin_step(done)
        e.op(f"s_mul_i32 s8, s{S_H}, {6*1024}")
        e.op(f"s_add_u32 s8, s8, {QB}")
        for p in range(6):
            e.op(f"buffer_load_dwordx4 {vr(POLL(p))}, v{B.vWS}, {sr(SRD_WS,4)}, s8 offen sc1", count=False)
            if p < 5:
                e.op("s_addk_i32 s8, 0x400")
        e.op("s_waitcnt vmcnt(0)")
        e.branch("s_branch", chk)
        e.label(done)
        a = POLL(0)
        for k in (0, 2):
            e.op(f"v_add_f32 v{a+k}, v{a+k}, v{a+4+k}")
            e.op(f"v_add_f32 v{a+8+k}, v{a+8+k}, v{a+12+k}")
            e.op(f"v_add_f32 v{a+16+k}, v{a+16+k}, v{a+20+k}")
        for k in (0, 2):
            e.op(f"v_add_f32 v{a+k}, v{a+k}, v{a+8+k}")
        for k in (0, 2):
            e.op(f"v_add_f32 v{a+k}, v{a+k}, v{a+16+k}")
        e.op(f"v_cvt_pk_bf16_f32 v{a}, v{a}, v{a+2}")
        e.op(f"v_lshlrev_b32 v{B.T}, 2, v{B.L}")
        e.op(f"ds_write_b32 v{B.T}, v{a} offset:{LQF}")
        e.op("s_waitcnt lgkmcnt(0)")
        e.op("s_setprio 0")
        comm_end(lab)
        e.op("s_barrier")
        self.stamp(3)
        e.op(f"v_lshlrev_b32 v{B.T}, 4, v{B.Nn}")
        e.op(f"ds_read_b128 {vr(B.Q)}, v{B.T} offset:{LQF}")
        e.op("s_waitcnt lgkmcnt(0)")
        def dots(ts):
            for t in ts:
                e.wait_vm(("K", t))
            for k in range(4):
                for t in ts:
                    e.op(f"v_dot2_f32_bf16 v{K(t)}, v{K(t)+k}, v{B.Q+k}, {'0' if k == 0 else 'v%d' % K(t)}")
        chunks = [list(range(i, min(i + 4, NR))) for i in range(0, NR, 4)]
        for ci, ch in enumerate(chunks):
            if nV[0] < NR and ci in (0, 3):
                issue_V()
            dots(ch)
        S0 = self.transpose_reduce([K(t) for t in range(16)], B.P0)
        if nV[0] < NR:
            issue_V()
        S1 = self.transpose_reduce([K(t) for t in range(16, NR)], B.P1)
        nvalid = NR - 16
        e.op(f"s_mov_b32 s7, {f32hex(SCALE)}")
        e.op(f"v_mul_f32 v{B.P0}, s7, v{B.P0}")
        e.op(f"v_mul_f32 v{B.P1}, s7, v{B.P1}")
        e.op(f"v_mov_b32 v{B.T}, 0xff800000")
        e.op(f"v_cmp_gt_u32 vcc, {nvalid}, v{B.Nn}")
        e.op(f"v_cndmask_b32 v{B.P1}, v{B.T}, v{B.P1}, vcc")
        e.op(f"v_max_f32 v{B.M}, v{B.P0}, v{B.P1}")
        self.wave_reduce("v_max_f32", B.M, B.T)
        e.op(f"v_sub_f32 v{B.P0}, v{B.P0}, v{B.M}")
        e.op(f"v_sub_f32 v{B.P1}, v{B.P1}, v{B.M}")
        e.op(f"v_exp_f32 v{B.P0}, v{B.P0}")
        e.op(f"v_exp_f32 v{B.P1}, v{B.P1}")
        e.op(f"v_cvt_pk_bf16_f32 v{B.PD0}, v{B.P0}, v{B.P0}")
        e.op(f"v_cvt_pk_bf16_f32 v{B.PD1}, v{B.P1}, v{B.P1}")
        e.op(f"v_lshlrev_b32 v{B.P0}, 16, v{B.PD0}")
        e.op(f"v_lshlrev_b32 v{B.P1}, 16, v{B.PD1}")
        e.op(f"v_add_f32 v{B.Lw}, v{B.P0}, v{B.P1}")
        self.wave_reduce("v_add_f32", B.Lw, B.T)
        assert B.Lw == B.M + 1 and B.M % 2 == 0
        e.op("s_lshl_b32 s7, s3, 3")
        e.op(f"v_mov_b32 v{B.T}, s7")
        self.exec_set(1)
        e.op(f"ds_write_b64 v{B.T}, {vr(B.M,2)} offset:{LML}")
        self.exec_set(-1)
        e.op("s_waitcnt lgkmcnt(0)")
        e.op("s_barrier")
        self.stamp(4)
        T = B.T
        lab = comm_begin()
        e.op("s_setprio 2")
        e.op(f"v_and_b32 v{T}, 7, v{B.L}")
        e.op(f"v_lshlrev_b32 v{T+1}, 3, v{T}")
        e.op(f"ds_read_b64 {vr(T+3,2)}, v{T+1} offset:{LML}")
        e.op("s_waitcnt lgkmcnt(0)")
        e.op(f"v_mov_b32 v{B.MW}, v{T+3}")
        e.op(f"v_mov_b32 v{T+5}, v{T+3}")
        for k in (4, 2, 1):
            e.op(f"v_max_f32_dpp v{T+5}, v{T+5}, v{T+5} row_ror:{k} row_mask:0xf bank_mask:0xf")
        e.op(f"v_sub_f32 v{T+6}, v{T+3}, v{T+5}")
        e.op(f"v_exp_f32 v{T+6}, v{T+6}")
        e.op(f"v_mul_f32 v{T+6}, v{T+6}, v{T+4}")
        for k in (4, 2, 1):
            e.op(f"v_add_f32_dpp v{T+6}, v{T+6}, v{T+6} row_ror:{k} row_mask:0xf bank_mask:0xf")
        g4 = T + 7
        assert g4 % 2 == 0
        e.op(f"v_mov_b32 v{g4}, v{T+5}")
        e.op(f"v_mov_b32 v{g4+1}, s{S_N}")
        e.op(f"v_mov_b32 v{g4+2}, v{T+6}")
        e.op(f"v_mov_b32 v{g4+3}, s{S_N}")
        e.op(f"s_lshl_b32 s8, s{S_H}, 7")
        e.op(f"s_add_u32 s8, s8, {MLG}")
        e.op(f"s_lshl_b32 s9, s{S_J}, 4")
        e.op("s_add_u32 s9, s9, s8")
        e.op(f"v_mov_b32 v{T+1}, 0")
        self.exec_set(1)
        e.op(f"buffer_store_dwordx4 {vr(g4)}, v{T+1}, {sr(SRD_WS,4)}, s9 offen sc1", count=False)
        self.exec_set(-1)
        e.op("s_setprio 0")
        comm_end(lab)
        def a_regs(t):
            A = B.A0 if t % 2 == 0 else B.A1
            pd = B.PD0 if t < 16 else B.PD1
            for r in range(4):
                e.op(f"v_and_b32_dpp v{A+r}, v{pd}, v{B.MASK+r} row_newbcast:{t & 15} row_mask:0xf bank_mask:0xf")
            return A
        ML_ISSUE = min(6, NR - 8)
        ML_CHECK = NR - 5
        wo_issued = False
        A = a_regs(0)
        for t in range(NR):
            while nV[0] < NR and nV[0] < t + c.W:
                issue_V()
            if nV[0] == NR and has_wo and not wo_issued:
                for u in range(4):
                    if u == 0:
                        e.op("s_lshl_b32 s7, s3, 4")
                        e.op(f"v_add_u32 v{T}, s7, v{B.G}")
                        e.op(f"v_mul_u32_u24 v{T}, 1280, v{T}")
                        e.op(f"v_lshlrev_b32 v{T+1}, 4, v{B.Nn}")
                        e.op(f"v_add_u32 v{B.vWQ}, v{T}, v{T+1}")
                    e.op(f"s_mov_b32 s7, {5120*u}")
                    e.op(f"buffer_load_dwordx4 {vr(B.WO+4*u)}, v{B.vWQ}, {sr(SWO,4)}, s7 offen {nt}", tag=("wo", u))
                wo_issued = True
            e.wait_vm(("V", t))
            e.op(f"v_mfma_f32_16x16x32_bf16 {vr(B.ACC)}, {vr(A)}, {vr(V(t))}, {'0' if t == 0 else vr(B.ACC)}")
            if t + 1 < NR:
                A = a_regs(t + 1)
            if t == ML_ISSUE:
                lab = comm_begin()
                self.ml_poll_issue(B, T)
                comm_end(lab)
                e.mark("mlpoll")
            if t == ML_CHECK:
                lab = comm_begin()
                e.wait_vm("mlpoll", keep=True)
                self.ml_poll_finish(B, T)
                comm_end(lab)
        self.stamp(5)
        self.exec_set(0xffffffff)
        e.op(f"ds_write_b128 v{B.vLDS}, {vr(B.ACC)} offset:{LOP}")
        self.exec_set(-1)
        e.op("s_waitcnt lgkmcnt(0)")
        e.op("s_barrier")
        self.stamp(6)
        lab = comm_begin()
        e.op("s_setprio 2")
        a = K(0)
        e.op(f"v_lshlrev_b32 v{T}, 3, v{B.L}")
        for w in range(8):
            e.op(f"ds_read_b64 {vr(a+2*w,2)}, v{T} offset:{LOP+512*w}")
        e.op(f"s_mul_i32 s8, s{S_H}, 6")
        e.op(f"s_add_u32 s9, s8, s{S_J}")
        e.op("s_lshl_b32 s9, s9, 10")
        e.op(f"s_add_u32 s9, s9, {OB}")
        e.op(f"v_mov_b32 v{g4+1}, s{S_N}")
        e.op(f"v_mov_b32 v{g4+3}, s{S_N}")
        e.op("s_waitcnt lgkmcnt(0)")
        e.op(f"v_mul_f32 v{g4}, s92, v{a}")
        e.op(f"v_mul_f32 v{g4+2}, s92, v{a+1}")
        e.op(f"v_mul_f32 v{T+1}, s93, v{a+2}")
        e.op(f"v_mul_f32 v{T+2}, s93, v{a+3}")
        for w in range(2, 8, 2):
            e.op(f"v_fmac_f32 v{g4}, s{92+w}, v{a+2*w}")
            e.op(f"v_fmac_f32 v{g4+2}, s{92+w}, v{a+2*w+1}")
            e.op(f"v_fmac_f32 v{T+1}, s{93+w}, v{a+2*w+2}")
            e.op(f"v_fmac_f32 v{T+2}, s{93+w}, v{a+2*w+3}")
        e.op(f"v_add_f32 v{g4}, v{g4}, v{T+1}")
        e.op(f"v_add_f32 v{g4+2}, v{g4+2}, v{T+2}")
        e.op(f"buffer_store_dwordx4 {vr(g4)}, v{B.vWS}, {sr(SRD_WS,4)}, s9 offen sc1", count=False)
        e.op("s_setprio 0")
        comm_end(lab)
        self.stamp(7)
        if has_wo:
            self.gen_B_tail(K, T, LFP, COMM, comm_begin, comm_end)
        self.stamp(10)
        self.dump_stamps()
        e.op("s_endpgm")

    def pending_K(self, e):
        return sum(1 for t in e.vm if isinstance(t, tuple) and t[0] == "K")

    def copy4(self, base):
        if base % 2 == 0:
            self.c4 = base
        else:
            raise AssertionError("odd base")

    def transpose_reduce(self, R, dst):
        e = self.e
        n = len(R)
        for t in range(8):
            if t < n:
                e.op(f"v_add_f32_dpp v{R[t]}, v{R[t]}, v{R[t]} row_ror:8 row_mask:0xf bank_mask:0x3")
        for t in range(8):
            if t + 8 < n:
                e.op(f"v_add_f32_dpp v{R[t]}, v{R[t+8]}, v{R[t+8]} row_ror:8 row_mask:0xf bank_mask:0xc")
        m = min(n, 8)
        for t in range(4):
            if t < m:
                e.op(f"v_add_f32_dpp v{R[t]}, v{R[t]}, v{R[t]} row_half_mirror row_mask:0xf bank_mask:0x5")
        for t in range(4):
            if t + 4 < m:
                e.op(f"v_add_f32_dpp v{R[t]}, v{R[t+4]}, v{R[t+4]} row_half_mirror row_mask:0xf bank_mask:0xa")
        assert m >= 4
        for t in range(4):
            e.op(f"v_add_f32_dpp v{R[t]}, v{R[t]}, v{R[t]} quad_perm:[2,3,0,1] row_mask:0xf bank_mask:0xf")
        e.op("s_mov_b32 s8, 0xcccccccc")
        e.op("s_mov_b32 s9, 0xcccccccc")
        e.op("s_mov_b32 s10, 0xaaaaaaaa")
        e.op("s_mov_b32 s11, 0xaaaaaaaa")
        e.op(f"v_cndmask_b32 v{R[0]}, v{R[0]}, v{R[2]}, s[8:9]")
        e.op(f"v_cndmask_b32 v{R[1]}, v{R[1]}, v{R[3]}, s[8:9]")
        for t in range(2):
            e.op(f"v_add_f32_dpp v{R[t]}, v{R[t]}, v{R[t]} quad_perm:[1,0,3,2] row_mask:0xf bank_mask:0xf")
        e.op(f"v_cndmask_b32 v{dst}, v{R[0]}, v{R[1]}, s[10:11]")
        return dst

    def ml_poll_issue(self, B, T):
        e = self.e
        S_H = 6
        e.op(f"v_and_b32 v{T}, 7, v{B.L}")
        e.op(f"v_min_u32 v{T}, 5, v{T}")
        e.op(f"v_lshlrev_b32 v{T}, 4, v{T}")
        e.op(f"s_lshl_b32 s8, s{S_H}, 7")
        e.op(f"s_add_u32 s8, s8, {MLG}")
        e.op(f"buffer_load_dwordx4 {vr(T+7)}, v{T}, {sr(SRD_WS,4)}, s8 offen sc1", count=False)

    def ml_poll_finish(self, B, T):
        e = self.e
        g4 = T + 7
        self.spin_init()
        chk, done = e.newlabel("mlchk"), e.newlabel("mldone")
        e.label(chk)
        self.tags_bad(T + 1, [g4 + 1, g4 + 3])
        e.op(f"v_cmp_ne_u32 vcc, 0, v{T+1}")
        e.op("s_cmp_eq_u64 vcc, 0")
        e.branch("s_cbranch_scc1", done)
        self.spin_step(done)
        self.ml_poll_issue(B, T)
        e.op("s_waitcnt vmcnt(0)")
        e.branch("s_branch", chk)
        e.label(done)
        e.op(f"v_and_b32 v{T}, 7, v{B.L}")
        e.op(f"v_cmp_gt_u32 vcc, 6, v{T}")
        e.op(f"v_cndmask_b32 v{g4+2}, 0, v{g4+2}, vcc")
        e.op(f"v_mov_b32 v{T+2}, v{g4}")
        for k in (4, 2, 1):
            e.op(f"v_max_f32_dpp v{T+2}, v{T+2}, v{T+2} row_ror:{k} row_mask:0xf bank_mask:0xf")
        e.op(f"v_sub_f32 v{T+3}, v{g4}, v{T+2}")
        e.op(f"v_exp_f32 v{T+3}, v{T+3}")
        e.op(f"v_mul_f32 v{T+3}, v{T+3}, v{g4+2}")
        for k in (4, 2, 1):
            e.op(f"v_add_f32_dpp v{T+3}, v{T+3}, v{T+3} row_ror:{k} row_mask:0xf bank_mask:0xf")
        e.op(f"v_rcp_f32 v{T+3}, v{T+3}")
        e.op(f"v_sub_f32 v{T+4}, v{B.MW}, v{T+2}")
        e.op(f"v_exp_f32 v{T+4}, v{T+4}")
        e.op(f"v_mul_f32 v{T+4}, v{T+4}, v{T+3}")
        for w in range(8):
            e.op(f"v_readlane_b32 s{92+w}, v{T+4}, {w}")

    def gen_B_tail(self, K, T, LFP, COMM, comm_begin, comm_end):
        e, c, B = self.e, self.c, self.B
        S_J, S_H = 5, 6
        g4 = K(8)
        e.op(f"v_lshrrev_b32 v{T}, 3, v{B.L}")
        e.op(f"v_lshlrev_b32 v{T}, 10, v{T}")
        e.op(f"v_and_b32 v{T+1}, 7, v{B.L}")
        e.op(f"v_lshlrev_b32 v{T+1}, 4, v{T+1}")
        e.op(f"s_lshl_b32 s8, s3, 7")
        e.op(f"v_add3_u32 v{T}, v{T}, v{T+1}, s8")
        e.op(f"s_mul_i32 s8, s{S_H}, {6*1024}")
        e.op(f"s_add_u32 s8, s8, {OB}")
        for k in range(4):
            e.op(f"v_mov_b32 v{g4+k}, 0")
        self.spin_init()
        poll, done = e.newlabel("opoll"), e.newlabel("odone")
        self.exec_set(0x0000ffffffffffff)
        e.label(poll)
        e.op(f"buffer_load_dwordx4 {vr(g4)}, v{T}, {sr(SRD_WS,4)}, s8 offen sc1", count=False)
        e.op("s_waitcnt vmcnt(0)")
        e.op(f"v_xor_b32 v{T+2}, s{S_N}, v{g4+1}")
        e.op(f"v_xor_b32 v{T+3}, s{S_N}, v{g4+3}")
        e.op(f"v_or_b32 v{T+2}, v{T+2}, v{T+3}")
        e.op(f"v_cmp_ne_u32 vcc, 0, v{T+2}")
        e.op("s_cmp_eq_u64 vcc, 0")
        e.branch("s_cbranch_scc1", done)
        self.spin_step(done)
        e.branch("s_branch", poll)
        e.label(done)
        e.vm = []
        self.exec_set(-1)
        self.stamp(8)
        for k in (0, 2):
            e.op(f"v_add_f32_dpp v{g4+k}, v{g4+k}, v{g4+k} row_ror:8 row_mask:0xf bank_mask:0xf")
        for k in (0, 2):
            e.op(f"v_mov_b32 v{T+2+k//2}, v{g4+k}")
        for k in (0, 2):
            e.op(f"v_permlane16_swap_b32 v{g4+k}, v{T+2+k//2}")
        for k in (0, 2):
            e.op(f"v_add_f32 v{g4+k}, v{g4+k}, v{T+2+k//2}")
        for k in (0, 2):
            e.op(f"v_mov_b32 v{T+2+k//2}, v{g4+k}")
        for k in (0, 2):
            e.op(f"v_permlane32_swap_b32 v{g4+k}, v{T+2+k//2}")
        for k in (0, 2):
            e.op(f"v_add_f32 v{g4+k}, v{g4+k}, v{T+2+k//2}")
        e.op(f"v_cvt_pk_bf16_f32 v{g4}, v{g4}, v{g4}")
        e.op(f"v_cvt_pk_bf16_f32 v{g4+2}, v{g4+2}, v{g4+2}")
        e.op("s_mov_b32 s8, 0xffff0000")
        e.op("s_mov_b32 s9, 0xffff0000")
        e.op(f"v_cndmask_b32 v{g4}, v{g4}, v{g4+2}, s[8:9]")
        e.op(f"v_mov_b32_dpp v{g4}, v{g4} row_shl:1 row_mask:0xc bank_mask:0xf")
        for u in range(4):
            A = B.A0 if u % 2 == 0 else B.A1
            for r in range(4):
                e.op(f"v_and_b32_dpp v{A+r}, v{g4}, v{B.MASK+r} row_newbcast:{2*u} row_mask:0xf bank_mask:0xf")
            e.op(f"v_mfma_f32_16x16x32_bf16 {vr(B.ACC)}, {vr(A)}, {vr(B.WO+4*u)}, {'0' if u == 0 else vr(B.ACC)}")
        self.exec_set(0xffffffff)
        e.op(f"ds_write_b128 v{B.vLDS}, {vr(B.ACC)} offset:{LFP}")
        self.exec_set(-1)
        e.op("s_waitcnt lgkmcnt(0)")
        e.op("s_barrier")
        self.stamp(9)
        lab = comm_begin()
        a = K(0)
        e.op(f"v_lshlrev_b32 v{T}, 3, v{B.L}")
        for w in range(8):
            e.op(f"ds_read_b64 {vr(a+2*w,2)}, v{T} offset:{LFP+512*w}")
        e.op(f"s_lshl_b32 s8, s{S_J}, 5")
        e.op(f"s_add_u32 s8, s8, s{S_H}")
        e.op("s_lshl_b32 s8, s8, 10")
        e.op(f"s_add_u32 s8, s8, {FB}")
        g = T + 7
        e.op(f"v_mov_b32 v{g+1}, s{S_N}")
        e.op(f"v_mov_b32 v{g+3}, s{S_N}")
        e.op("s_waitcnt lgkmcnt(0)")
        for w in (1, 3, 5, 7):
            e.op(f"v_add_f32 v{a+2*(w-1)}, v{a+2*(w-1)}, v{a+2*w}")
            e.op(f"v_add_f32 v{a+2*(w-1)+1}, v{a+2*(w-1)+1}, v{a+2*w+1}")
        for w in (2, 6):
            e.op(f"v_add_f32 v{a+2*(w-2)}, v{a+2*(w-2)}, v{a+2*w}")
            e.op(f"v_add_f32 v{a+2*(w-2)+1}, v{a+2*(w-2)+1}, v{a+2*w+1}")
        e.op(f"v_add_f32 v{g}, v{a}, v{a+8}")
        e.op(f"v_add_f32 v{g+2}, v{a+1}, v{a+9}")
        e.op(f"buffer_store_dwordx4 {vr(g)}, v{B.vWS}, {sr(SRD_WS,4)}, s8 offen sc1", count=False)
        comm_end(lab)

    def gen_A(self):
        from gen_a import gen_A
        gen_A(self)


L_C = 0
C_STRIDE = 1056
L_QA = 128 * C_STRIDE
L_P = L_QA + 16 * C_STRIDE
P_STRIDE = 288
L_QACC = L_P + 16 * P_STRIDE
L_MX = L_QACC + 256
L_LX = L_MX + 512
L_CTX = L_LX + 512
L_END = L_CTX + 256
LDS_TOTAL = 160 * 1024
assert L_END <= LDS_TOTAL


def main():
    ap = argparse.ArgumentParser()
    ap.add_argument("-o", default="concat_heads__compressed_kv_cla__mha_block_cached__decode.s")
    ap.add_argument("--set", nargs="*", default=[])
    a = ap.parse_args()
    kw = {}
    for s in a.set:
        k, v = s.split("=")
        try:
            v = int(v)
        except ValueError:
            v = {"True": True, "False": False, "None": None}.get(v, v)
        kw[k] = v
    g = Gen(Cfg(**kw))
    txt = g.build()
    open(a.o, "w").write(txt)
    print("wrote", a.o, len(txt), "bytes;", g.e.nops, "nop pads")


if __name__ == "__main__":
    main()
```

```python
import argparse
from emit import Emit

NAME = "concat_heads__compressed_kv_cla__mha_block_cached__decode_kernel"

EPOCH = 0
QB = 0x1000
MLG = 0x31000
OB = 0x32000
FB = 0x62000
FA = 0x8A000
QA = 0xDA000
QAF = 0xEA000
MLA = 0xEE000
OAF = 0xF0000
OA = 0x100000
PROF = 0x200000
WS_USED = 0x240000
NONCE_STEP = 0x9E3779B1
SCALE = 0.08838834764831845 * 1.4426950408889634


def f32hex(x):
    import struct
    return "0x%08x" % struct.unpack("<I", struct.pack("<f", x))[0]


class Cfg:
    def __init__(self, **kw):
        self.nt = "nt"
        self.nt_ckv = "nt"
        self.W = 4
        self.K0 = 3
        self.POLL_A = 9
        self.PREV = 2
        self.WA = 6
        self.prof = False
        self.spin = 200000
        self.only = None
        self.A_UK1, self.A_CK1, self.A_CK2, self.A_UV1, self.A_UV2, self.A_WO1 = 4, 2, 2, 4, 4, 0
        self.__dict__.update(kw)


S_WG, S_WAVE, S_N = 2, 3, 4
P_AX, P_CKV, P_WQA, P_WUK, P_WUV, P_WOA = 16, 18, 20, 22, 24, 26
P_BX, P_BK, P_BV, P_BWQ, P_BWO, P_OUT, P_DBG, P_WS = 32, 34, 36, 38, 40, 42, 44, 46
SRD_WS = 48
S_SPIN = 15


def sr(n, k=2):
    return f"s[{n}:{n+k-1}]"


def vr(n, k=4):
    return f"v[{n}:{n+k-1}]"


class Gen:
    def __init__(self, cfg):
        self.c = cfg
        self.e = Emit()
        self.nstamp = 0

    def srd(self, dst, ptr, off_sgpr, nrec):
        e = self.e
        if off_sgpr is None:
            e.op(f"s_mov_b32 s{dst}, s{ptr}")
            e.op(f"s_mov_b32 s{dst+1}, s{ptr+1}")
        else:
            e.op(f"s_add_u32 s{dst}, s{ptr}, {off_sgpr}")
            e.op(f"s_addc_u32 s{dst+1}, s{ptr+1}, 0")
        e.op(f"s_mov_b32 s{dst+2}, {nrec}")
        e.op(f"s_mov_b32 s{dst+3}, 0x20000")

    def stamp(self, idx):
        if not self.c.prof:
            return
        e = self.e
        e.op("s_memrealtime s[78:79]")
        e.op("s_waitcnt lgkmcnt(0)")
        e.op(f"s_mov_b32 s{80+idx}, s78")

    def dump_dbg(self, role):
        e = self.e
        sel = {"A": [(2, 1), (3, 3), (4, 4), (5, 5), (6, 8), (7, 9), (8, 10), (1, 11)],
               "B": [(9, 1), (10, 2), (11, 3), (12, 4), (13, 5), (14, 8), (15, 10), (1, 10)]}[role]
        lab = e.newlabel("nodbg")
        if role == "A":
            e.op("s_cmp_eq_u32 s3, 0")
            e.op("s_cselect_b32 s5, 1, 0")
            e.op("s_cmp_eq_u32 s3, 5")
            e.op("s_cselect_b32 s5, 1, s5")
            e.op("s_cmp_eq_u32 s5, 0")
        else:
            e.op("s_cmp_lg_u32 s3, 7")
        e.branch("s_cbranch_scc1", lab)
        e.op("s_mov_b64 exec, -1")
        e.op("v_mbcnt_lo_u32_b32 v2, -1, 0")
        e.op("v_mbcnt_hi_u32_b32 v2, -1, v2")
        e.op("s_not_b32 s5, s80")
        e.op("v_mov_b32 v3, 0")
        for slot, src in [(0, None)] + sel:
            e.op(f"v_mov_b32 v4, {'s5' if src is None else 's%d' % (80+src)}")
            e.op(f"v_cmp_eq_u32 vcc, {slot}, v2")
            e.op("v_cndmask_b32 v3, v3, v4, vcc")
        e.op("v_lshlrev_b32 v2, 2, v2")
        self.srd(52, P_DBG, None, 256)
        self.exec_set(0xffff)
        e.op("buffer_atomic_umax v3, v2, s[52:55], 0 offen")
        self.exec_set(-1)
        e.label(lab)

    def dump_stamps(self, role=None):
        if not self.c.prof:
            return
        if self.c.prof == "dbg":
            return self.dump_dbg(role)
        e = self.e
        e.op("s_mov_b64 exec, -1")
        e.op("v_mbcnt_lo_u32_b32 v2, -1, 0")
        e.op("v_mbcnt_hi_u32_b32 v2, -1, v2")
        e.op("s_lshl_b32 s5, s2, 3")
        e.op("s_add_u32 s5, s5, s3")
        e.op("s_lshl_b32 s5, s5, 6")
        e.op(f"s_add_u32 s5, s5, {PROF}")
        e.op("v_mov_b32 v3, 0")
        for i in range(16):
            e.op(f"v_mov_b32 v4, s{80+i}")
            e.op(f"v_cmp_eq_u32 vcc, {i}, v2")
            e.op("v_cndmask_b32 v3, v3, v4, vcc")
        e.op("v_lshlrev_b32 v2, 2, v2")
        e.op("v_add_u32 v2, s5, v2")
        e.op("s_mov_b32 exec_lo, 0xffff".replace("exec_lo", "exec_lo"))
        e.op("s_mov_b32 exec_hi, 0")
        e.op(f"buffer_store_dword v3, v2, {sr(SRD_WS,4)}, 0 offen")
        e.op("s_mov_b64 exec, -1")

    def spin_init(self):
        self.e.op(f"s_mov_b32 s{S_SPIN}, 0")

    def spin_step(self, out_label):
        e = self.e
        e.op(f"s_add_u32 s{S_SPIN}, s{S_SPIN}, 1")
        e.op(f"s_cmp_gt_u32 s{S_SPIN}, {self.c.spin}")
        e.branch("s_cbranch_scc1", out_label)

    def wave_reduce(self, op, v, t, lanes=64):
        e = self.e
        for k in (8, 4, 2, 1):
            e.op(f"{op}_dpp v{v}, v{v}, v{v} row_ror:{k} row_mask:0xf bank_mask:0xf")
        self.xor16(op, v, t)
        if lanes == 64:
            self.xor32(op, v, t)

    def xor16(self, op, v, t):
        e = self.e
        e.op(f"v_mov_b32 v{t}, v{v}")
        e.op(f"v_permlane16_swap_b32 v{v}, v{t}")
        e.op(f"{op} v{v}, v{v}, v{t}")

    def xor32(self, op, v, t):
        e = self.e
        e.op(f"v_mov_b32 v{t}, v{v}")
        e.op(f"v_permlane32_swap_b32 v{v}, v{t}")
        e.op(f"{op} v{v}, v{v}, v{t}")

    def make_masks(self, dst, idx_reg, n_reg, t0, t1):
        e = self.e
        e.op(f"v_and_b32 v{t0}, 1, v{n_reg}")
        e.op(f"v_lshlrev_b32 v{t0}, 4, v{t0}")
        e.op(f"v_mov_b32 v{t1}, 0xffff")
        e.op(f"v_lshlrev_b32 v{t0}, v{t0}, v{t1}")
        for r in range(4):
            e.op(f"v_cmp_eq_u32 vcc, {r}, v{idx_reg}")
            e.op(f"v_cndmask_b32 v{dst+r}, 0, v{t0}, vcc")

    def tags_bad(self, acc, tags, first=True):
        e = self.e
        tags = list(tags)
        while tags:
            a = tags.pop(0)
            e.op(f"v_xor_b32 v{a}, s{S_N}, v{a}")
            if tags:
                b = tags.pop(0)
                e.op(f"v_xor_b32 v{b}, s{S_N}, v{b}")
                if first:
                    e.op(f"v_or_b32 v{acc}, v{a}, v{b}")
                else:
                    e.op(f"v_or3_b32 v{acc}, v{acc}, v{a}, v{b}")
            else:
                if first:
                    e.op(f"v_mov_b32 v{acc}, v{a}")
                else:
                    e.op(f"v_or_b32 v{acc}, v{acc}, v{a}")
            first = False

    def exec_set(self, mask):
        e = self.e
        if mask == -1 or mask == (1 << 64) - 1:
            e.op("s_mov_b64 exec, -1")
        else:
            e.op(f"s_mov_b32 exec_lo, 0x{mask & 0xffffffff:x}")
            e.op(f"s_mov_b32 exec_hi, 0x{mask >> 32:x}")

    def build(self):
        e = self.e
        c = self.c
        e.raw(f"; @launch grid=(256,1,1) block=(512,1,1) lds={LDS_TOTAL}")
        e.raw('.amdgcn_target "amdgcn-amd-amdhsa--gfx950"')
        e.raw(".text")
        e.raw(f".globl {NAME}")
        e.raw(".p2align 8")
        e.raw(f".type {NAME},@function")
        e.raw(f"{NAME}:")
        e.op("s_cmp_ge_u32 s2, 256")
        e.op("s_cbranch_scc1 L_end")
        e.op("s_load_dwordx16 s[16:31], s[0:1], 0")
        e.op("s_load_dwordx16 s[32:47], s[0:1], 48")
        if c.prof:
            e.op("s_memrealtime s[78:79]")
        e.op("v_lshrrev_b32 v1, 6, v0")
        e.op("v_and_b32 v0, 63, v0")
        e.op("v_readfirstlane_b32 s3, v1")
        if c.prof:
            for i in range(16):
                e.op(f"s_mov_b32 s{80+i}, 0")
        e.op("v_lshrrev_b32 v1, 4, v0")
        e.op("v_and_b32 v2, 15, v0")
        e.op("s_cmp_lt_u32 s2, 64")
        e.op("s_cbranch_scc1 L_A")
        self.gen_B()
        e.label("L_A")
        self.gen_A()
        e.raw("L_end:")
        e.raw("    s_endpgm")
        e.raw('.section .rodata,"a"')
        e.raw(".p2align 6")
        e.raw(f".amdhsa_kernel {NAME}")
        e.raw("  .amdhsa_next_free_vgpr 256")
        e.raw("  .amdhsa_next_free_sgpr 102")
        e.raw("  .amdhsa_accum_offset 256")
        e.raw("  .amdhsa_group_segment_fixed_size 0")
        e.raw("  .amdhsa_kernarg_size 112")
        e.raw("  .amdhsa_user_sgpr_count 2")
        e.raw("  .amdhsa_user_sgpr_kernarg_segment_ptr 1")
        e.raw("  .amdhsa_system_sgpr_workgroup_id_x 1")
        e.raw(".end_amdhsa_kernel")
        return e.text()

    def gen_B(self):
        e, c = self.e, self.c
        S_J, S_H = 5, 6
        e.op("s_sub_u32 s7, s2, 64")
        e.op("s_and_b32 s8, s7, 7")
        e.op("s_lshr_b32 s7, s7, 3")
        e.op("s_mul_i32 s9, s7, 43")
        e.op("s_lshr_b32 s9, s9, 8")
        e.op("s_mul_i32 s10, s9, 6")
        e.op(f"s_sub_u32 s{S_J}, s7, s10")
        e.op("s_lshl_b32 s8, s8, 2")
        e.op(f"s_add_u32 s{S_H}, s8, s9")
        B = self.B = type("R", (), {})()
        B.L, B.G, B.Nn = 0, 1, 2
        B.MASK = 4
        B.Q = 8
        B.ACC = 12
        B.A0, B.A1 = 16, 20
        B.vKV, B.vWQ, B.vX, B.vLDS, B.vWS = 24, 25, 26, 27, 28
        B.T = 29
        B.P0, B.P1, B.PD0, B.PD1, B.M, B.Lw = 40, 41, 42, 43, 44, 45
        B.FW = 46
        B.MW = 47
        B.WO = 48
        B.K = 64
        e.op(f"v_lshrrev_b32 v3, 1, v{B.Nn}")
        self.make_masks(B.MASK, 3, B.Nn, B.T, B.T + 1)
        e.op(f"s_lshl_b32 s7, s3, 10")
        e.op(f"v_lshlrev_b32 v{B.vKV}, 4, v{B.L}")
        e.op(f"v_add_u32 v{B.vKV}, s7, v{B.vKV}")
        e.op("s_lshl_b32 s7, s3, 2")
        e.op(f"v_add_u32 v{B.T}, s7, v{B.G}")
        e.op(f"v_lshlrev_b32 v{B.vWQ}, 13, v{B.T}")
        e.op(f"v_lshlrev_b32 v{B.T+1}, 4, v{B.Nn}")
        e.op(f"v_add_u32 v{B.vWQ}, v{B.vWQ}, v{B.T+1}")
        e.op(f"s_mul_i32 s7, s{S_J}, 108")
        e.op(f"s_cmp_eq_u32 s{S_J}, 5")
        e.op("s_cselect_b32 s7, 536, s7")
        e.op(f"s_cmp_ge_u32 s{S_J}, 4")
        e.op("s_mov_b32 s8, 108")
        e.op("s_cselect_b32 s8, 104, s8")
        e.op(f"v_add_u32 v{B.vX}, s7, v{B.T}")
        e.op(f"v_lshlrev_b32 v{B.vX}, 1, v{B.vX}")
        e.op("s_lshl_b32 s9, s3, 9")
        e.op(f"v_lshlrev_b32 v{B.vLDS}, 5, v{B.Nn}")
        e.op(f"v_lshlrev_b32 v{B.T+1}, 4, v{B.G}")
        e.op(f"v_add3_u32 v{B.vLDS}, v{B.vLDS}, v{B.T+1}, s9")
        e.op(f"v_lshlrev_b32 v{B.vWS}, 4, v{B.L}")
        e.op("s_waitcnt lgkmcnt(0)")
        if c.prof:
            e.op("s_mov_b32 s80, s78")
        e.op(f"s_load_dword s{S_N}, {sr(P_WS)}, {EPOCH}")
        SK, SV, SWQ, SWO, SX = 52, 56, 60, 64, 68
        self.SK, self.SV, self.SWQ, self.SWO, self.SX = SK, SV, SWQ, SWO, SX
        self.srd(SX, P_BX, None, 1280)
        e.op("s_lshl_b32 s9, s7, 13")
        e.op(f"s_lshl_b32 s10, s{S_H}, 8")
        e.op("s_add_u32 s9, s9, s10")
        e.op("s_lshl_b32 s8, s8, 13")
        self.srd(SWQ, P_BWQ, "s9", "s8")
        e.op(f"s_lshl_b32 s9, s{S_H}, 20")
        e.op(f"s_mul_i32 s10, s{S_J}, {168*1024}")
        e.op("s_add_u32 s9, s9, s10")
        self.srd(SK, P_BK, "s9", 184 * 1024)
        self.srd(SV, P_BV, "s9", 184 * 1024)
        self.srd(SRD_WS, P_WS, None, WS_USED)
        e.op(f"s_mul_i32 s9, s{S_H}, {128*1280}")
        e.op(f"s_lshl_b32 s10, s{S_J}, 8")
        e.op("s_add_u32 s9, s9, s10")
        self.srd(SWO, P_BWO, "s9", 128 * 1280)
        e.op(f"s_cmp_eq_u32 s{S_J}, 5")
        e.branch("s_cbranch_scc1", "L_B5")
        saved = list(e.vm)
        self.gen_B_variant(21, True)
        e.label("L_B5")
        e.vm = saved
        self.gen_B_variant(23, False)

    def gen_B_variant(self, NR, has_wo):
        e, c, B = self.e, self.c, self.B
        S_J, S_H = 5, 6
        SK, SV, SWQ, SWO, SX = self.SK, self.SV, self.SWQ, self.SWO, self.SX
        nt = c.nt
        K = lambda t: B.K + 4 * t
        V = lambda t: B.K + 4 * NR + 4 * t
        assert V(NR - 1) + 3 <= 255
        WQ = lambda t: V(NR - 4 + t)
        POLL = lambda p: V(NR - 6 + p)
        X = lambda t: B.T + 4 + t
        LQP, LOP, LFP, LQF, LML = 0, 4096, 8192, 12288, 12544
        COMM = 7
        S_KO, S_VO, S_T = 72, 73, 7

        def comm_begin():
            lab = e.newlabel("nc")
            e.op(f"s_cmp_lg_u32 s3, {COMM}")
            e.branch("s_cbranch_scc1", lab)
            return lab

        def comm_end(lab):
            e.label(lab)

        nK = [0]
        nV = [0]

        def issue_K():
            t = nK[0]
            nK[0] += 1
            e.op(f"buffer_load_dwordx4 {vr(K(t))}, v{B.vKV}, {sr(SK,4)}, s{S_KO} offen {nt}", tag=("K", t))
            e.op(f"s_addk_i32 s{S_KO}, 0x2000")

        def issue_V():
            t = nV[0]
            nV[0] += 1
            e.op(f"buffer_load_dwordx4 {vr(V(t))}, v{B.vKV}, {sr(SV,4)}, s{S_VO} offen {nt}", tag=("V", t))
            e.op(f"s_addk_i32 s{S_VO}, 0x2000")

        e.op(f"s_mov_b32 s{S_KO}, 0")
        e.op(f"s_mov_b32 s{S_VO}, 0")
        for t in range(4):
            e.op(f"buffer_load_ushort v{X(t)}, v{B.vX}, {sr(SX,4)}, 0 offen offset:{64*t}", tag=("x", t))
        for t in range(4):
            e.op(f"s_mov_b32 s{S_T}, {t*0x40000}")
            e.op(f"buffer_load_dwordx4 {vr(WQ(t))}, v{B.vWQ}, {sr(SWQ,4)}, s{S_T} offen {nt}", tag=("wq", t))
        for _ in range(c.K0):
            issue_K()
        self.stamp(1)
        e.op("s_waitcnt lgkmcnt(0)")
        e.op(f"s_add_u32 s{S_N}, s{S_N}, 0x{NONCE_STEP:x}")
        for t in range(4):
            e.wait_vm(("wq", t))
            A = B.A0 if t % 2 == 0 else B.A1
            e.op(f"v_lshl_or_b32 v{X(t)}, v{X(t)}, 16, v{X(t)}")
            for r in range(4):
                e.op(f"v_and_b32 v{A+r}, v{X(t)}, v{B.MASK+r}")
            e.op(f"v_mfma_f32_16x16x32_bf16 {vr(B.ACC)}, {vr(A)}, {vr(WQ(t))}, {'0' if t == 0 else vr(B.ACC)}")
        self.exec_set(0xffffffff)
        e.op(f"ds_write_b128 v{B.vLDS}, {vr(B.ACC)} offset:{LQP}")
        self.exec_set(-1)
        e.op("s_waitcnt lgkmcnt(0)")
        e.op("s_barrier")
        self.stamp(2)
        lab = comm_begin()
        e.op("s_setprio 2")
        e.op(f"v_lshlrev_b32 v{B.T}, 3, v{B.L}")
        for w in range(8):
            e.op(f"ds_read_b64 {vr(POLL(0)+2*w,2)}, v{B.T} offset:{LQP+512*w}")
        e.op("s_waitcnt lgkmcnt(0)")
        a = POLL(0)
        for w in (1, 3, 5, 7):
            e.op(f"v_add_f32 v{a+2*(w-1)}, v{a+2*(w-1)}, v{a+2*w}")
            e.op(f"v_add_f32 v{a+2*(w-1)+1}, v{a+2*(w-1)+1}, v{a+2*w+1}")
        for w in (2, 6):
            e.op(f"v_add_f32 v{a+2*(w-2)}, v{a+2*(w-2)}, v{a+2*w}")
            e.op(f"v_add_f32 v{a+2*(w-2)+1}, v{a+2*(w-2)+1}, v{a+2*w+1}")
        gq = B.T + 7
        assert gq % 2 == 0
        e.op(f"v_add_f32 v{gq}, v{a}, v{a+8}")
        e.op(f"v_add_f32 v{gq+2}, v{a+1}, v{a+9}")
        e.op(f"v_mov_b32 v{gq+1}, s{S_N}")
        e.op(f"v_mov_b32 v{gq+3}, s{S_N}")
        e.op(f"s_mul_i32 s8, s{S_H}, 6")
        e.op(f"s_add_u32 s9, s8, s{S_J}")
        e.op("s_lshl_b32 s9, s9, 10")
        e.op(f"s_add_u32 s9, s9, {QB}")
        e.op(f"buffer_store_dwordx4 {vr(gq)}, v{B.vWS}, {sr(SRD_WS,4)}, s9 offen sc1", count=False)
        e.op("s_setprio 0")
        comm_end(lab)
        while nK[0] < NR:
            e.wait_vm_window(c.W - 1)
            issue_K()
            if nK[0] == c.POLL_A:
                lab = comm_begin()
                e.op(f"s_mul_i32 s8, s{S_H}, {6*1024}")
                e.op(f"s_add_u32 s8, s8, {QB}")
                for p in range(6):
                    e.op(f"buffer_load_dwordx4 {vr(POLL(p))}, v{B.vWS}, {sr(SRD_WS,4)}, s8 offen sc1", count=False)
                    if p < 5:
                        e.op("s_addk_i32 s8, 0x400")
                comm_end(lab)
                e.mark("qpoll")
        for _ in range(c.PREV):
            e.wait_vm_window(c.W - 1)
            issue_V()
        lab = comm_begin()
        e.op("s_setprio 2")
        e.wait_vm("qpoll", keep=True)
        self.spin_init()
        chk, done = e.newlabel("qchk"), e.newlabel("qdone")
        e.label(chk)
        self.tags_bad(B.T, [POLL(p) + k for p in range(6) for k in (1, 3)])
        e.op(f"v_cmp_ne_u32 vcc, 0, v{B.T}")
        e.op("s_cmp_eq_u64 vcc, 0")
        e.branch("s_cbranch_scc1", done)
        self.spin_step(done)
        e.op(f"s_mul_i32 s8, s{S_H}, {6*1024}")
        e.op(f"s_add_u32 s8, s8, {QB}")
        for p in range(6):
            e.op(f"buffer_load_dwordx4 {vr(POLL(p))}, v{B.vWS}, {sr(SRD_WS,4)}, s8 offen sc1", count=False)
            if p < 5:
                e.op("s_addk_i32 s8, 0x400")
        e.op("s_waitcnt vmcnt(0)")
        e.branch("s_branch", chk)
        e.label(done)
        a = POLL(0)
        for k in (0, 2):
            e.op(f"v_add_f32 v{a+k}, v{a+k}, v{a+4+k}")
            e.op(f"v_add_f32 v{a+8+k}, v{a+8+k}, v{a+12+k}")
            e.op(f"v_add_f32 v{a+16+k}, v{a+16+k}, v{a+20+k}")
        for k in (0, 2):
            e.op(f"v_add_f32 v{a+k}, v{a+k}, v{a+8+k}")
        for k in (0, 2):
            e.op(f"v_add_f32 v{a+k}, v{a+k}, v{a+16+k}")
        e.op(f"v_cvt_pk_bf16_f32 v{a}, v{a}, v{a+2}")
        e.op(f"v_lshlrev_b32 v{B.T}, 2, v{B.L}")
        e.op(f"ds_write_b32 v{B.T}, v{a} offset:{LQF}")
        e.op("s_waitcnt lgkmcnt(0)")
        e.op("s_setprio 0")
        comm_end(lab)
        e.op("s_barrier")
        self.stamp(3)
        e.op(f"v_lshlrev_b32 v{B.T}, 4, v{B.Nn}")
        e.op(f"ds_read_b128 {vr(B.Q)}, v{B.T} offset:{LQF}")
        e.op("s_waitcnt lgkmcnt(0)")
        def dots(ts):
            for t in ts:
                e.wait_vm(("K", t))
            for k in range(4):
                for t in ts:
                    e.op(f"v_dot2_f32_bf16 v{K(t)}, v{K(t)+k}, v{B.Q+k}, {'0' if k == 0 else 'v%d' % K(t)}")
        chunks = [list(range(i, min(i + 4, NR))) for i in range(0, NR, 4)]
        for ci, ch in enumerate(chunks):
            if nV[0] < NR and ci in (0, 3):
                issue_V()
            dots(ch)
        S0 = self.transpose_reduce([K(t) for t in range(16)], B.P0)
        if nV[0] < NR:
            issue_V()
        S1 = self.transpose_reduce([K(t) for t in range(16, NR)], B.P1)
        nvalid = NR - 16
        e.op(f"s_mov_b32 s7, {f32hex(SCALE)}")
        e.op(f"v_mul_f32 v{B.P0}, s7, v{B.P0}")
        e.op(f"v_mul_f32 v{B.P1}, s7, v{B.P1}")
        e.op(f"v_mov_b32 v{B.T}, 0xff800000")
        e.op(f"v_cmp_gt_u32 vcc, {nvalid}, v{B.Nn}")
        e.op(f"v_cndmask_b32 v{B.P1}, v{B.T}, v{B.P1}, vcc")
        e.op(f"v_max_f32 v{B.M}, v{B.P0}, v{B.P1}")
        self.wave_reduce("v_max_f32", B.M, B.T)
        e.op(f"v_sub_f32 v{B.P0}, v{B.P0}, v{B.M}")
        e.op(f"v_sub_f32 v{B.P1}, v{B.P1}, v{B.M}")
        e.op(f"v_exp_f32 v{B.P0}, v{B.P0}")
        e.op(f"v_exp_f32 v{B.P1}, v{B.P1}")
        e.op(f"v_cvt_pk_bf16_f32 v{B.PD0}, v{B.P0}, v{B.P0}")
        e.op(f"v_cvt_pk_bf16_f32 v{B.PD1}, v{B.P1}, v{B.P1}")
        e.op(f"v_lshlrev_b32 v{B.P0}, 16, v{B.PD0}")
        e.op(f"v_lshlrev_b32 v{B.P1}, 16, v{B.PD1}")
        e.op(f"v_add_f32 v{B.Lw}, v{B.P0}, v{B.P1}")
        self.wave_reduce("v_add_f32", B.Lw, B.T)
        assert B.Lw == B.M + 1 and B.M % 2 == 0
        e.op("s_lshl_b32 s7, s3, 3")
        e.op(f"v_mov_b32 v{B.T}, s7")
        self.exec_set(1)
        e.op(f"ds_write_b64 v{B.T}, {vr(B.M,2)} offset:{LML}")
        self.exec_set(-1)
        e.op("s_waitcnt lgkmcnt(0)")
        e.op("s_barrier")
        self.stamp(4)
        T = B.T
        lab = comm_begin()
        e.op("s_setprio 2")
        e.op(f"v_and_b32 v{T}, 7, v{B.L}")
        e.op(f"v_lshlrev_b32 v{T+1}, 3, v{T}")
        e.op(f"ds_read_b64 {vr(T+3,2)}, v{T+1} offset:{LML}")
        e.op("s_waitcnt lgkmcnt(0)")
        e.op(f"v_mov_b32 v{B.MW}, v{T+3}")
        e.op(f"v_mov_b32 v{T+5}, v{T+3}")
        for k in (4, 2, 1):
            e.op(f"v_max_f32_dpp v{T+5}, v{T+5}, v{T+5} row_ror:{k} row_mask:0xf bank_mask:0xf")
        e.op(f"v_sub_f32 v{T+6}, v{T+3}, v{T+5}")
        e.op(f"v_exp_f32 v{T+6}, v{T+6}")
        e.op(f"v_mul_f32 v{T+6}, v{T+6}, v{T+4}")
        for k in (4, 2, 1):
            e.op(f"v_add_f32_dpp v{T+6}, v{T+6}, v{T+6} row_ror:{k} row_mask:0xf bank_mask:0xf")
        g4 = T + 7
        assert g4 % 2 == 0
        e.op(f"v_mov_b32 v{g4}, v{T+5}")
        e.op(f"v_mov_b32 v{g4+1}, s{S_N}")
        e.op(f"v_mov_b32 v{g4+2}, v{T+6}")
        e.op(f"v_mov_b32 v{g4+3}, s{S_N}")
        e.op(f"s_lshl_b32 s8, s{S_H}, 7")
        e.op(f"s_add_u32 s8, s8, {MLG}")
        e.op(f"s_lshl_b32 s9, s{S_J}, 4")
        e.op("s_add_u32 s9, s9, s8")
        e.op(f"v_mov_b32 v{T+1}, 0")
        self.exec_set(1)
        e.op(f"buffer_store_dwordx4 {vr(g4)}, v{T+1}, {sr(SRD_WS,4)}, s9 offen sc1", count=False)
        self.exec_set(-1)
        e.op("s_setprio 0")
        comm_end(lab)
        def a_regs(t):
            A = B.A0 if t % 2 == 0 else B.A1
            pd = B.PD0 if t < 16 else B.PD1
            for r in range(4):
                e.op(f"v_and_b32_dpp v{A+r}, v{pd}, v{B.MASK+r} row_newbcast:{t & 15} row_mask:0xf bank_mask:0xf")
            return A
        ML_ISSUE = min(6, NR - 8)
        ML_CHECK = NR - 5
        wo_issued = False
        A = a_regs(0)
        for t in range(NR):
            while nV[0] < NR and nV[0] < t + c.W:
                issue_V()
            if nV[0] == NR and has_wo and not wo_issued:
                for u in range(4):
                    if u == 0:
                        e.op("s_lshl_b32 s7, s3, 4")
                        e.op(f"v_add_u32 v{T}, s7, v{B.G}")
                        e.op(f"v_mul_u32_u24 v{T}, 1280, v{T}")
                        e.op(f"v_lshlrev_b32 v{T+1}, 4, v{B.Nn}")
                        e.op(f"v_add_u32 v{B.vWQ}, v{T}, v{T+1}")
                    e.op(f"s_mov_b32 s7, {5120*u}")
                    e.op(f"buffer_load_dwordx4 {vr(B.WO+4*u)}, v{B.vWQ}, {sr(SWO,4)}, s7 offen {nt}", tag=("wo", u))
                wo_issued = True
            e.wait_vm(("V", t))
            e.op(f"v_mfma_f32_16x16x32_bf16 {vr(B.ACC)}, {vr(A)}, {vr(V(t))}, {'0' if t == 0 else vr(B.ACC)}")
            if t + 1 < NR:
                A = a_regs(t + 1)
            if t == ML_ISSUE:
                lab = comm_begin()
                self.ml_poll_issue(B, T)
                comm_end(lab)
                e.mark("mlpoll")
            if t == ML_CHECK:
                lab = comm_begin()
                e.wait_vm("mlpoll", keep=True)
                self.ml_poll_finish(B, T)
                comm_end(lab)
        self.stamp(5)
        self.exec_set(0xffffffff)
        e.op(f"ds_write_b128 v{B.vLDS}, {vr(B.ACC)} offset:{LOP}")
        self.exec_set(-1)
        e.op("s_waitcnt lgkmcnt(0)")
        e.op("s_barrier")
        self.stamp(6)
        lab = comm_begin()
        e.op("s_setprio 2")
        a = K(0)
        e.op(f"v_lshlrev_b32 v{T}, 3, v{B.L}")
        for w in range(8):
            e.op(f"ds_read_b64 {vr(a+2*w,2)}, v{T} offset:{LOP+512*w}")
        e.op(f"s_mul_i32 s8, s{S_H}, 6")
        e.op(f"s_add_u32 s9, s8, s{S_J}")
        e.op("s_lshl_b32 s9, s9, 10")
        e.op(f"s_add_u32 s9, s9, {OB}")
        e.op(f"v_mov_b32 v{g4+1}, s{S_N}")
        e.op(f"v_mov_b32 v{g4+3}, s{S_N}")
        e.op("s_waitcnt lgkmcnt(0)")
        e.op(f"v_mul_f32 v{g4}, s92, v{a}")
        e.op(f"v_mul_f32 v{g4+2}, s92, v{a+1}")
        e.op(f"v_mul_f32 v{T+1}, s93, v{a+2}")
        e.op(f"v_mul_f32 v{T+2}, s93, v{a+3}")
        for w in range(2, 8, 2):
            e.op(f"v_fmac_f32 v{g4}, s{92+w}, v{a+2*w}")
            e.op(f"v_fmac_f32 v{g4+2}, s{92+w}, v{a+2*w+1}")
            e.op(f"v_fmac_f32 v{T+1}, s{93+w}, v{a+2*w+2}")
            e.op(f"v_fmac_f32 v{T+2}, s{93+w}, v{a+2*w+3}")
        e.op(f"v_add_f32 v{g4}, v{g4}, v{T+1}")
        e.op(f"v_add_f32 v{g4+2}, v{g4+2}, v{T+2}")
        e.op(f"buffer_store_dwordx4 {vr(g4)}, v{B.vWS}, {sr(SRD_WS,4)}, s9 offen sc1", count=False)
        e.op("s_setprio 0")
        comm_end(lab)
        self.stamp(7)
        if has_wo:
            self.gen_B_tail(K, T, LFP, COMM, comm_begin, comm_end)
        self.stamp(10)
        self.dump_stamps("B")
        e.op("s_endpgm")

    def pending_K(self, e):
        return sum(1 for t in e.vm if isinstance(t, tuple) and t[0] == "K")

    def copy4(self, base):
        if base % 2 == 0:
            self.c4 = base
        else:
            raise AssertionError("odd base")

    def transpose_reduce(self, R, dst):
        e = self.e
        n = len(R)
        for t in range(8):
            if t < n:
                e.op(f"v_add_f32_dpp v{R[t]}, v{R[t]}, v{R[t]} row_ror:8 row_mask:0xf bank_mask:0x3")
        for t in range(8):
            if t + 8 < n:
                e.op(f"v_add_f32_dpp v{R[t]}, v{R[t+8]}, v{R[t+8]} row_ror:8 row_mask:0xf bank_mask:0xc")
        m = min(n, 8)
        for t in range(4):
            if t < m:
                e.op(f"v_add_f32_dpp v{R[t]}, v{R[t]}, v{R[t]} row_half_mirror row_mask:0xf bank_mask:0x5")
        for t in range(4):
            if t + 4 < m:
                e.op(f"v_add_f32_dpp v{R[t]}, v{R[t+4]}, v{R[t+4]} row_half_mirror row_mask:0xf bank_mask:0xa")
        assert m >= 4
        for t in range(4):
            e.op(f"v_add_f32_dpp v{R[t]}, v{R[t]}, v{R[t]} quad_perm:[2,3,0,1] row_mask:0xf bank_mask:0xf")
        e.op("s_mov_b32 s8, 0xcccccccc")
        e.op("s_mov_b32 s9, 0xcccccccc")
        e.op("s_mov_b32 s10, 0xaaaaaaaa")
        e.op("s_mov_b32 s11, 0xaaaaaaaa")
        e.op(f"v_cndmask_b32 v{R[0]}, v{R[0]}, v{R[2]}, s[8:9]")
        e.op(f"v_cndmask_b32 v{R[1]}, v{R[1]}, v{R[3]}, s[8:9]")
        for t in range(2):
            e.op(f"v_add_f32_dpp v{R[t]}, v{R[t]}, v{R[t]} quad_perm:[1,0,3,2] row_mask:0xf bank_mask:0xf")
        e.op(f"v_cndmask_b32 v{dst}, v{R[0]}, v{R[1]}, s[10:11]")
        return dst

    def ml_poll_issue(self, B, T):
        e = self.e
        S_H = 6
        e.op(f"v_and_b32 v{T}, 7, v{B.L}")
        e.op(f"v_min_u32 v{T}, 5, v{T}")
        e.op(f"v_lshlrev_b32 v{T}, 4, v{T}")
        e.op(f"s_lshl_b32 s8, s{S_H}, 7")
        e.op(f"s_add_u32 s8, s8, {MLG}")
        e.op(f"buffer_load_dwordx4 {vr(T+7)}, v{T}, {sr(SRD_WS,4)}, s8 offen sc1", count=False)

    def ml_poll_finish(self, B, T):
        e = self.e
        g4 = T + 7
        self.spin_init()
        chk, done = e.newlabel("mlchk"), e.newlabel("mldone")
        e.label(chk)
        self.tags_bad(T + 1, [g4 + 1, g4 + 3])
        e.op(f"v_cmp_ne_u32 vcc, 0, v{T+1}")
        e.op("s_cmp_eq_u64 vcc, 0")
        e.branch("s_cbranch_scc1", done)
        self.spin_step(done)
        self.ml_poll_issue(B, T)
        e.op("s_waitcnt vmcnt(0)")
        e.branch("s_branch", chk)
        e.label(done)
        e.op(f"v_and_b32 v{T}, 7, v{B.L}")
        e.op(f"v_cmp_gt_u32 vcc, 6, v{T}")
        e.op(f"v_cndmask_b32 v{g4+2}, 0, v{g4+2}, vcc")
        e.op(f"v_mov_b32 v{T+2}, v{g4}")
        for k in (4, 2, 1):
            e.op(f"v_max_f32_dpp v{T+2}, v{T+2}, v{T+2} row_ror:{k} row_mask:0xf bank_mask:0xf")
        e.op(f"v_sub_f32 v{T+3}, v{g4}, v{T+2}")
        e.op(f"v_exp_f32 v{T+3}, v{T+3}")
        e.op(f"v_mul_f32 v{T+3}, v{T+3}, v{g4+2}")
        for k in (4, 2, 1):
            e.op(f"v_add_f32_dpp v{T+3}, v{T+3}, v{T+3} row_ror:{k} row_mask:0xf bank_mask:0xf")
        e.op(f"v_rcp_f32 v{T+3}, v{T+3}")
        e.op(f"v_sub_f32 v{T+4}, v{B.MW}, v{T+2}")
        e.op(f"v_exp_f32 v{T+4}, v{T+4}")
        e.op(f"v_mul_f32 v{T+4}, v{T+4}, v{T+3}")
        for w in range(8):
            e.op(f"v_readlane_b32 s{92+w}, v{T+4}, {w}")

    def gen_B_tail(self, K, T, LFP, COMM, comm_begin, comm_end):
        e, c, B = self.e, self.c, self.B
        S_J, S_H = 5, 6
        g4 = K(8)
        e.op(f"v_lshrrev_b32 v{T}, 3, v{B.L}")
        e.op(f"v_lshlrev_b32 v{T}, 10, v{T}")
        e.op(f"v_and_b32 v{T+1}, 7, v{B.L}")
        e.op(f"v_lshlrev_b32 v{T+1}, 4, v{T+1}")
        e.op(f"s_lshl_b32 s8, s3, 7")
        e.op(f"v_add3_u32 v{T}, v{T}, v{T+1}, s8")
        e.op(f"s_mul_i32 s8, s{S_H}, {6*1024}")
        e.op(f"s_add_u32 s8, s8, {OB}")
        for k in range(4):
            e.op(f"v_mov_b32 v{g4+k}, 0")
        self.spin_init()
        poll, done = e.newlabel("opoll"), e.newlabel("odone")
        self.exec_set(0x0000ffffffffffff)
        e.label(poll)
        e.op(f"buffer_load_dwordx4 {vr(g4)}, v{T}, {sr(SRD_WS,4)}, s8 offen sc1", count=False)
        e.op("s_waitcnt vmcnt(0)")
        e.op(f"v_xor_b32 v{T+2}, s{S_N}, v{g4+1}")
        e.op(f"v_xor_b32 v{T+3}, s{S_N}, v{g4+3}")
        e.op(f"v_or_b32 v{T+2}, v{T+2}, v{T+3}")
        e.op(f"v_cmp_ne_u32 vcc, 0, v{T+2}")
        e.op("s_cmp_eq_u64 vcc, 0")
        e.branch("s_cbranch_scc1", done)
        self.spin_step(done)
        e.branch("s_branch", poll)
        e.label(done)
        e.vm = []
        self.exec_set(-1)
        self.stamp(8)
        for k in (0, 2):
            e.op(f"v_add_f32_dpp v{g4+k}, v{g4+k}, v{g4+k} row_ror:8 row_mask:0xf bank_mask:0xf")
        for k in (0, 2):
            e.op(f"v_mov_b32 v{T+2+k//2}, v{g4+k}")
        for k in (0, 2):
            e.op(f"v_permlane16_swap_b32 v{g4+k}, v{T+2+k//2}")
        for k in (0, 2):
            e.op(f"v_add_f32 v{g4+k}, v{g4+k}, v{T+2+k//2}")
        for k in (0, 2):
            e.op(f"v_mov_b32 v{T+2+k//2}, v{g4+k}")
        for k in (0, 2):
            e.op(f"v_permlane32_swap_b32 v{g4+k}, v{T+2+k//2}")
        for k in (0, 2):
            e.op(f"v_add_f32 v{g4+k}, v{g4+k}, v{T+2+k//2}")
        e.op(f"v_cvt_pk_bf16_f32 v{g4}, v{g4}, v{g4}")
        e.op(f"v_cvt_pk_bf16_f32 v{g4+2}, v{g4+2}, v{g4+2}")
        e.op("s_mov_b32 s8, 0xffff0000")
        e.op("s_mov_b32 s9, 0xffff0000")
        e.op(f"v_cndmask_b32 v{g4}, v{g4}, v{g4+2}, s[8:9]")
        e.op(f"v_mov_b32_dpp v{g4}, v{g4} row_shl:1 row_mask:0xc bank_mask:0xf")
        for u in range(4):
            A = B.A0 if u % 2 == 0 else B.A1
            for r in range(4):
                e.op(f"v_and_b32_dpp v{A+r}, v{g4}, v{B.MASK+r} row_newbcast:{2*u} row_mask:0xf bank_mask:0xf")
            e.op(f"v_mfma_f32_16x16x32_bf16 {vr(B.ACC)}, {vr(A)}, {vr(B.WO+4*u)}, {'0' if u == 0 else vr(B.ACC)}")
        self.exec_set(0xffffffff)
        e.op(f"ds_write_b128 v{B.vLDS}, {vr(B.ACC)} offset:{LFP}")
        self.exec_set(-1)
        e.op("s_waitcnt lgkmcnt(0)")
        e.op("s_barrier")
        self.stamp(9)
        lab = comm_begin()
        a = K(0)
        e.op(f"v_lshlrev_b32 v{T}, 3, v{B.L}")
        for w in range(8):
            e.op(f"ds_read_b64 {vr(a+2*w,2)}, v{T} offset:{LFP+512*w}")
        e.op(f"s_lshl_b32 s8, s{S_J}, 5")
        e.op(f"s_add_u32 s8, s8, s{S_H}")
        e.op("s_lshl_b32 s8, s8, 10")
        e.op(f"s_add_u32 s8, s8, {FB}")
        g = T + 7
        e.op(f"v_mov_b32 v{g+1}, s{S_N}")
        e.op(f"v_mov_b32 v{g+3}, s{S_N}")
        e.op("s_waitcnt lgkmcnt(0)")
        for w in (1, 3, 5, 7):
            e.op(f"v_add_f32 v{a+2*(w-1)}, v{a+2*(w-1)}, v{a+2*w}")
            e.op(f"v_add_f32 v{a+2*(w-1)+1}, v{a+2*(w-1)+1}, v{a+2*w+1}")
        for w in (2, 6):
            e.op(f"v_add_f32 v{a+2*(w-2)}, v{a+2*(w-2)}, v{a+2*w}")
            e.op(f"v_add_f32 v{a+2*(w-2)+1}, v{a+2*(w-2)+1}, v{a+2*w+1}")
        e.op(f"v_add_f32 v{g}, v{a}, v{a+8}")
        e.op(f"v_add_f32 v{g+2}, v{a+1}, v{a+9}")
        e.op(f"buffer_store_dwordx4 {vr(g)}, v{B.vWS}, {sr(SRD_WS,4)}, s8 offen sc1", count=False)
        comm_end(lab)

    def gen_A(self):
        from gen_a import gen_A
        gen_A(self)


L_C = 0
C_STRIDE = 1056
L_QA = 128 * C_STRIDE
L_P = L_QA + 16 * C_STRIDE
P_STRIDE = 288
L_QACC = L_P + 16 * P_STRIDE
L_MX = L_QACC + 256
L_LX = L_MX + 512
L_CTX = L_LX + 512
L_END = L_CTX + 256
LDS_TOTAL = 160 * 1024
assert L_END <= LDS_TOTAL


def main():
    ap = argparse.ArgumentParser()
    ap.add_argument("-o", default="concat_heads__compressed_kv_cla__mha_block_cached__decode.s")
    ap.add_argument("--set", nargs="*", default=[])
    a = ap.parse_args()
    kw = {}
    for s in a.set:
        k, v = s.split("=")
        try:
            v = int(v)
        except ValueError:
            v = {"True": True, "False": False, "None": None}.get(v, v)
        kw[k] = v
    g = Gen(Cfg(**kw))
    txt = g.build()
    open(a.o, "w").write(txt)
    print("wrote", a.o, len(txt), "bytes;", g.e.nops, "nop pads")


if __name__ == "__main__":
    main()
```

```python
import gen as G
from gen import (sr, vr, f32hex, SCALE, S_N, SRD_WS, P_AX, P_CKV, P_WQA, P_WUK, P_WUV, P_WOA, P_OUT, P_WS,
                 EPOCH, QA, QAF, MLA, OAF, OA, FA, FB, NONCE_STEP,
                 L_C, C_STRIDE, L_QA, L_P, P_STRIDE, L_QACC, L_MX, L_LX, L_CTX)


def gen_A(g):
    e, c = g.e, g.c
    tail = getattr(c, "tail", False)
    if tail:
        real_stamp = g.stamp
        keep = {True: (9, 10, 11), "p3": (9, 10, 11), "t2": (4, 5, 6, 7, 8)}[tail]
        g.stamp = lambda i, **kw: real_stamp(i) if i in keep else None
    tstamp = (lambda i: real_stamp(i)) if tail is True else (lambda i: None)
    pstamp = (lambda i: real_stamp(i)) if tail == "p3" else (lambda i: None)
    t2stamp = (lambda i: real_stamp(i)) if tail == "t2" else (lambda i: None)
    nt = c.nt
    e.vm = []
    S_DH, S_H, S_KB, S_HG, S_P = 5, 6, 12, 13, 76
    SX, SWQ, SUK, SUV, SWO, SCK = 52, 56, 60, 64, 68, 72
    L, Gq, N_ = 0, 1, 2
    M8, M4 = 4, 8
    ACC = 12
    A0, A1 = 16, 20
    vX, vWQ, vUK, vWO, vL16, vRHO, vK = 24, 25, 26, 27, 28, 29, 30
    QC2 = 40

    T = 36
    WQ = lambda t: 48 + 4 * t
    UK = lambda t: 88 + 4 * t
    UV = lambda t: 120 + 4 * t
    WO = lambda t: 152 + 4 * t
    X = lambda t: 192 + t
    BUF0, BUF1 = 192, 224
    VALID = 0xFF00FF0000FF00FF

    e.op("s_lshr_b32 s7, s2, 3")
    e.op("s_and_b32 s8, s2, 7")
    e.op("s_lshl_b32 s8, s8, 3")
    e.op(f"s_add_u32 s{S_P}, s7, s8")
    e.op(f"s_lshr_b32 s6, s{S_P}, 1")
    e.op(f"s_and_b32 s5, s{S_P}, 1")
    e.op("s_and_b32 s12, s2, 7")
    e.op("s_lshr_b32 s7, s2, 4")
    e.op("s_lshl_b32 s7, s7, 3")
    e.op("s_add_u32 s12, s12, s7")
    e.op("s_lshr_b32 s13, s2, 3")
    e.op("s_and_b32 s13, s13, 1")
    S_S = 77
    e.op(f"s_add_u32 s{S_S}, s{S_DH}, 6")
    vS1W, vS1X, vLDS = 25, 24, 33
    X1 = lambda t: 192 + t
    W1 = lambda t: 48 + 4 * t
    LQP, LQF = L_QA, L_QA + 4096
    e.op(f"v_lshrrev_b32 v3, 1, v{N_}")
    g.make_masks(M4, 3, N_, T, T + 1)
    g.stage1_setup(S_S, S_H, vS1W, vS1X, Gq, N_, T, SX, SWQ)
    e.op("s_lshl_b32 s9, s3, 9")
    e.op(f"v_lshlrev_b32 v{vLDS}, 5, v{N_}")
    e.op(f"v_lshlrev_b32 v{T+1}, 4, v{Gq}")
    e.op(f"s_add_u32 s9, s9, {LQP}")
    e.op(f"v_add3_u32 v{vLDS}, v{vLDS}, v{T+1}, s9")
    e.op("s_lshl_b32 s7, s3, 5")
    e.op(f"v_lshlrev_b32 v{T}, 3, v{Gq}")
    e.op(f"v_add_u32 v{T}, s7, v{T}")
    e.op(f"v_lshlrev_b32 v{T}, 13, v{T}")
    e.op(f"v_lshlrev_b32 v{T+1}, 4, v{N_}")
    vUK2 = 34
    e.op(f"v_add_u32 v{vUK2}, v{T}, v{T+1}")
    e.op("s_waitcnt lgkmcnt(0)")
    if c.prof:
        e.op("s_mov_b32 s80, s78")
    e.op(f"s_load_dword s{S_N}, {sr(P_WS)}, {EPOCH}")
    g.stage1_srds(SX, SWQ)
    g.stage1_issue(X1, W1, vS1X, vS1W, SX, SWQ)
    e.op(f"s_lshl_b32 s9, s{S_H}, 8")
    e.op(f"s_lshl_b32 s10, s{S_DH}, 21")
    e.op("s_add_u32 s9, s9, s10")
    g.srd(SUK, P_WUK, "s9", 256 * 8192)
    def issue_uk(t):
        e.op(f"s_mov_b32 s7, {t*8192}")
        e.op(f"buffer_load_dwordx4 {vr(UK(t))}, v{vUK2}, {sr(SUK,4)}, s7 offen {nt}", tag=("uk", t))

    def issue_ck(i):
        e.op(f"s_lshl_b32 s7, s3, 4")
        e.op(f"s_add_u32 s7, s7, {i}")
        e.op(f"s_mul_i32 s8, s7, {C_STRIDE}")
        e.op("s_lshl_b32 s7, s7, 10")
        e.op("s_mov_b32 m0, s8")
        e.op(f"buffer_load_dwordx4 v{vL16}, {sr(SCK,4)}, s7 offen {c.nt_ckv} lds", tag=("ck", i))

    def issue_uv(t):
        e.op(f"s_mov_b32 s7, {t*8192}")
        e.op(f"buffer_load_dwordx4 {vr(UV(t))}, v{vUK}, {sr(SUV,4)}, s7 offen {nt}", tag=("uv", t))

    def issue_wo(t):
        r2, cb = t // 5, t % 5
        e.op(f"s_mov_b32 s7, {5120*r2}")
        e.op(f"buffer_load_dwordx4 {vr(WO(t))}, v{vWO}, {sr(SWO,4)}, s7 offen offset:{256*cb} {nt}", tag=("wo", t))
    queue = ([(issue_uk, t) for t in range(8)] + [(issue_ck, t) for t in range(16)] +
             [(issue_uv, t) for t in range(8)] + [(issue_wo, t) for t in range(10)])
    sched = list(c.PFA)

    def pf(point, upto=None):
        n = sched[point] if point < len(sched) else 0
        while queue and (n > 0 or (upto is not None and any(f is upto for f, _ in queue))):
            f, t = queue.pop(0)
            f(t)
            n -= 1
    pf(0)
    g.code_prefetch(["s_cmp_lt_u32 s2, 8"], "L_end", 8, T, 224, 92)
    e.op(f"v_lshrrev_b32 v{vRHO}, 3, v{L}")
    e.op(f"v_and_b32 v{vK}, 7, v{L}")
    e.op(f"v_lshrrev_b32 v3, 1, v{vK}")
    g.make_masks(M8, 3, N_, T, T + 1)
    e.op("s_lshl_b32 s7, s3, 6")
    e.op(f"v_lshlrev_b32 v{T}, 3, v{vRHO}")
    e.op(f"v_add_u32 v{T}, s7, v{T}")
    e.op(f"v_lshlrev_b32 v{T}, 13, v{T}")
    e.op(f"v_lshlrev_b32 v{T+1}, 4, v{vK}")
    e.op(f"v_add_u32 v{vUK}, v{T}, v{T+1}")
    e.op("s_lshl_b32 s7, s3, 3")
    e.op(f"v_add_u32 v{T}, s7, v{Gq}")
    e.op(f"v_mul_u32_u24 v{T}, 1280, v{T}")
    e.op(f"v_lshlrev_b32 v{T+1}, 4, v{N_}")
    e.op(f"v_add_u32 v{vWO}, v{T}, v{T+1}")
    e.op(f"v_lshlrev_b32 v{vL16}, 4, v{L}")
    e.op(f"s_lshl_b32 s9, s{S_H}, 8")
    e.op(f"s_lshl_b32 s10, s{S_DH}, 7")
    e.op("s_add_u32 s9, s9, s10")
    g.srd(SUV, P_WUV, "s9", 512 * 8192)
    g.srd(SRD_WS, P_WS, None, G.WS_USED)
    e.op(f"s_lshl_b32 s9, s{S_H}, 7")
    e.op(f"s_lshl_b32 s10, s{S_DH}, 6")
    e.op("s_add_u32 s9, s9, s10")
    e.op("s_mul_i32 s9, s9, 1280")
    g.srd(SWO, P_WOA, "s9", 64 * 1280)
    e.op(f"s_lshl_b32 s9, s{S_KB}, 17")
    g.srd(SCK, P_CKV, "s9", 128 * 1024)
    e.op("s_waitcnt lgkmcnt(0)")
    e.op(f"s_add_u32 s{S_N}, s{S_N}, 0x{NONCE_STEP:x}")
    g.stamp(1)
    g.stage1_compute(X1, W1, M4, A0, A1, ACC, vLDS, 0)
    e.op("s_waitcnt lgkmcnt(0)")
    e.op("s_barrier")
    g.stage1_publish(S_S, S_H, L, vL16, T, 192, T + 4, LQP)
    pf(1)
    POLLA = lambda p: 192 + 4 * p
    lab = e.newlabel("qa")
    e.op("s_cmp_lg_u32 s3, 3")
    e.branch("s_cbranch_scc1", lab)
    e.op("s_setprio 2")
    g.qpoll_issue(G.QAQ, S_H, POLLA, vL16)
    e.op("s_waitcnt vmcnt(0)")
    g.qpoll_finish(G.QAQ, S_H, POLLA, vL16, L, T, LQF)
    e.op("s_setprio 0")
    e.label(lab)
    pf(2, upto=issue_uk)
    e.op("s_barrier")
    g.stamp(2)
    e.op(f"v_lshlrev_b32 v{T}, 4, v{N_}")
    e.op(f"v_add_u32 v{T}, {LQF}, v{T}")
    e.op(f"ds_read_b128 {vr(QC2)}, v{T}")
    pf(3)
    e.op("s_waitcnt lgkmcnt(0)")
    for half in range(2):
        ts = list(range(4 * half, 4 * half + 4))
        for t in ts:
            e.wait_vm(("uk", t))
        for k in range(4):
            for t in ts:
                e.op(f"v_dot2_f32_bf16 v{UK(t)}, v{UK(t)+k}, v{QC2+k}, {'0' if k == 0 else 'v%d' % UK(t)}")
    for k in (8, 4, 2, 1):
        for t in range(8):
            e.op(f"v_add_f32_dpp v{UK(t)}, v{UK(t)}, v{UK(t)} row_ror:{k} row_mask:0xf bank_mask:0xf")
    for k in range(4):
        e.op(f"v_cvt_pk_bf16_f32 v{T+4+k}, v{UK(2*k)}, v{UK(2*k+1)}")
    assert (T + 4) % 2 == 0
    e.op(f"v_lshlrev_b32 v{T}, 4, v{Gq}")
    e.op(f"s_lshl_b32 s7, s{S_P}, 9")
    e.op("s_lshl_b32 s8, s3, 6")
    e.op("s_add_u32 s7, s7, s8")
    e.op(f"s_add_u32 s7, s7, {QA}")
    g.exec_set(0x0001000100010001)
    e.op(f"buffer_store_dwordx4 {vr(T+4)}, v{T}, {sr(SRD_WS,4)}, s7 offen sc1", tag="qast")
    g.exec_set(-1)
    pf(4)
    e.wait_vm("qast")
    e.op("s_barrier")
    g.stamp(3)
    lab = e.newlabel("fl")
    e.op("s_cmp_lg_u32 s3, 0")
    e.branch("s_cbranch_scc1", lab)
    e.op(f"v_and_b32 v{T}, 7, v{L}")
    e.op(f"v_lshrrev_b32 v{T+1}, 3, v{L}")
    e.op(f"v_lshlrev_b32 v{T+1}, 4, v{T+1}")
    e.op(f"s_lshr_b32 s7, s{S_H}, 4")
    e.op("s_lshl_b32 s7, s7, 3")
    e.op(f"v_add3_u32 v{T}, v{T}, v{T+1}, s7")
    e.op(f"v_lshlrev_b32 v{T}, 8, v{T}")
    e.op(f"s_and_b32 s7, s{S_H}, 15")
    e.op("s_lshl_b32 s7, s7, 1")
    e.op(f"s_add_u32 s7, s7, s{S_DH}")
    e.op("s_lshl_b32 s7, s7, 3")
    e.op(f"s_add_u32 s7, s7, {QAF}")
    e.op(f"v_mov_b32 v{T+2}, s{S_N}")
    e.op(f"v_mov_b32 v{T+3}, s{S_N}")
    g.exec_set(0xffffffff)
    e.op(f"buffer_store_dwordx2 {vr(T+2,2)}, v{T}, {sr(SRD_WS,4)}, s7 offen sc1", count=False)
    g.exec_set(-1)
    e.label(lab)
    pf(5, upto=issue_ck)

    def scalar_flag_poll(off_expr_setup):
        off_expr_setup()
        e.op(f"s_mov_b32 s10, s{S_N}")
        e.op(f"s_mov_b32 s11, s{S_N}")
        g.spin_init()
        poll, done = e.newlabel("fpoll"), e.newlabel("fdone")
        e.label(poll)
        e.op("s_load_dwordx8 s[92:99], s[8:9], 0 glc")
        e.op("s_waitcnt lgkmcnt(0)")
        for k in range(4):
            e.op(f"s_xor_b64 s[{92+2*k}:{93+2*k}], s[{92+2*k}:{93+2*k}], s[10:11]")
        e.op("s_or_b64 s[92:93], s[92:93], s[94:95]")
        e.op("s_or_b64 s[96:97], s[96:97], s[98:99]")
        e.op("s_or_b64 s[92:93], s[92:93], s[96:97]")
        e.op("s_cmp_eq_u64 s[92:93], 0")
        e.branch("s_cbranch_scc1", done)
        g.spin_step(done)
        e.branch("s_branch", poll)
        e.label(done)

    def qaf_addr():
        e.op("s_lshl_b32 s7, s2, 8")
        e.op("s_lshl_b32 s8, s3, 5")
        e.op("s_add_u32 s7, s7, s8")
        e.op(f"s_add_u32 s7, s7, {QAF}")
        e.op(f"s_add_u32 s8, s{P_WS}, s7")
        e.op(f"s_addc_u32 s9, s{P_WS+1}, 0")
    scalar_flag_poll(qaf_addr)
    g.stamp(4)
    e.op(f"s_lshl_b32 s7, s{S_HG}, 14")
    e.op("s_lshl_b32 s8, s3, 11")
    e.op("s_add_u32 s7, s7, s8")
    e.op(f"s_add_u32 s7, s7, {QA}")
    for u in range(2):
        e.op(f"buffer_load_dwordx4 {vr(BUF0+4*u)}, v{vL16}, {sr(SRD_WS,4)}, s7 offen offset:{1024*u} sc1", tag=("qa", u))
    pf(6)
    e.wait_vm(("qa", 1))
    e.op(f"s_mul_i32 s7, s3, {2*C_STRIDE}")
    e.op(f"s_add_u32 s7, s7, {L_QA}")
    e.op(f"v_add_u32 v{T}, s7, v{vL16}")
    e.op(f"ds_write_b128 v{T}, {vr(BUF0)}")
    e.op(f"ds_write_b128 v{T}, {vr(BUF0+4)} offset:{C_STRIDE}")
    e.wait_vm(("ck", 15))
    e.op("s_waitcnt lgkmcnt(0)")
    e.op("s_barrier")
    g.stamp(5)
    pf(7)
    vA, vB = T, T + 1
    e.op("s_lshl_b32 s7, s3, 4")
    e.op(f"v_add_u32 v{vA}, s7, v{N_}")
    e.op(f"v_mul_u32_u24 v{vA}, {C_STRIDE}, v{vA}")
    e.op(f"v_lshlrev_b32 v{T+2}, 4, v{Gq}")
    e.op(f"v_add_u32 v{vA}, v{vA}, v{T+2}")
    e.op(f"v_mul_u32_u24 v{vB}, {C_STRIDE}, v{N_}")
    e.op(f"v_add_u32 v{vB}, v{vB}, v{T+2}")
    e.op(f"v_add_u32 v{vB}, {L_QA}, v{vB}")

    def s_reads(b):
        buf = BUF0 if b % 2 == 0 else BUF1
        for i in range(4):
            t = 4 * b + i
            e.op(f"ds_read_b128 {vr(buf+8*i)}, v{vA} offset:{64*t}")
            e.op(f"ds_read_b128 {vr(buf+8*i+4)}, v{vB} offset:{64*t}")
    t2stamp(1)
    s_reads(0)
    for b in range(4):
        if b + 1 < 4:
            s_reads(b + 1)
        buf = BUF0 if b % 2 == 0 else BUF1
        for i in range(4):
            left = (8 if b + 1 < 4 else 0) + (6 - 2 * i)
            e.op(f"s_waitcnt lgkmcnt({left})")
            first = (b == 0 and i == 0)
            e.op(f"v_mfma_f32_16x16x32_bf16 {vr(ACC)}, {vr(buf+8*i)}, {vr(buf+8*i+4)}, {'0' if first else vr(ACC)}")
    t2stamp(2)
    pf(8)
    SC = T + 4
    e.op(f"s_mov_b32 s7, {f32hex(SCALE)}")
    for r in range(4):
        e.op(f"v_mul_f32 v{SC+r}, s7, v{ACC+r}")
    MXr = T + 2
    e.op(f"v_max3_f32 v{MXr}, v{SC}, v{SC+1}, v{SC+2}")
    e.op(f"v_max_f32 v{MXr}, v{MXr}, v{SC+3}")
    g.xor16("v_max_f32", MXr, T + 3)
    g.xor32("v_max_f32", MXr, T + 3)
    vMX = 24
    e.op(f"v_lshlrev_b32 v{vMX}, 5, v{N_}")
    e.op(f"v_add_u32 v{vMX}, {L_MX}, v{vMX}")
    e.op("s_lshl_b32 s7, s3, 2")
    e.op(f"v_add_u32 v{T+3}, s7, v{vMX}")
    g.exec_set(0xffff)
    e.op(f"ds_write_b32 v{T+3}, v{MXr}")
    g.exec_set(-1)
    e.op("s_waitcnt lgkmcnt(0)")
    e.op("s_barrier")
    t2stamp(3)
    e.op(f"ds_read_b128 {vr(BUF0)}, v{vMX}")
    e.op(f"ds_read_b128 {vr(BUF0+4)}, v{vMX} offset:16")
    pf(9)
    e.op("s_waitcnt lgkmcnt(0)")
    vM = 25
    e.op(f"v_max3_f32 v{vM}, v{BUF0}, v{BUF0+1}, v{BUF0+2}")
    e.op(f"v_max3_f32 v{vM}, v{vM}, v{BUF0+3}, v{BUF0+4}")
    e.op(f"v_max3_f32 v{vM}, v{vM}, v{BUF0+5}, v{BUF0+6}")
    e.op(f"v_max_f32 v{vM}, v{vM}, v{BUF0+7}")
    for r in range(4):
        e.op(f"v_sub_f32 v{SC+r}, v{SC+r}, v{vM}")
    for r in range(4):
        e.op(f"v_exp_f32 v{SC+r}, v{SC+r}")
    PP = T + 8
    assert PP % 2 == 0
    e.op(f"v_cvt_pk_bf16_f32 v{PP}, v{SC}, v{SC+1}")
    e.op(f"v_cvt_pk_bf16_f32 v{PP+1}, v{SC+2}, v{SC+3}")
    e.op("s_mov_b32 s7, 0xffff0000")
    e.op(f"v_lshlrev_b32 v{SC}, 16, v{PP}")
    e.op(f"v_and_b32 v{SC+1}, s7, v{PP}")
    e.op(f"v_lshlrev_b32 v{SC+2}, 16, v{PP+1}")
    e.op(f"v_and_b32 v{SC+3}, s7, v{PP+1}")
    e.op(f"v_add_f32 v{SC}, v{SC}, v{SC+1}")
    e.op(f"v_add_f32 v{SC+2}, v{SC+2}, v{SC+3}")
    e.op(f"v_add_f32 v{SC}, v{SC}, v{SC+2}")
    g.xor16("v_add_f32", SC, SC + 1)
    g.xor32("v_add_f32", SC, SC + 1)
    e.op(f"v_mul_u32_u24 v{T}, {P_STRIDE}, v{N_}")
    e.op(f"v_lshlrev_b32 v{T+1}, 4, v{Gq}")
    e.op(f"v_add_u32 v{T}, v{T}, v{T+1}")
    e.op(f"v_add_u32 v{T}, {L_P}, v{T}")
    vPR = 30
    e.op(f"v_mov_b32 v{vPR}, v{T}")
    e.op("s_lshr_b32 s7, s3, 1")
    e.op("s_lshl_b32 s7, s7, 6")
    e.op("s_and_b32 s8, s3, 1")
    e.op("s_lshl_b32 s8, s8, 3")
    e.op("s_add_u32 s7, s7, s8")
    e.op(f"v_add_u32 v{T}, s7, v{T}")
    e.op(f"ds_write_b64 v{T}, {vr(PP,2)}")
    e.op(f"v_add_u32 v{T+3}, {L_LX-L_MX}, v{T+3}")
    g.exec_set(0xffff)
    e.op(f"ds_write_b32 v{T+3}, v{SC}")
    g.exec_set(-1)
    e.op("s_waitcnt lgkmcnt(0)")
    e.op("s_barrier")
    g.stamp(6)
    pf(10)
    PB = 48
    OACC = 64
    TR = 88
    for s in range(4):
        e.op(f"ds_read_b128 {vr(PB+4*s)}, v{vPR} offset:{64*s}")
    vT0, vT1 = T, T + 1
    e.op(f"v_lshrrev_b32 v{T+2}, 2, v{N_}")
    e.op(f"v_lshl_add_u32 v{T+2}, v{Gq}, 2, v{T+2}")
    e.op(f"v_mul_u32_u24 v{vT0}, {C_STRIDE}, v{T+2}")
    e.op(f"v_and_b32 v{T+2}, 3, v{N_}")
    e.op(f"v_lshlrev_b32 v{T+2}, 3, v{T+2}")
    e.op("s_lshl_b32 s7, s3, 7")
    e.op(f"v_add3_u32 v{vT0}, v{vT0}, v{T+2}, s7")
    e.op(f"v_add_u32 v{vT1}, {64*C_STRIDE}, v{vT0}")

    def tr_reads(tau):
        buf = TR if tau % 2 == 0 else BUF0
        for s in range(4):
            base = vT0 if s < 2 else vT1
            for u in range(2):
                off = (32 * (s & 1) + 16 * u) * C_STRIDE + 32 * tau
                e.op(f"ds_read_b64_tr_b16 {vr(buf+4*s+2*u,2)}, v{base} offset:{off}")
    tr_reads(0)
    for tau in range(4):
        if tau + 1 < 4:
            tr_reads(tau + 1)
        buf = TR if tau % 2 == 0 else BUF0
        for s in range(4):
            left = (8 if tau + 1 < 4 else 0) + (6 - 2 * s)
            e.op(f"s_waitcnt lgkmcnt({left})")
            e.op(f"v_mfma_f32_16x16x32_bf16 {vr(OACC+4*tau)}, {vr(buf+4*s)}, {vr(PB+4*s)}, {'0' if s == 0 else vr(OACC+4*tau)}")
    t2stamp(9)
    pf(11)
    e.op(f"v_mul_u32_u24 v{T}, {C_STRIDE}, v{N_}")
    e.op(f"v_lshlrev_b32 v{T+1}, 3, v{Gq}")
    e.op("s_lshl_b32 s7, s3, 7")
    e.op(f"s_add_u32 s7, s7, {L_QA}")
    e.op(f"v_add3_u32 v{T}, v{T}, v{T+1}, s7")
    for tau in range(4):
        o = OACC + 4 * tau
        e.op(f"v_cvt_pk_bf16_f32 v{o}, v{o}, v{o+1}")
        e.op(f"v_cvt_pk_bf16_f32 v{o+1}, v{o+2}, v{o+3}")
        e.op(f"ds_write_b64 v{T}, {vr(o,2)} offset:{32*tau}")
    e.op("s_waitcnt lgkmcnt(0)")
    e.op("s_barrier")
    g.stamp(7)
    e.op(f"s_mul_i32 s7, s3, {2*C_STRIDE}")
    e.op(f"s_add_u32 s7, s7, {L_QA}")
    e.op(f"v_add_u32 v{T}, s7, v{vL16}")
    e.op(f"ds_read_b128 {vr(BUF1)}, v{T}")
    e.op(f"ds_read_b128 {vr(BUF1+4)}, v{T} offset:{C_STRIDE}")
    e.op(f"v_add_u32 v{T+1}, {L_LX-L_MX}, v{vMX}")
    e.op(f"ds_read_b128 {vr(BUF1+8)}, v{T+1}")
    e.op(f"ds_read_b128 {vr(BUF1+12)}, v{T+1} offset:16")
    e.op(f"s_lshl_b32 s7, s{S_HG}, 4")
    e.op("s_lshl_b32 s8, s3, 1")
    e.op("s_add_u32 s7, s7, s8")
    e.op("s_lshl_b32 s7, s7, 5")
    e.op(f"s_add_u32 s7, s7, s{S_KB}")
    e.op("s_lshl_b32 s7, s7, 10")
    e.op(f"s_add_u32 s7, s7, {OA}")
    e.op("s_add_u32 s8, s7, 32768")
    e.op("s_mov_b32 s14, s7")
    e.op("s_waitcnt lgkmcnt(0)")
    lab = e.newlabel("ml")
    e.op("s_cmp_lg_u32 s3, 0")
    e.branch("s_cbranch_scc1", lab)
    b = BUF1 + 8
    e.op(f"v_add_f32 v{b}, v{b}, v{b+1}")
    e.op(f"v_add_f32 v{b+2}, v{b+2}, v{b+3}")
    e.op(f"v_add_f32 v{b+4}, v{b+4}, v{b+5}")
    e.op(f"v_add_f32 v{b+6}, v{b+6}, v{b+7}")
    e.op(f"v_add_f32 v{b}, v{b}, v{b+2}")
    e.op(f"v_add_f32 v{b+4}, v{b+4}, v{b+6}")
    e.op(f"v_add_f32 v{T+3}, v{b}, v{b+4}")
    e.op(f"v_mov_b32 v{T+2}, v{vM}")
    assert (T + 2) % 2 == 0
    e.op(f"v_lshlrev_b32 v{T+1}, 8, v{N_}")
    e.op(f"s_lshl_b32 s7, s{S_HG}, 12")
    e.op(f"s_lshl_b32 s9, s{S_KB}, 3")
    e.op("s_add_u32 s7, s7, s9")
    e.op(f"s_add_u32 s7, s7, {MLA}")
    g.exec_set(0xffff)
    e.op(f"buffer_store_dwordx2 {vr(T+2,2)}, v{T+1}, {sr(SRD_WS,4)}, s7 offen sc1", count=False)
    g.exec_set(-1)
    e.label(lab)
    e.op(f"buffer_store_dwordx4 {vr(BUF1)}, v{vL16}, {sr(SRD_WS,4)}, s14 offen sc1", tag="ost0")
    e.op(f"buffer_store_dwordx4 {vr(BUF1+4)}, v{vL16}, {sr(SRD_WS,4)}, s8 offen sc1", tag="ost1")
    pf(12)
    e.wait_vm("ost1")
    e.op("s_barrier")
    g.stamp(8)
    lab = e.newlabel("fl2")
    e.op("s_cmp_lg_u32 s3, 0")
    e.branch("s_cbranch_scc1", lab)
    e.op(f"v_lshlrev_b32 v{T}, 8, v{L}")
    e.op(f"s_lshl_b32 s7, s{S_HG}, 13")
    e.op(f"s_lshl_b32 s8, s{S_KB}, 3")
    e.op("s_add_u32 s7, s7, s8")
    e.op(f"s_add_u32 s7, s7, {OAF}")
    e.op(f"v_mov_b32 v{T+2}, s{S_N}")
    e.op(f"v_mov_b32 v{T+3}, s{S_N}")
    g.exec_set(0xffffffff)
    e.op(f"buffer_store_dwordx2 {vr(T+2,2)}, v{T}, {sr(SRD_WS,4)}, s7 offen sc1", count=False)
    g.exec_set(-1)
    e.label(lab)
    pf(13)

    def oaf_addr():
        e.op(f"s_lshl_b32 s7, s{S_P}, 8")
        e.op("s_lshl_b32 s8, s3, 5")
        e.op("s_add_u32 s7, s7, s8")
        e.op(f"s_add_u32 s7, s7, {OAF}")
        e.op(f"s_add_u32 s8, s{P_WS}, s7")
        e.op(f"s_addc_u32 s9, s{P_WS+1}, 0")
    scalar_flag_poll(oaf_addr)
    e.op("s_barrier")
    g.stamp(9)
    vKk = 30
    e.op(f"v_and_b32 v{vKk}, 7, v{L}")
    ML = T + 2
    e.op(f"v_and_b32 v{T}, 31, v{L}")
    e.op(f"v_lshlrev_b32 v{T}, 3, v{T}")
    e.op(f"s_lshl_b32 s7, s{S_H}, 8")
    e.op(f"s_add_u32 s7, s7, {MLA}")
    e.op(f"buffer_load_dwordx2 {vr(ML,2)}, v{T}, {sr(SRD_WS,4)}, s7 offen sc1", tag="ml")
    e.op(f"v_lshlrev_b32 v{T}, 10, v{vRHO}")
    e.op(f"v_lshlrev_b32 v{T+1}, 4, v{vKk}")
    e.op("s_lshl_b32 s7, s3, 7")
    e.op(f"v_add3_u32 v{T}, v{T}, v{T+1}, s7")
    e.op(f"s_lshl_b32 s7, s{S_H}, 15")
    e.op(f"s_add_u32 s7, s7, {OA}")
    OT = 48
    for t in range(4):
        e.op(f"buffer_load_dwordx4 {vr(OT+4*t)}, v{T}, {sr(SRD_WS,4)}, s7 offen sc1", tag=("ot", t))
        if t < 3:
            e.op("s_addk_i32 s7, 0x2000")
    pf(14, upto=issue_uv)
    e.wait_vm("ml")
    pstamp(1)
    W_ = T + 4
    e.op(f"v_mov_b32 v{W_}, v{ML}")
    g.wave_reduce("v_max_f32", W_, W_ + 1, lanes=32)
    e.op(f"v_sub_f32 v{W_}, v{ML}, v{W_}")
    e.op(f"v_exp_f32 v{W_}, v{W_}")
    e.op(f"v_mul_f32 v{W_+1}, v{W_}, v{ML+1}")
    g.wave_reduce("v_add_f32", W_ + 1, W_ + 2, lanes=32)
    e.op(f"v_rcp_f32 v{W_+1}, v{W_+1}")
    e.op(f"v_mul_f32 v{W_}, v{W_}, v{W_+1}")
    e.op(f"v_cvt_pk_bf16_f32 v{W_}, v{W_}, v{W_}")
    pstamp(2)
    e.op(f"v_lshlrev_b32 v{W_+1}, 2, v{vRHO}")
    WB = 64
    for t in range(4):
        if t:
            e.op(f"v_add_u32 v{W_+1}, 32, v{W_+1}")
        e.op(f"ds_bpermute_b32 v{WB+t}, v{W_+1}, v{W_}")
    e.op("s_waitcnt lgkmcnt(0)")
    pstamp(3)
    e.wait_vm(("ot", 3), keep=True)
    pstamp(4)
    for t in range(4):
        e.wait_vm(("ot", t))
        A = A0 if t % 2 == 0 else A1
        for r in range(4):
            e.op(f"v_and_b32 v{A+r}, v{WB+t}, v{M8+r}")
        e.op(f"v_mfma_f32_16x16x32_bf16 {vr(ACC)}, {vr(A)}, {vr(OT+4*t)}, {'0' if t == 0 else vr(ACC)}")
    pf(15, upto=issue_wo)
    e.op(f"v_lshlrev_b32 v{T}, 5, v{vKk}")
    e.op(f"v_lshlrev_b32 v{T+1}, 4, v{Gq}")
    e.op(f"v_and_b32 v{T+2}, 1, v{Gq}")
    e.op(f"v_lshlrev_b32 v{T+2}, 4, v{T+2}")
    e.op(f"v_lshrrev_b32 v{T+3}, 1, v{Gq}")
    e.op(f"v_lshlrev_b32 v{T+3}, 8, v{T+3}")
    e.op(f"v_add3_u32 v{T}, v{T}, v{T+2}, v{T+3}")
    e.op("s_lshl_b32 s7, s3, 9")
    e.op(f"v_add_u32 v{T}, s7, v{T}")
    g.exec_set(VALID)
    e.op(f"ds_write_b128 v{T}, {vr(ACC)}")
    g.exec_set(-1)
    e.op(f"v_lshlrev_b32 v{T+1}, 5, v{vRHO}")
    e.op(f"v_add_u32 v{T+1}, s7, v{T+1}")
    e.op("s_waitcnt lgkmcnt(0)")
    pstamp(5)
    CC = 68
    e.op(f"ds_read_b128 {vr(CC)}, v{T+1}")
    e.op(f"ds_read_b128 {vr(CC+4)}, v{T+1} offset:16")
    e.op(f"ds_read_b128 {vr(CC+8)}, v{T+1} offset:256")
    e.op(f"ds_read_b128 {vr(CC+12)}, v{T+1} offset:272")
    e.op("s_waitcnt lgkmcnt(0)")
    for t in range(8):
        e.op(f"v_add_f32 v{CC+t}, v{CC+t}, v{CC+8+t}")
    for t in range(8):
        e.op(f"v_cvt_pk_bf16_f32 v{CC+t}, v{CC+t}, v{CC+t}")
    pstamp(6)
    for t in range(8):
        e.wait_vm(("uv", t))
        A = A0 if t % 2 == 0 else A1
        for r in range(4):
            e.op(f"v_and_b32 v{A+r}, v{CC+t}, v{M8+r}")
        e.op(f"v_mfma_f32_16x16x32_bf16 {vr(ACC)}, {vr(A)}, {vr(UV(t))}, {'0' if t == 0 else vr(ACC)}")
    pstamp(7)
    LCP, CPS = 4096, 528
    e.op(f"v_lshlrev_b32 v{T}, 5, v{vKk}")
    e.op(f"v_and_b32 v{T+2}, 1, v{Gq}")
    e.op(f"v_lshlrev_b32 v{T+2}, 4, v{T+2}")
    e.op(f"v_lshrrev_b32 v{T+3}, 1, v{Gq}")
    e.op(f"v_lshlrev_b32 v{T+3}, 8, v{T+3}")
    e.op(f"v_add3_u32 v{T}, v{T}, v{T+2}, v{T+3}")
    e.op(f"s_mul_i32 s7, s3, {CPS}")
    e.op(f"s_add_u32 s7, s7, {LCP}")
    e.op(f"v_add_u32 v{T}, s7, v{T}")
    g.exec_set(VALID)
    e.op(f"ds_write_b128 v{T}, {vr(ACC)}")
    g.exec_set(-1)
    e.op(f"v_mul_u32_u24 v{T}, {CPS}, v{vKk}")
    e.op(f"v_lshrrev_b32 v{T+2}, 3, v{N_}")
    e.op(f"v_lshl_add_u32 v{T+2}, v{T+2}, 2, v{Gq}")
    e.op("s_lshl_b32 s7, s3, 3")
    e.op(f"v_add_u32 v{T+2}, s7, v{T+2}")
    e.op(f"v_lshl_add_u32 v{T}, v{T+2}, 2, v{T}")
    e.op("s_waitcnt lgkmcnt(0)")
    e.op("s_barrier")
    g.stamp(10)
    e.op(f"ds_read_b32 v{T+2}, v{T} offset:{LCP}")
    e.op(f"ds_read_b32 v{T+3}, v{T} offset:{LCP+256}")
    e.op("s_waitcnt lgkmcnt(0)")
    e.op(f"v_add_f32 v{T+2}, v{T+2}, v{T+3}")
    for perm in ("row_half_mirror", "quad_perm:[2,3,0,1]", "quad_perm:[1,0,3,2]"):
        e.op(f"v_add_f32_dpp v{T+2}, v{T+2}, v{T+2} {perm} row_mask:0xf bank_mask:0xf")
    e.op(f"v_cvt_pk_bf16_f32 v{T+2}, v{T+2}, v{T+2}")
    for r in range(4):
        e.op(f"v_and_b32_dpp v{A0+r}, v{T+2}, v{M4+r} row_newbcast:0 row_mask:0xf bank_mask:0xf")
    for r in range(4):
        e.op(f"v_and_b32_dpp v{A1+r}, v{T+2}, v{M4+r} row_newbcast:8 row_mask:0xf bank_mask:0xf")
    OA5 = 64
    for r2 in range(2):
        for cb in range(5):
            t = 5 * r2 + cb
            e.wait_vm(("wo", t))
            A = A0 if r2 == 0 else A1
            e.op(f"v_mfma_f32_16x16x32_bf16 {vr(OA5+4*cb)}, {vr(A)}, {vr(WO(t))}, {'0' if r2 == 0 else vr(OA5+4*cb)}")
    tstamp(1)
    LF = 12288
    e.op(f"v_lshlrev_b32 v{T}, 5, v{N_}")
    e.op(f"v_lshlrev_b32 v{T+1}, 4, v{Gq}")
    e.op(f"s_mul_i32 s7, s3, 2560")
    e.op(f"s_add_u32 s7, s7, {LF}")
    e.op(f"v_add3_u32 v{T}, v{T}, v{T+1}, s7")
    g.exec_set(0xffffffff)
    for cb in range(5):
        e.op(f"ds_write_b128 v{T}, {vr(OA5+4*cb)} offset:{512*cb}")
    g.exec_set(-1)
    e.op("s_waitcnt lgkmcnt(0)")
    e.op("s_barrier")
    tstamp(2)
    nopub = e.newlabel("nopub")
    e.op("s_cmp_ge_u32 s3, 5")
    e.branch("s_cbranch_scc1", nopub)
    a = 48
    e.op("s_lshl_b32 s7, s3, 9")
    e.op(f"v_lshlrev_b32 v{T}, 3, v{L}")
    e.op(f"v_add_u32 v{T}, s7, v{T}")
    for w in range(8):
        e.op(f"ds_read_b64 {vr(a+2*w,2)}, v{T} offset:{LF+2560*w}")
    gq = T + 4
    e.op(f"v_mov_b32 v{gq+1}, s{S_N}")
    e.op(f"v_mov_b32 v{gq+3}, s{S_N}")
    e.op("s_mul_i32 s7, s2, 5120")
    e.op("s_lshl_b32 s8, s3, 10")
    e.op("s_add_u32 s7, s7, s8")
    e.op(f"s_add_u32 s7, s7, {FA}")
    e.op("s_waitcnt lgkmcnt(0)")
    for w in (1, 3, 5, 7):
        e.op(f"v_add_f32 v{a+2*(w-1)}, v{a+2*(w-1)}, v{a+2*w}")
        e.op(f"v_add_f32 v{a+2*(w-1)+1}, v{a+2*(w-1)+1}, v{a+2*w+1}")
    for w in (2, 6):
        e.op(f"v_add_f32 v{a+2*(w-2)}, v{a+2*(w-2)}, v{a+2*w}")
        e.op(f"v_add_f32 v{a+2*(w-2)+1}, v{a+2*(w-2)+1}, v{a+2*w+1}")
    e.op(f"v_add_f32 v{gq}, v{a}, v{a+8}")
    e.op(f"v_add_f32 v{gq+2}, v{a+1}, v{a+9}")
    e.op(f"buffer_store_dwordx4 {vr(gq)}, v{vL16}, {sr(SRD_WS,4)}, s7 offen sc1", count=False)
    e.label(nopub)
    tstamp(3)
    e.vm = []
    fin = e.newlabel("fin")
    e.op("s_cmp_ge_u32 s2, 40")
    e.branch("s_cbranch_scc1", fin)
    g.srd(SX, P_OUT, None, 2560)
    la, lb = e.newlabel("redA"), e.newlabel("redB")
    e.op("s_cmp_eq_u32 s3, 6")
    e.branch("s_cbranch_scc1", la)
    e.op("s_cmp_eq_u32 s3, 5")
    e.branch("s_cbranch_scc0", fin)

    def reducer(nload, stride, base_setup, out_off):
        D = 48
        e.op(f"v_mul_u32_u24 v{T}, {stride}, v{vRHO}")
        e.op(f"v_and_b32 v{T+1}, 7, v{L}")
        e.op(f"v_lshlrev_b32 v{T+1}, 4, v{T+1}")
        e.op(f"v_add_u32 v{T}, v{T}, v{T+1}")
        base_setup()
        g.spin_init()
        poll, done = e.newlabel("rpoll"), e.newlabel("rdone")
        e.label(poll)
        e.op("s_mov_b32 s7, s14")
        for u in range(nload):
            e.op(f"buffer_load_dwordx4 {vr(D+4*u)}, v{T}, {sr(SRD_WS,4)}, s7 offen sc1", count=False)
            if u + 1 < nload:
                e.op(f"s_add_u32 s7, s7, {8*stride}")
        e.op("s_waitcnt vmcnt(0)")
        tstamp(4)
        g.tags_bad(T + 2, [D + 4 * u + k for u in range(nload) for k in (1, 3)])
        e.op(f"v_cmp_ne_u32 vcc, 0, v{T+2}")
        e.op("s_cmp_eq_u64 vcc, 0")
        e.branch("s_cbranch_scc1", done)
        g.spin_step(done)
        e.branch("s_branch", poll)
        e.label(done)
        tstamp(5)
        n = nload
        while n > 1:
            h = n // 2
            for u in range(h):
                for k in (0, 2):
                    e.op(f"v_add_f32 v{D+4*u+k}, v{D+4*u+k}, v{D+4*(u+h)+k}")
            n = h
        for k in (0, 2):
            e.op(f"v_add_f32_dpp v{D+k}, v{D+k}, v{D+k} row_ror:8 row_mask:0xf bank_mask:0xf")
        for k in (0, 2):
            g.xor16("v_add_f32", D + k, T + 2)
        for k in (0, 2):
            g.xor32("v_add_f32", D + k, T + 2)
        e.op(f"v_cvt_pk_bf16_f32 v{D}, v{D}, v{D+2}")
        e.op(f"v_lshlrev_b32 v{T}, 2, v{L}")
        e.op("s_lshl_b32 s7, s2, 5")
        if out_off:
            e.op(f"s_add_u32 s7, s7, {out_off}")
        g.exec_set(0xff)
        e.op(f"buffer_store_dword v{D}, v{T}, {sr(SX,4)}, s7 offen", count=False)
        g.exec_set(-1)
        tstamp(6)

    def baseB():
        e.op("s_lshr_b32 s7, s2, 3")
        e.op("s_lshl_b32 s7, s7, 15")
        e.op("s_and_b32 s8, s2, 7")
        e.op("s_lshl_b32 s8, s8, 7")
        e.op("s_add_u32 s7, s7, s8")
        e.op(f"s_add_u32 s14, s7, {FB}")

    def baseA():
        e.op("s_lshl_b32 s7, s2, 7")
        e.op(f"s_add_u32 s14, s7, {FA}")
    if c.only != "A":
        reducer(4, 1024, baseB, 1280)
    e.branch("s_branch", fin)
    e.label(la)
    if c.only != "B":
        reducer(8, 5120, baseA, 0)
    e.label(fin)
    lend = e.newlabel("aend")
    e.op("s_cmp_lg_u32 s2, 0")
    e.branch("s_cbranch_scc1", lend)
    e.op("s_barrier")
    e.op("s_cmp_lg_u32 s3, 5")
    e.branch("s_cbranch_scc1", lend)
    e.op(f"v_mov_b32 v{T}, {EPOCH}")
    e.op(f"v_mov_b32 v{T+1}, s{S_N}")
    g.exec_set(1)
    e.op(f"buffer_store_dword v{T+1}, v{T}, {sr(SRD_WS,4)}, 0 offen sc1", count=False)
    g.exec_set(-1)
    e.label(lend)
    g.stamp(11)
    g.dump_stamps("A")
    e.op("s_endpgm")
```

```python
import argparse
from emit import Emit

NAME = "concat_heads__compressed_kv_cla__mha_block_cached__decode_kernel"

EPOCH = 0
MLG = 0x1000
OB = 0x32000
FB = 0x62000
FA = 0x8A000
QA = 0xDA000
QAF = 0xEA000
MLA = 0xEE000
OAF = 0xF0000
OA = 0x100000
PROF = 0x200000
QB = 0x240000
QAQ = 0x280000
WS_USED = 0x2C0000
NONCE_STEP = 0x9E3779B1
SCALE = 0.08838834764831845 * 1.4426950408889634


def f32hex(x):
    import struct
    return "0x%08x" % struct.unpack("<I", struct.pack("<f", x))[0]


class Cfg:
    def __init__(self, **kw):
        self.nt = "nt"
        self.nt_ckv = "nt"
        self.W = 4
        self.WK = None
        self.K0 = 3
        self.POLL_A = 9
        self.PREV = 2
        self.WA = 6
        self.prof = False
        self.cpf = True
        self.spin = 200000
        self.only = None
        self.PFA = [4, 4, 4, 2, 4, 6, 2, 2, 2, 2, 3, 3, 0, 4, 0, 0]
        self.__dict__.update(kw)
        if self.WK is None:
            self.WK = self.W


S_WG, S_WAVE, S_N = 2, 3, 4
P_AX, P_CKV, P_WQA, P_WUK, P_WUV, P_WOA = 16, 18, 20, 22, 24, 26
P_BX, P_BK, P_BV, P_BWQ, P_BWO, P_OUT, P_DBG, P_WS = 32, 34, 36, 38, 40, 42, 44, 46
SRD_WS = 48
S_SPIN = 15


def sr(n, k=2):
    return f"s[{n}:{n+k-1}]"


def vr(n, k=4):
    return f"v[{n}:{n+k-1}]"


class Gen:
    def __init__(self, cfg):
        self.c = cfg
        self.e = Emit()
        self.nstamp = 0

    def srd(self, dst, ptr, off_sgpr, nrec):
        e = self.e
        if off_sgpr is None:
            e.op(f"s_mov_b32 s{dst}, s{ptr}")
            e.op(f"s_mov_b32 s{dst+1}, s{ptr+1}")
        else:
            e.op(f"s_add_u32 s{dst}, s{ptr}, {off_sgpr}")
            e.op(f"s_addc_u32 s{dst+1}, s{ptr+1}, 0")
        e.op(f"s_mov_b32 s{dst+2}, {nrec}")
        e.op(f"s_mov_b32 s{dst+3}, 0x20000")

    def stamp(self, idx, bw=False):
        if not self.c.prof:
            return
        if getattr(self, "in_B", False) and bool(getattr(self.c, "bw", False)) != bw and idx != 0:
            return
        e = self.e
        e.op("s_memrealtime s[78:79]")
        e.op("s_waitcnt lgkmcnt(0)")
        e.op(f"s_mov_b32 s{80+idx}, s78")

    def dump_dbg(self, role):
        e = self.e
        sel = {"A": [(2, 1), (3, 3), (4, 4), (5, 5), (6, 8), (7, 9), (8, 10), (1, 11)],
               "B": [(9, 1), (10, 2), (11, 3), (12, 4), (13, 5), (14, 8), (15, 10), (1, 10)]}[role]
        lab = e.newlabel("nodbg")
        if role == "A":
            e.op("s_cmp_eq_u32 s3, 0")
            e.op("s_cselect_b32 s5, 1, 0")
            e.op("s_cmp_eq_u32 s3, 5")
            e.op("s_cselect_b32 s5, 1, s5")
            e.op("s_cmp_eq_u32 s5, 0")
        else:
            e.op("s_cmp_lg_u32 s3, 7")
        e.branch("s_cbranch_scc1", lab)
        e.op("s_mov_b64 exec, -1")
        e.op("v_mbcnt_lo_u32_b32 v2, -1, 0")
        e.op("v_mbcnt_hi_u32_b32 v2, -1, v2")
        e.op("s_not_b32 s5, s80")
        e.op("v_mov_b32 v3, 0")
        for slot, src in [(0, None)] + sel:
            e.op(f"v_mov_b32 v4, {'s5' if src is None else 's%d' % (80+src)}")
            e.op(f"v_cmp_eq_u32 vcc, {slot}, v2")
            e.op("v_cndmask_b32 v3, v3, v4, vcc")
        e.op("v_lshlrev_b32 v2, 2, v2")
        self.srd(52, P_DBG, None, 256)
        self.exec_set(0xffff)
        e.op("buffer_atomic_umax v3, v2, s[52:55], 0 offen")
        self.exec_set(-1)
        e.label(lab)

    def dump_stamps(self, role=None):
        if not self.c.prof:
            return
        if self.c.prof == "dbg":
            return self.dump_dbg(role)
        e = self.e
        e.op("s_mov_b64 exec, -1")
        e.op("v_mbcnt_lo_u32_b32 v2, -1, 0")
        e.op("v_mbcnt_hi_u32_b32 v2, -1, v2")
        e.op("s_lshl_b32 s5, s2, 3")
        e.op("s_add_u32 s5, s5, s3")
        e.op("s_lshl_b32 s5, s5, 6")
        e.op(f"s_add_u32 s5, s5, {PROF}")
        e.op("v_mov_b32 v3, 0")
        for i in range(16):
            e.op(f"v_mov_b32 v4, s{80+i}")
            e.op(f"v_cmp_eq_u32 vcc, {i}, v2")
            e.op("v_cndmask_b32 v3, v3, v4, vcc")
        e.op("v_lshlrev_b32 v2, 2, v2")
        e.op("v_add_u32 v2, s5, v2")
        e.op("s_mov_b32 exec_lo, 0xffff".replace("exec_lo", "exec_lo"))
        e.op("s_mov_b32 exec_hi, 0")
        e.op(f"buffer_store_dword v3, v2, {sr(SRD_WS,4)}, 0 offen")
        e.op("s_mov_b64 exec, -1")

    def spin_init(self):
        self.e.op(f"s_mov_b32 s{S_SPIN}, 0")

    def spin_step(self, out_label):
        e = self.e
        e.op(f"s_add_u32 s{S_SPIN}, s{S_SPIN}, 1")
        e.op(f"s_cmp_gt_u32 s{S_SPIN}, {self.c.spin}")
        e.branch("s_cbranch_scc1", out_label)

    def wave_reduce(self, op, v, t, lanes=64):
        e = self.e
        for k in (8, 4, 2, 1):
            e.op(f"{op}_dpp v{v}, v{v}, v{v} row_ror:{k} row_mask:0xf bank_mask:0xf")
        self.xor16(op, v, t)
        if lanes == 64:
            self.xor32(op, v, t)

    def xor16(self, op, v, t):
        e = self.e
        e.op(f"v_mov_b32 v{t}, v{v}")
        e.op(f"v_permlane16_swap_b32 v{v}, v{t}")
        e.op(f"{op} v{v}, v{v}, v{t}")

    def xor32(self, op, v, t):
        e = self.e
        e.op(f"v_mov_b32 v{t}, v{v}")
        e.op(f"v_permlane32_swap_b32 v{v}, v{t}")
        e.op(f"{op} v{v}, v{v}, v{t}")

    def make_masks(self, dst, idx_reg, n_reg, t0, t1):
        e = self.e
        e.op(f"v_and_b32 v{t0}, 1, v{n_reg}")
        e.op(f"v_lshlrev_b32 v{t0}, 4, v{t0}")
        e.op(f"v_mov_b32 v{t1}, 0xffff")
        e.op(f"v_lshlrev_b32 v{t0}, v{t0}, v{t1}")
        for r in range(4):
            e.op(f"v_cmp_eq_u32 vcc, {r}, v{idx_reg}")
            e.op(f"v_cndmask_b32 v{dst+r}, 0, v{t0}, vcc")

    def tags_bad(self, acc, tags, first=True):
        e = self.e
        tags = list(tags)
        while tags:
            a = tags.pop(0)
            e.op(f"v_xor_b32 v{a}, s{S_N}, v{a}")
            if tags:
                b = tags.pop(0)
                e.op(f"v_xor_b32 v{b}, s{S_N}, v{b}")
                if first:
                    e.op(f"v_or_b32 v{acc}, v{a}, v{b}")
                else:
                    e.op(f"v_or3_b32 v{acc}, v{acc}, v{a}, v{b}")
            else:
                if first:
                    e.op(f"v_mov_b32 v{acc}, v{a}")
                else:
                    e.op(f"v_or_b32 v{acc}, v{acc}, v{a}")
            first = False

    def exec_set(self, mask):
        e = self.e
        if mask == -1 or mask == (1 << 64) - 1:
            e.op("s_mov_b64 exec, -1")
        else:
            e.op(f"s_mov_b32 exec_lo, 0x{mask & 0xffffffff:x}")
            e.op(f"s_mov_b32 exec_hi, 0x{mask >> 32:x}")

    def code_prefetch(self, cond_ops, start_expr, nwaves, vtmp, vdst, srd):
        e = self.e
        if not self.c.cpf:
            return
        lab = e.newlabel("cpf")
        for o in cond_ops:
            e.op(o)
        e.branch("s_cbranch_scc0", lab)
        if nwaves < 8:
            e.op(f"s_cmp_lt_u32 s3, {nwaves}")
            e.branch("s_cbranch_scc0", lab)
        here = e.newlabel("pc")
        e.op("s_getpc_b64 s[8:9]")
        e.raw(here + ":")
        if start_expr is None:
            e.op(f"s_mov_b32 s{srd}, s8")
            e.op(f"s_mov_b32 s{srd+1}, s9")
        else:
            e.op(f"s_add_u32 s{srd}, s8, ({start_expr} - {here})")
            e.op(f"s_addc_u32 s{srd+1}, s9, 0")
            e.op(f"s_sub_u32 s{srd}, s{srd}, {nwaves*1024}")
            e.op(f"s_subb_u32 s{srd+1}, s{srd+1}, 0")
        e.op(f"s_mov_b32 s{srd+2}, {nwaves*1024}")
        e.op(f"s_mov_b32 s{srd+3}, 0x20000")
        e.op("s_lshl_b32 s8, s3, 10")
        e.op(f"v_lshlrev_b32 v{vtmp}, 4, v0")
        e.op(f"buffer_load_dwordx4 {vr(vdst)}, v{vtmp}, s[{srd}:{srd+3}], s8 offen", count=False)
        e.label(lab)

    def stage1_setup(self, s_s, s_h, vW, vX, vG, vN, T, SX, SW):
        e = self.e
        e.op(f"v_lshlrev_b32 v{vW}, 13, v{vG}")
        e.op(f"v_lshlrev_b32 v{T}, 4, v{vN}")
        e.op(f"v_add_u32 v{vW}, v{vW}, v{T}")
        e.op(f"s_mul_i32 s7, s{s_s}, 80")
        e.op("s_and_b32 s8, s3, 3")
        e.op("s_mul_i32 s8, s8, 20")
        e.op("s_add_u32 s7, s7, s8")
        e.op(f"v_add_u32 v{vX}, s7, v{vG}")
        e.op(f"v_lshlrev_b32 v{vX}, 1, v{vX}")
        e.op("s_lshl_b32 s14, s7, 13")
        e.op(f"s_lshl_b32 s8, s{s_h}, 8")
        e.op("s_add_u32 s14, s14, s8")

    def stage1_srds(self, SX, SW):
        e = self.e
        e.op("s_cmp_lt_u32 s3, 4")
        e.op(f"s_cselect_b32 s{SX}, s{P_AX}, s{P_BX}")
        e.op(f"s_cselect_b32 s{SX+1}, s{P_AX+1}, s{P_BX+1}")
        e.op(f"s_cselect_b32 s8, s{P_WQA}, s{P_BWQ}")
        e.op(f"s_cselect_b32 s9, s{P_WQA+1}, s{P_BWQ+1}")
        e.op(f"s_mov_b32 s{SX+2}, 1280")
        e.op(f"s_mov_b32 s{SX+3}, 0x20000")
        e.op(f"s_add_u32 s{SW}, s8, s14")
        e.op(f"s_addc_u32 s{SW+1}, s9, 0")
        e.op(f"s_mov_b32 s{SW+2}, {20*8192}")
        e.op(f"s_mov_b32 s{SW+3}, 0x20000")

    def stage1_issue(self, X, WQ, vX, vW, SX, SW):
        e, nt = self.e, self.c.nt
        for t in range(5):
            e.op(f"buffer_load_ushort v{X(t)}, v{vX}, {sr(SX,4)}, 0 offen offset:{8*t}", tag=("x", t))
        for t in range(5):
            e.op(f"s_mov_b32 s7, {t*32768}")
            e.op(f"buffer_load_dwordx4 {vr(WQ(t))}, v{vW}, {sr(SW,4)}, s7 offen {nt}", tag=("wq", t))

    def stage1_compute(self, X, WQ, MASK, A0, A1, ACC, vLDS, LQP):
        e = self.e
        for t in range(5):
            e.wait_vm(("wq", t))
            A = A0 if t % 2 == 0 else A1
            e.op(f"v_lshl_or_b32 v{X(t)}, v{X(t)}, 16, v{X(t)}")
            for r in range(4):
                e.op(f"v_and_b32 v{A+r}, v{X(t)}, v{MASK+r}")
            e.op(f"v_mfma_f32_16x16x32_bf16 {vr(ACC)}, {vr(A)}, {vr(WQ(t))}, {'0' if t == 0 else vr(ACC)}")
        self.exec_set(0xffffffff)
        e.op(f"ds_write_b128 v{vLDS}, {vr(ACC)} offset:{LQP}")
        self.exec_set(-1)

    def stage1_publish(self, s_s, s_h, vL, vL16, T, R, gq, LQP):
        e = self.e
        lab = e.newlabel("s1p")
        e.op("s_and_b32 s7, s3, 3")
        e.op("s_cmp_lg_u32 s7, 3")
        e.branch("s_cbranch_scc1", lab)
        e.op("s_setprio 2")
        e.op("s_and_b32 s7, s3, 4")
        e.op("s_lshl_b32 s7, s7, 9")
        if LQP:
            e.op(f"s_add_u32 s7, s7, {LQP}")
        e.op(f"v_lshlrev_b32 v{T}, 3, v{vL}")
        e.op(f"v_add_u32 v{T}, s7, v{T}")
        for w in range(4):
            e.op(f"ds_read_b64 {vr(R+2*w,2)}, v{T} offset:{512*w}")
        e.op(f"s_lshl_b32 s8, s{s_h}, 3")
        e.op(f"s_add_u32 s8, s8, s{s_s}")
        e.op("s_lshl_b32 s8, s8, 10")
        e.op("s_cmp_eq_u32 s3, 3")
        e.op(f"s_mov_b32 s9, {QB}")
        e.op(f"s_cselect_b32 s9, {QAQ}, s9")
        e.op("s_add_u32 s9, s9, s8")
        e.op(f"v_mov_b32 v{gq+1}, s{S_N}")
        e.op(f"v_mov_b32 v{gq+3}, s{S_N}")
        e.op("s_waitcnt lgkmcnt(0)")
        e.op(f"v_add_f32 v{R}, v{R}, v{R+2}")
        e.op(f"v_add_f32 v{R+1}, v{R+1}, v{R+3}")
        e.op(f"v_add_f32 v{R+4}, v{R+4}, v{R+6}")
        e.op(f"v_add_f32 v{R+5}, v{R+5}, v{R+7}")
        e.op(f"v_add_f32 v{gq}, v{R}, v{R+4}")
        e.op(f"v_add_f32 v{gq+2}, v{R+1}, v{R+5}")
        e.op(f"buffer_store_dwordx4 {vr(gq)}, v{vL16}, {sr(SRD_WS,4)}, s9 offen sc1", count=False)
        e.op("s_setprio 0")
        e.label(lab)

    def qpoll_issue(self, base, s_h, POLL, vL16):
        e = self.e
        e.op(f"s_lshl_b32 s8, s{s_h}, 13")
        e.op(f"s_add_u32 s8, s8, {base}")
        for p in range(8):
            e.op(f"buffer_load_dwordx4 {vr(POLL(p))}, v{vL16}, {sr(SRD_WS,4)}, s8 offen sc1", count=False)
            if p < 7:
                e.op("s_addk_i32 s8, 0x400")

    def qpoll_finish(self, base, s_h, POLL, vL16, vL, T, LQF):
        e = self.e
        self.spin_init()
        chk, done = e.newlabel("qchk"), e.newlabel("qdone")
        e.label(chk)
        self.tags_bad(T, [POLL(p) + k for p in range(8) for k in (1, 3)])
        e.op(f"v_cmp_ne_u32 vcc, 0, v{T}")
        e.op("s_cmp_eq_u64 vcc, 0")
        e.branch("s_cbranch_scc1", done)
        self.spin_step(done)
        self.qpoll_issue(base, s_h, POLL, vL16)
        e.op("s_waitcnt vmcnt(0)")
        e.branch("s_branch", chk)
        e.label(done)
        for step in (1, 2, 4):
            for p in range(0, 8, 2 * step):
                for k in (0, 2):
                    e.op(f"v_add_f32 v{POLL(p)+k}, v{POLL(p)+k}, v{POLL(p+step)+k}")
        a = POLL(0)
        e.op(f"v_cvt_pk_bf16_f32 v{a}, v{a}, v{a+2}")
        e.op(f"v_lshlrev_b32 v{T}, 2, v{vL}")
        e.op(f"v_add_u32 v{T}, {LQF}, v{T}")
        e.op(f"ds_write_b32 v{T}, v{a}")
        e.op("s_waitcnt lgkmcnt(0)")

    def build(self):
        e = self.e
        c = self.c
        e.raw(f"; @launch grid=(256,1,1) block=(512,1,1) lds={LDS_TOTAL}")
        e.raw('.amdgcn_target "amdgcn-amd-amdhsa--gfx950"')
        e.raw(".text")
        e.raw(f".globl {NAME}")
        e.raw(".p2align 8")
        e.raw(f".type {NAME},@function")
        e.raw(f"{NAME}:")
        e.op("s_cmp_ge_u32 s2, 256")
        e.op("s_cbranch_scc1 L_end")
        e.op("s_load_dwordx16 s[16:31], s[0:1], 0")
        e.op("s_load_dwordx16 s[32:47], s[0:1], 48")
        if c.prof:
            e.op("s_memrealtime s[78:79]")
        e.op("v_lshrrev_b32 v1, 6, v0")
        e.op("v_and_b32 v0, 63, v0")
        e.op("v_readfirstlane_b32 s3, v1")
        if c.prof:
            for i in range(16):
                e.op(f"s_mov_b32 s{80+i}, 0")
        e.op("v_lshrrev_b32 v1, 4, v0")
        e.op("v_and_b32 v2, 15, v0")
        e.op("s_cmp_lt_u32 s2, 64")
        e.op("s_cbranch_scc1 L_A")
        self.gen_B()
        e.label("L_A")
        self.gen_A()
        e.raw("L_end:")
        e.raw("    s_endpgm")
        e.raw('.section .rodata,"a"')
        e.raw(".p2align 6")
        e.raw(f".amdhsa_kernel {NAME}")
        e.raw("  .amdhsa_next_free_vgpr 256")
        e.raw("  .amdhsa_next_free_sgpr 102")
        e.raw("  .amdhsa_accum_offset 256")
        e.raw("  .amdhsa_group_segment_fixed_size 0")
        e.raw("  .amdhsa_kernarg_size 112")
        e.raw("  .amdhsa_user_sgpr_count 2")
        e.raw("  .amdhsa_user_sgpr_kernarg_segment_ptr 1")
        e.raw("  .amdhsa_system_sgpr_workgroup_id_x 1")
        e.raw(".end_amdhsa_kernel")
        return e.text()

    def gen_B(self):
        e, c = self.e, self.c
        self.in_B = True
        S_J, S_H = 5, 6
        e.op("s_sub_u32 s7, s2, 64")
        e.op("s_and_b32 s8, s7, 7")
        e.op("s_lshr_b32 s7, s7, 3")
        e.op("s_mul_i32 s9, s7, 43")
        e.op("s_lshr_b32 s9, s9, 8")
        e.op("s_mul_i32 s10, s9, 6")
        e.op(f"s_sub_u32 s{S_J}, s7, s10")
        e.op("s_lshl_b32 s8, s8, 2")
        e.op(f"s_add_u32 s{S_H}, s8, s9")
        B = self.B = type("R", (), {})()
        B.L, B.G, B.Nn = 0, 1, 2
        B.MASK = 4
        B.Q = 8
        B.ACC = 12
        B.A0, B.A1 = 16, 20
        B.vKV, B.vWQ, B.vX, B.vLDS, B.vWS = 24, 25, 26, 27, 28
        B.T = 29
        B.P0, B.P1, B.PD0, B.PD1, B.M, B.Lw = 40, 41, 42, 43, 44, 45
        B.FW = 46
        B.MW = 47
        B.WO = 48
        B.K = 64
        e.op(f"v_lshrrev_b32 v3, 1, v{B.Nn}")
        self.make_masks(B.MASK, 3, B.Nn, B.T, B.T + 1)
        e.op(f"s_lshl_b32 s7, s3, 10")
        e.op(f"v_lshlrev_b32 v{B.vKV}, 4, v{B.L}")
        e.op(f"v_add_u32 v{B.vKV}, s7, v{B.vKV}")
        self.stage1_setup(S_J, S_H, B.vWQ, B.vX, B.G, B.Nn, B.T, 68, 60)
        e.op("s_lshl_b32 s9, s3, 9")
        e.op(f"v_lshlrev_b32 v{B.vLDS}, 5, v{B.Nn}")
        e.op(f"v_lshlrev_b32 v{B.T+1}, 4, v{B.G}")
        e.op(f"v_add3_u32 v{B.vLDS}, v{B.vLDS}, v{B.T+1}, s9")
        e.op(f"v_lshlrev_b32 v{B.vWS}, 4, v{B.L}")
        e.op("s_waitcnt lgkmcnt(0)")
        if c.prof:
            e.op("s_mov_b32 s80, s78")
        e.op(f"s_load_dword s{S_N}, {sr(P_WS)}, {EPOCH}")
        SK, SV, SWQ, SWO, SX = 52, 56, 60, 64, 68
        self.SK, self.SV, self.SWQ, self.SWO, self.SX = SK, SV, SWQ, SWO, SX
        self.stage1_srds(SX, SWQ)
        self.stage1_issue(lambda t: B.T + 2 + t, lambda t: 236 + 4 * t, B.vX, B.vWQ, SX, SWQ)
        e.op(f"s_lshl_b32 s9, s{S_H}, 20")
        e.op(f"s_mul_i32 s10, s{S_J}, {168*1024}")
        e.op("s_add_u32 s9, s9, s10")
        self.srd(SK, P_BK, "s9", 184 * 1024)
        self.srd(SV, P_BV, "s9", 184 * 1024)
        self.srd(SRD_WS, P_WS, None, WS_USED)
        e.op(f"s_mul_i32 s9, s{S_H}, {128*1280}")
        e.op(f"s_lshl_b32 s10, s{S_J}, 8")
        e.op("s_add_u32 s9, s9, s10")
        self.srd(SWO, P_BWO, "s9", 128 * 1280)
        e.op(f"s_cmp_eq_u32 s{S_J}, 5")
        e.branch("s_cbranch_scc1", "L_B5")
        saved = list(e.vm)
        e.raw("L_B21:")
        self.gen_B_variant(21, True)
        e.label("L_B5")
        e.vm = saved
        self.gen_B_variant(23, False)

    def gen_B_variant(self, NR, has_wo):
        e, c, B = self.e, self.c, self.B
        S_J, S_H = 5, 6
        SK, SV, SWQ, SWO, SX = self.SK, self.SV, self.SWQ, self.SWO, self.SX
        nt = c.nt
        K = lambda t: B.K + 4 * t
        V = lambda t: B.K + 4 * NR + 4 * t
        assert V(NR - 1) + 3 <= 255
        WQ = lambda t: 236 + 4 * t
        POLL = lambda p: V(NR - 8 + p)
        X = lambda t: B.T + 2 + t
        LQP, LOP, LFP, LQF, LML = 0, 4096, 8192, 12288, 12544
        COMM = 7
        S_KO, S_VO, S_T = 72, 73, 7

        def comm_begin():
            lab = e.newlabel("nc")
            e.op(f"s_cmp_lg_u32 s3, {COMM}")
            e.branch("s_cbranch_scc1", lab)
            return lab

        def comm_end(lab):
            e.label(lab)

        nK = [0]
        nV = [0]

        def issue_K():
            t = nK[0]
            nK[0] += 1
            e.op(f"buffer_load_dwordx4 {vr(K(t))}, v{B.vKV}, {sr(SK,4)}, s{S_KO} offen {nt}", tag=("K", t))
            e.op(f"s_addk_i32 s{S_KO}, 0x2000")

        def issue_V():
            t = nV[0]
            nV[0] += 1
            e.op(f"buffer_load_dwordx4 {vr(V(t))}, v{B.vKV}, {sr(SV,4)}, s{S_VO} offen {nt}", tag=("V", t))
            e.op(f"s_addk_i32 s{S_VO}, 0x2000")

        e.op(f"s_mov_b32 s{S_KO}, 0")
        e.op(f"s_mov_b32 s{S_VO}, 0")
        for _ in range(c.K0):
            issue_K()
        if has_wo:
            self.code_prefetch(["s_cmp_lt_u32 s2, 72"], None, 6, B.T + 8, B.WO, 92)
        else:
            self.code_prefetch([f"s_lshr_b32 s7, s2, 3", "s_cmp_eq_u32 s7, 13"], None, 5, B.T + 8, B.WO, 92)
        self.stamp(1)
        e.op("s_waitcnt lgkmcnt(0)")
        e.op(f"s_add_u32 s{S_N}, s{S_N}, 0x{NONCE_STEP:x}")
        self.stage1_compute(X, WQ, B.MASK, B.A0, B.A1, B.ACC, B.vLDS, LQP)
        e.op("s_waitcnt lgkmcnt(0)")
        e.op("s_barrier")
        self.stamp(2)
        self.stage1_publish(S_J, S_H, B.L, B.vWS, B.T, POLL(0), B.T + 7, LQP)
        while nK[0] < NR:
            e.wait_vm_window(c.WK - 1)
            if nK[0] in (4, 8, 12, 16, 20):
                self.stamp(nK[0] // 4, bw=True)
            issue_K()
            if nK[0] == c.POLL_A:
                lab = comm_begin()
                self.qpoll_issue(QB, S_H, POLL, B.vWS)
                comm_end(lab)
                e.mark("qpoll")
        for _ in range(c.PREV):
            e.wait_vm_window(c.WK - 1)
            issue_V()
        lab = comm_begin()
        e.op("s_setprio 2")
        e.wait_vm("qpoll", keep=True)
        self.qpoll_finish(QB, S_H, POLL, B.vWS, B.L, B.T, LQF)
        e.op("s_setprio 0")
        comm_end(lab)
        e.op("s_barrier")
        self.stamp(3)
        e.op(f"v_lshlrev_b32 v{B.T}, 4, v{B.Nn}")
        e.op(f"ds_read_b128 {vr(B.Q)}, v{B.T} offset:{LQF}")
        e.op("s_waitcnt lgkmcnt(0)")
        def dots(ts):
            for t in ts:
                e.wait_vm(("K", t))
            for k in range(4):
                for t in ts:
                    e.op(f"v_dot2_f32_bf16 v{K(t)}, v{K(t)+k}, v{B.Q+k}, {'0' if k == 0 else 'v%d' % K(t)}")
        chunks = [list(range(i, min(i + 4, NR))) for i in range(0, NR, 4)]
        for ci, ch in enumerate(chunks):
            if nV[0] < NR and ci in (0, 3):
                issue_V()
            dots(ch)
        S0 = self.transpose_reduce([K(t) for t in range(16)], B.P0)
        if nV[0] < NR:
            issue_V()
        S1 = self.transpose_reduce([K(t) for t in range(16, NR)], B.P1)
        nvalid = NR - 16
        e.op(f"s_mov_b32 s7, {f32hex(SCALE)}")
        e.op(f"v_mul_f32 v{B.P0}, s7, v{B.P0}")
        e.op(f"v_mul_f32 v{B.P1}, s7, v{B.P1}")
        e.op(f"v_mov_b32 v{B.T}, 0xff800000")
        e.op(f"v_cmp_gt_u32 vcc, {nvalid}, v{B.Nn}")
        e.op(f"v_cndmask_b32 v{B.P1}, v{B.T}, v{B.P1}, vcc")
        e.op(f"v_max_f32 v{B.M}, v{B.P0}, v{B.P1}")
        self.wave_reduce("v_max_f32", B.M, B.T)
        e.op(f"v_sub_f32 v{B.P0}, v{B.P0}, v{B.M}")
        e.op(f"v_sub_f32 v{B.P1}, v{B.P1}, v{B.M}")
        e.op(f"v_exp_f32 v{B.P0}, v{B.P0}")
        e.op(f"v_exp_f32 v{B.P1}, v{B.P1}")
        e.op(f"v_cvt_pk_bf16_f32 v{B.PD0}, v{B.P0}, v{B.P0}")
        e.op(f"v_cvt_pk_bf16_f32 v{B.PD1}, v{B.P1}, v{B.P1}")
        e.op(f"v_lshlrev_b32 v{B.P0}, 16, v{B.PD0}")
        e.op(f"v_lshlrev_b32 v{B.P1}, 16, v{B.PD1}")
        e.op(f"v_add_f32 v{B.Lw}, v{B.P0}, v{B.P1}")
        self.wave_reduce("v_add_f32", B.Lw, B.T)
        assert B.Lw == B.M + 1 and B.M % 2 == 0
        e.op("s_lshl_b32 s7, s3, 3")
        e.op(f"v_mov_b32 v{B.T}, s7")
        self.exec_set(1)
        e.op(f"ds_write_b64 v{B.T}, {vr(B.M,2)} offset:{LML}")
        self.exec_set(-1)
        e.op("s_waitcnt lgkmcnt(0)")
        e.op("s_barrier")
        self.stamp(4)
        T = B.T
        lab = comm_begin()
        e.op("s_setprio 2")
        e.op(f"v_and_b32 v{T}, 7, v{B.L}")
        e.op(f"v_lshlrev_b32 v{T+1}, 3, v{T}")
        e.op(f"ds_read_b64 {vr(T+3,2)}, v{T+1} offset:{LML}")
        e.op("s_waitcnt lgkmcnt(0)")
        e.op(f"v_mov_b32 v{B.MW}, v{T+3}")
        e.op(f"v_mov_b32 v{T+5}, v{T+3}")
        for k in (4, 2, 1):
            e.op(f"v_max_f32_dpp v{T+5}, v{T+5}, v{T+5} row_ror:{k} row_mask:0xf bank_mask:0xf")
        e.op(f"v_sub_f32 v{T+6}, v{T+3}, v{T+5}")
        e.op(f"v_exp_f32 v{T+6}, v{T+6}")
        e.op(f"v_mul_f32 v{T+6}, v{T+6}, v{T+4}")
        for k in (4, 2, 1):
            e.op(f"v_add_f32_dpp v{T+6}, v{T+6}, v{T+6} row_ror:{k} row_mask:0xf bank_mask:0xf")
        g4 = T + 7
        assert g4 % 2 == 0
        e.op(f"v_mov_b32 v{g4}, v{T+5}")
        e.op(f"v_mov_b32 v{g4+1}, s{S_N}")
        e.op(f"v_mov_b32 v{g4+2}, v{T+6}")
        e.op(f"v_mov_b32 v{g4+3}, s{S_N}")
        e.op(f"s_lshl_b32 s8, s{S_H}, 7")
        e.op(f"s_add_u32 s8, s8, {MLG}")
        e.op(f"s_lshl_b32 s9, s{S_J}, 4")
        e.op("s_add_u32 s9, s9, s8")
        e.op(f"v_mov_b32 v{T+1}, 0")
        self.exec_set(1)
        e.op(f"buffer_store_dwordx4 {vr(g4)}, v{T+1}, {sr(SRD_WS,4)}, s9 offen sc1", count=False)
        self.exec_set(-1)
        e.op("s_setprio 0")
        comm_end(lab)
        def a_regs(t):
            A = B.A0 if t % 2 == 0 else B.A1
            pd = B.PD0 if t < 16 else B.PD1
            for r in range(4):
                e.op(f"v_and_b32_dpp v{A+r}, v{pd}, v{B.MASK+r} row_newbcast:{t & 15} row_mask:0xf bank_mask:0xf")
            return A
        ML_ISSUE = min(6, NR - 8)
        ML_CHECK = NR - 5
        wo_issued = False
        A = a_regs(0)
        for t in range(NR):
            while nV[0] < NR and nV[0] < t + c.W:
                issue_V()
            if nV[0] == NR and has_wo and not wo_issued:
                for u in range(4):
                    if u == 0:
                        e.op("s_lshl_b32 s7, s3, 4")
                        e.op(f"v_add_u32 v{T}, s7, v{B.G}")
                        e.op(f"v_mul_u32_u24 v{T}, 1280, v{T}")
                        e.op(f"v_lshlrev_b32 v{T+1}, 4, v{B.Nn}")
                        e.op(f"v_add_u32 v{B.vWQ}, v{T}, v{T+1}")
                    e.op(f"s_mov_b32 s7, {5120*u}")
                    e.op(f"buffer_load_dwordx4 {vr(B.WO+4*u)}, v{B.vWQ}, {sr(SWO,4)}, s7 offen {nt}", tag=("wo", u))
                wo_issued = True
            e.wait_vm(("V", t))
            if t in (0, 4, 8, 12, 16, 20):
                self.stamp(6 + t // 4, bw=True)
            e.op(f"v_mfma_f32_16x16x32_bf16 {vr(B.ACC)}, {vr(A)}, {vr(V(t))}, {'0' if t == 0 else vr(B.ACC)}")
            if t + 1 < NR:
                A = a_regs(t + 1)
            if t == ML_ISSUE:
                lab = comm_begin()
                self.ml_poll_issue(B, T)
                comm_end(lab)
                e.mark("mlpoll")
            if t == ML_CHECK:
                lab = comm_begin()
                e.wait_vm("mlpoll", keep=True)
                self.ml_poll_finish(B, T)
                comm_end(lab)
        self.stamp(5)
        self.exec_set(0xffffffff)
        e.op(f"ds_write_b128 v{B.vLDS}, {vr(B.ACC)} offset:{LOP}")
        self.exec_set(-1)
        e.op("s_waitcnt lgkmcnt(0)")
        e.op("s_barrier")
        self.stamp(6)
        lab = comm_begin()
        e.op("s_setprio 2")
        a = K(0)
        e.op(f"v_lshlrev_b32 v{T}, 3, v{B.L}")
        for w in range(8):
            e.op(f"ds_read_b64 {vr(a+2*w,2)}, v{T} offset:{LOP+512*w}")
        e.op(f"s_mul_i32 s8, s{S_H}, 6")
        e.op(f"s_add_u32 s9, s8, s{S_J}")
        e.op("s_lshl_b32 s9, s9, 10")
        e.op(f"s_add_u32 s9, s9, {OB}")
        e.op(f"v_mov_b32 v{g4+1}, s{S_N}")
        e.op(f"v_mov_b32 v{g4+3}, s{S_N}")
        e.op("s_waitcnt lgkmcnt(0)")
        e.op(f"v_mul_f32 v{g4}, s92, v{a}")
        e.op(f"v_mul_f32 v{g4+2}, s92, v{a+1}")
        e.op(f"v_mul_f32 v{T+1}, s93, v{a+2}")
        e.op(f"v_mul_f32 v{T+2}, s93, v{a+3}")
        for w in range(2, 8, 2):
            e.op(f"v_fmac_f32 v{g4}, s{92+w}, v{a+2*w}")
            e.op(f"v_fmac_f32 v{g4+2}, s{92+w}, v{a+2*w+1}")
            e.op(f"v_fmac_f32 v{T+1}, s{93+w}, v{a+2*w+2}")
            e.op(f"v_fmac_f32 v{T+2}, s{93+w}, v{a+2*w+3}")
        e.op(f"v_add_f32 v{g4}, v{g4}, v{T+1}")
        e.op(f"v_add_f32 v{g4+2}, v{g4+2}, v{T+2}")
        e.op(f"buffer_store_dwordx4 {vr(g4)}, v{B.vWS}, {sr(SRD_WS,4)}, s9 offen sc1", count=False)
        e.op("s_setprio 0")
        comm_end(lab)
        self.stamp(7)
        if has_wo:
            self.gen_B_tail(K, T, LFP, COMM, comm_begin, comm_end)
        self.stamp(10)
        self.dump_stamps("B")
        e.op("s_endpgm")

    def pending_K(self, e):
        return sum(1 for t in e.vm if isinstance(t, tuple) and t[0] == "K")

    def copy4(self, base):
        if base % 2 == 0:
            self.c4 = base
        else:
            raise AssertionError("odd base")

    def transpose_reduce(self, R, dst):
        e = self.e
        n = len(R)
        for t in range(8):
            if t < n:
                e.op(f"v_add_f32_dpp v{R[t]}, v{R[t]}, v{R[t]} row_ror:8 row_mask:0xf bank_mask:0x3")
        for t in range(8):
            if t + 8 < n:
                e.op(f"v_add_f32_dpp v{R[t]}, v{R[t+8]}, v{R[t+8]} row_ror:8 row_mask:0xf bank_mask:0xc")
        m = min(n, 8)
        for t in range(4):
            if t < m:
                e.op(f"v_add_f32_dpp v{R[t]}, v{R[t]}, v{R[t]} row_half_mirror row_mask:0xf bank_mask:0x5")
        for t in range(4):
            if t + 4 < m:
                e.op(f"v_add_f32_dpp v{R[t]}, v{R[t+4]}, v{R[t+4]} row_half_mirror row_mask:0xf bank_mask:0xa")
        assert m >= 4
        for t in range(4):
            e.op(f"v_add_f32_dpp v{R[t]}, v{R[t]}, v{R[t]} quad_perm:[2,3,0,1] row_mask:0xf bank_mask:0xf")
        e.op("s_mov_b32 s8, 0xcccccccc")
        e.op("s_mov_b32 s9, 0xcccccccc")
        e.op("s_mov_b32 s10, 0xaaaaaaaa")
        e.op("s_mov_b32 s11, 0xaaaaaaaa")
        e.op(f"v_cndmask_b32 v{R[0]}, v{R[0]}, v{R[2]}, s[8:9]")
        e.op(f"v_cndmask_b32 v{R[1]}, v{R[1]}, v{R[3]}, s[8:9]")
        for t in range(2):
            e.op(f"v_add_f32_dpp v{R[t]}, v{R[t]}, v{R[t]} quad_perm:[1,0,3,2] row_mask:0xf bank_mask:0xf")
        e.op(f"v_cndmask_b32 v{dst}, v{R[0]}, v{R[1]}, s[10:11]")
        return dst

    def ml_poll_issue(self, B, T):
        e = self.e
        S_H = 6
        e.op(f"v_and_b32 v{T}, 7, v{B.L}")
        e.op(f"v_min_u32 v{T}, 5, v{T}")
        e.op(f"v_lshlrev_b32 v{T}, 4, v{T}")
        e.op(f"s_lshl_b32 s8, s{S_H}, 7")
        e.op(f"s_add_u32 s8, s8, {MLG}")
        e.op(f"buffer_load_dwordx4 {vr(T+7)}, v{T}, {sr(SRD_WS,4)}, s8 offen sc1", count=False)

    def ml_poll_finish(self, B, T):
        e = self.e
        g4 = T + 7
        self.spin_init()
        chk, done = e.newlabel("mlchk"), e.newlabel("mldone")
        e.label(chk)
        self.tags_bad(T + 1, [g4 + 1, g4 + 3])
        e.op(f"v_cmp_ne_u32 vcc, 0, v{T+1}")
        e.op("s_cmp_eq_u64 vcc, 0")
        e.branch("s_cbranch_scc1", done)
        self.spin_step(done)
        self.ml_poll_issue(B, T)
        e.op("s_waitcnt vmcnt(0)")
        e.branch("s_branch", chk)
        e.label(done)
        e.op(f"v_and_b32 v{T}, 7, v{B.L}")
        e.op(f"v_cmp_gt_u32 vcc, 6, v{T}")
        e.op(f"v_cndmask_b32 v{g4+2}, 0, v{g4+2}, vcc")
        e.op(f"v_mov_b32 v{T+2}, v{g4}")
        for k in (4, 2, 1):
            e.op(f"v_max_f32_dpp v{T+2}, v{T+2}, v{T+2} row_ror:{k} row_mask:0xf bank_mask:0xf")
        e.op(f"v_sub_f32 v{T+3}, v{g4}, v{T+2}")
        e.op(f"v_exp_f32 v{T+3}, v{T+3}")
        e.op(f"v_mul_f32 v{T+3}, v{T+3}, v{g4+2}")
        for k in (4, 2, 1):
            e.op(f"v_add_f32_dpp v{T+3}, v{T+3}, v{T+3} row_ror:{k} row_mask:0xf bank_mask:0xf")
        e.op(f"v_rcp_f32 v{T+3}, v{T+3}")
        e.op(f"v_sub_f32 v{T+4}, v{B.MW}, v{T+2}")
        e.op(f"v_exp_f32 v{T+4}, v{T+4}")
        e.op(f"v_mul_f32 v{T+4}, v{T+4}, v{T+3}")
        for w in range(8):
            e.op(f"v_readlane_b32 s{92+w}, v{T+4}, {w}")

    def gen_B_tail(self, K, T, LFP, COMM, comm_begin, comm_end):
        e, c, B = self.e, self.c, self.B
        S_J, S_H = 5, 6
        g4 = K(8)
        e.op(f"v_lshrrev_b32 v{T}, 3, v{B.L}")
        e.op(f"v_lshlrev_b32 v{T}, 10, v{T}")
        e.op(f"v_and_b32 v{T+1}, 7, v{B.L}")
        e.op(f"v_lshlrev_b32 v{T+1}, 4, v{T+1}")
        e.op(f"s_lshl_b32 s8, s3, 7")
        e.op(f"v_add3_u32 v{T}, v{T}, v{T+1}, s8")
        e.op(f"s_mul_i32 s8, s{S_H}, {6*1024}")
        e.op(f"s_add_u32 s8, s8, {OB}")
        for k in range(4):
            e.op(f"v_mov_b32 v{g4+k}, 0")
        self.spin_init()
        poll, done = e.newlabel("opoll"), e.newlabel("odone")
        self.exec_set(0x0000ffffffffffff)
        e.label(poll)
        e.op(f"buffer_load_dwordx4 {vr(g4)}, v{T}, {sr(SRD_WS,4)}, s8 offen sc1", count=False)
        e.op("s_waitcnt vmcnt(0)")
        e.op(f"v_xor_b32 v{T+2}, s{S_N}, v{g4+1}")
        e.op(f"v_xor_b32 v{T+3}, s{S_N}, v{g4+3}")
        e.op(f"v_or_b32 v{T+2}, v{T+2}, v{T+3}")
        e.op(f"v_cmp_ne_u32 vcc, 0, v{T+2}")
        e.op("s_cmp_eq_u64 vcc, 0")
        e.branch("s_cbranch_scc1", done)
        self.spin_step(done)
        e.branch("s_branch", poll)
        e.label(done)
        e.vm = []
        self.exec_set(-1)
        self.stamp(8)
        for k in (0, 2):
            e.op(f"v_add_f32_dpp v{g4+k}, v{g4+k}, v{g4+k} row_ror:8 row_mask:0xf bank_mask:0xf")
        for k in (0, 2):
            e.op(f"v_mov_b32 v{T+2+k//2}, v{g4+k}")
        for k in (0, 2):
            e.op(f"v_permlane16_swap_b32 v{g4+k}, v{T+2+k//2}")
        for k in (0, 2):
            e.op(f"v_add_f32 v{g4+k}, v{g4+k}, v{T+2+k//2}")
        for k in (0, 2):
            e.op(f"v_mov_b32 v{T+2+k//2}, v{g4+k}")
        for k in (0, 2):
            e.op(f"v_permlane32_swap_b32 v{g4+k}, v{T+2+k//2}")
        for k in (0, 2):
            e.op(f"v_add_f32 v{g4+k}, v{g4+k}, v{T+2+k//2}")
        e.op(f"v_cvt_pk_bf16_f32 v{g4}, v{g4}, v{g4}")
        e.op(f"v_cvt_pk_bf16_f32 v{g4+2}, v{g4+2}, v{g4+2}")
        e.op("s_mov_b32 s8, 0xffff0000")
        e.op("s_mov_b32 s9, 0xffff0000")
        e.op(f"v_cndmask_b32 v{g4}, v{g4}, v{g4+2}, s[8:9]")
        e.op(f"v_mov_b32_dpp v{g4}, v{g4} row_shl:1 row_mask:0xc bank_mask:0xf")
        for u in range(4):
            A = B.A0 if u % 2 == 0 else B.A1
            for r in range(4):
                e.op(f"v_and_b32_dpp v{A+r}, v{g4}, v{B.MASK+r} row_newbcast:{2*u} row_mask:0xf bank_mask:0xf")
            e.op(f"v_mfma_f32_16x16x32_bf16 {vr(B.ACC)}, {vr(A)}, {vr(B.WO+4*u)}, {'0' if u == 0 else vr(B.ACC)}")
        self.exec_set(0xffffffff)
        e.op(f"ds_write_b128 v{B.vLDS}, {vr(B.ACC)} offset:{LFP}")
        self.exec_set(-1)
        e.op("s_waitcnt lgkmcnt(0)")
        e.op("s_barrier")
        self.stamp(9)
        lab = comm_begin()
        a = K(0)
        e.op(f"v_lshlrev_b32 v{T}, 3, v{B.L}")
        for w in range(8):
            e.op(f"ds_read_b64 {vr(a+2*w,2)}, v{T} offset:{LFP+512*w}")
        e.op(f"s_lshl_b32 s8, s{S_J}, 5")
        e.op(f"s_add_u32 s8, s8, s{S_H}")
        e.op("s_lshl_b32 s8, s8, 10")
        e.op(f"s_add_u32 s8, s8, {FB}")
        g = T + 7
        e.op(f"v_mov_b32 v{g+1}, s{S_N}")
        e.op(f"v_mov_b32 v{g+3}, s{S_N}")
        e.op("s_waitcnt lgkmcnt(0)")
        for w in (1, 3, 5, 7):
            e.op(f"v_add_f32 v{a+2*(w-1)}, v{a+2*(w-1)}, v{a+2*w}")
            e.op(f"v_add_f32 v{a+2*(w-1)+1}, v{a+2*(w-1)+1}, v{a+2*w+1}")
        for w in (2, 6):
            e.op(f"v_add_f32 v{a+2*(w-2)}, v{a+2*(w-2)}, v{a+2*w}")
            e.op(f"v_add_f32 v{a+2*(w-2)+1}, v{a+2*(w-2)+1}, v{a+2*w+1}")
        e.op(f"v_add_f32 v{g}, v{a}, v{a+8}")
        e.op(f"v_add_f32 v{g+2}, v{a+1}, v{a+9}")
        e.op(f"buffer_store_dwordx4 {vr(g)}, v{B.vWS}, {sr(SRD_WS,4)}, s8 offen sc1", count=False)
        comm_end(lab)

    def gen_A(self):
        self.in_B = False
        from gen_a import gen_A
        gen_A(self)


L_C = 0
C_STRIDE = 1056
L_QA = 128 * C_STRIDE
L_P = L_QA + 16 * C_STRIDE
P_STRIDE = 288
L_QACC = L_P + 16 * P_STRIDE
L_MX = L_QACC + 256
L_LX = L_MX + 512
L_CTX = L_LX + 512
L_END = L_CTX + 256
LDS_TOTAL = 160 * 1024
assert L_END <= LDS_TOTAL


def main():
    ap = argparse.ArgumentParser()
    ap.add_argument("-o", default="concat_heads__compressed_kv_cla__mha_block_cached__decode.s")
    ap.add_argument("--set", nargs="*", default=[])
    a = ap.parse_args()
    kw = {}
    for s in a.set:
        k, v = s.split("=")
        try:
            v = eval(v) if v.startswith("[") else int(v)
        except ValueError:
            v = {"True": True, "False": False, "None": None}.get(v, v)
        kw[k] = v
    g = Gen(Cfg(**kw))
    txt = g.build()
    open(a.o, "w").write(txt)
    print("wrote", a.o, len(txt), "bytes;", g.e.nops, "nop pads")


if __name__ == "__main__":
    main()
```

```python
import gen as G
from gen import (sr, vr, f32hex, SCALE, S_N, SRD_WS, P_AX, P_CKV, P_WQA, P_WUK, P_WUV, P_WOA, P_OUT, P_WS,
                 EPOCH, QA, QAF, MLA, OAF, OA, FA, FB, NONCE_STEP,
                 L_C, C_STRIDE, L_QA, L_P, P_STRIDE, L_QACC, L_MX, L_LX, L_CTX)


def gen_A(g):
    e, c = g.e, g.c
    tail = getattr(c, "tail", False)
    if tail:
        real_stamp = g.stamp
        keep = {True: (9, 10, 11), "p3": (9, 10, 11), "t2": (4, 5, 6, 7, 8)}[tail]
        g.stamp = lambda i, **kw: real_stamp(i) if i in keep else None
    tstamp = (lambda i: real_stamp(i)) if tail is True else (lambda i: None)
    pstamp = (lambda i: real_stamp(i)) if tail == "p3" else (lambda i: None)
    t2stamp = (lambda i: real_stamp(i)) if tail == "t2" else (lambda i: None)
    nt = c.nt
    e.vm = []
    S_DH, S_H, S_KB, S_HG, S_P = 5, 6, 12, 13, 76
    SX, SWQ, SUK, SUV, SWO, SCK = 52, 56, 60, 64, 68, 72
    L, Gq, N_ = 0, 1, 2
    M8, M4 = 4, 8
    ACC = 12
    A0, A1 = 16, 20
    vX, vWQ, vUK, vWO, vL16, vRHO, vK = 24, 25, 26, 27, 28, 29, 30
    QC2 = 40

    T = 36
    WQ = lambda t: 48 + 4 * t
    UK = lambda t: 88 + 4 * t
    UV = lambda t: 120 + 4 * t
    WO = lambda t: 152 + 4 * t
    X = lambda t: 192 + t
    BUF0, BUF1 = 192, 224
    VALID = 0xFF00FF0000FF00FF

    e.op("s_lshr_b32 s7, s2, 3")
    e.op("s_and_b32 s8, s2, 7")
    e.op("s_lshl_b32 s8, s8, 3")
    e.op(f"s_add_u32 s{S_P}, s7, s8")
    e.op(f"s_lshr_b32 s6, s{S_P}, 1")
    e.op(f"s_and_b32 s5, s{S_P}, 1")
    e.op("s_and_b32 s12, s2, 7")
    e.op("s_lshr_b32 s7, s2, 4")
    e.op("s_lshl_b32 s7, s7, 3")
    e.op("s_add_u32 s12, s12, s7")
    e.op("s_lshr_b32 s13, s2, 3")
    e.op("s_and_b32 s13, s13, 1")
    S_CKX = 79 if not c.prof else 14
    S_CKX = 101
    e.op(f"s_lshl_b32 s{S_CKX}, s{S_HG}, 3")
    S_S = 77
    e.op(f"s_add_u32 s{S_S}, s{S_DH}, 6")
    vS1W, vS1X, vLDS = 25, 24, 33
    X1 = lambda t: 192 + t
    W1 = lambda t: 48 + 4 * t
    LQP, LQF = L_QA, L_QA + 4096
    e.op(f"v_lshrrev_b32 v3, 1, v{N_}")
    g.make_masks(M4, 3, N_, T, T + 1)
    g.stage1_setup(S_S, S_H, vS1W, vS1X, Gq, N_, T, SX, SWQ)
    e.op("s_lshl_b32 s9, s3, 9")
    e.op(f"v_lshlrev_b32 v{vLDS}, 5, v{N_}")
    e.op(f"v_lshlrev_b32 v{T+1}, 4, v{Gq}")
    e.op(f"s_add_u32 s9, s9, {LQP}")
    e.op(f"v_add3_u32 v{vLDS}, v{vLDS}, v{T+1}, s9")
    e.op("s_lshl_b32 s7, s3, 5")
    e.op(f"v_lshlrev_b32 v{T}, 3, v{Gq}")
    e.op(f"v_add_u32 v{T}, s7, v{T}")
    e.op(f"v_lshlrev_b32 v{T}, 13, v{T}")
    e.op(f"v_lshlrev_b32 v{T+1}, 4, v{N_}")
    vUK2 = 34
    e.op(f"v_add_u32 v{vUK2}, v{T}, v{T+1}")
    e.op("s_waitcnt lgkmcnt(0)")
    if c.prof:
        e.op("s_mov_b32 s80, s78")
    e.op(f"s_load_dword s{S_N}, {sr(P_WS)}, {EPOCH}")
    g.stage1_srds(SX, SWQ)
    g.stage1_issue(X1, W1, vS1X, vS1W, SX, SWQ)
    e.op(f"s_lshl_b32 s9, s{S_H}, 8")
    e.op(f"s_lshl_b32 s10, s{S_DH}, 21")
    e.op("s_add_u32 s9, s9, s10")
    g.srd(SUK, P_WUK, "s9", 256 * 8192)
    def issue_uk(t):
        e.op(f"s_mov_b32 s7, {t*8192}")
        e.op(f"buffer_load_dwordx4 {vr(UK(t))}, v{vUK2}, {sr(SUK,4)}, s7 offen {nt}", tag=("uk", t))

    def issue_ck(i):
        e.op(f"s_lshl_b32 s7, s3, 4")
        if c.ckrot:
            e.op(f"s_xor_b32 s8, s{S_CKX}, {i}")
            e.op("s_add_u32 s7, s7, s8")
        else:
            e.op(f"s_add_u32 s7, s7, {i}")
        e.op(f"s_mul_i32 s8, s7, {C_STRIDE}")
        e.op("s_lshl_b32 s7, s7, 10")
        e.op("s_mov_b32 m0, s8")
        e.op(f"buffer_load_dwordx4 v{vL16}, {sr(SCK,4)}, s7 offen {c.nt_ckv} lds", tag=("ck", i))

    def issue_uv(t):
        e.op(f"s_mov_b32 s7, {t*8192}")
        e.op(f"buffer_load_dwordx4 {vr(UV(t))}, v{vUK}, {sr(SUV,4)}, s7 offen {nt}", tag=("uv", t))

    def issue_wo(t):
        r2, cb = t // 5, t % 5
        e.op(f"s_mov_b32 s7, {5120*r2}")
        e.op(f"buffer_load_dwordx4 {vr(WO(t))}, v{vWO}, {sr(SWO,4)}, s7 offen offset:{256*cb} {nt}", tag=("wo", t))
    queue = ([(issue_uk, t) for t in range(8)] + [(issue_ck, t) for t in range(16)] +
             [(issue_uv, t) for t in range(8)] + [(issue_wo, t) for t in range(10)])
    sched = list(c.PFA)

    def pf(point, upto=None):
        n = sched[point] if point < len(sched) else 0
        while queue and (n > 0 or (upto is not None and any(f is upto for f, _ in queue))):
            f, t = queue.pop(0)
            f(t)
            n -= 1
    pf(0)
    g.code_prefetch(["s_cmp_lt_u32 s2, 8"], "L_end", 8, T, 224, 92)
    e.op(f"v_lshrrev_b32 v{vRHO}, 3, v{L}")
    e.op(f"v_and_b32 v{vK}, 7, v{L}")
    e.op(f"v_lshrrev_b32 v3, 1, v{vK}")
    g.make_masks(M8, 3, N_, T, T + 1)
    e.op("s_lshl_b32 s7, s3, 6")
    e.op(f"v_lshlrev_b32 v{T}, 3, v{vRHO}")
    e.op(f"v_add_u32 v{T}, s7, v{T}")
    e.op(f"v_lshlrev_b32 v{T}, 13, v{T}")
    e.op(f"v_lshlrev_b32 v{T+1}, 4, v{vK}")
    e.op(f"v_add_u32 v{vUK}, v{T}, v{T+1}")
    e.op("s_lshl_b32 s7, s3, 3")
    e.op(f"v_add_u32 v{T}, s7, v{Gq}")
    e.op(f"v_mul_u32_u24 v{T}, 1280, v{T}")
    e.op(f"v_lshlrev_b32 v{T+1}, 4, v{N_}")
    e.op(f"v_add_u32 v{vWO}, v{T}, v{T+1}")
    e.op(f"v_lshlrev_b32 v{vL16}, 4, v{L}")
    e.op(f"s_lshl_b32 s9, s{S_H}, 8")
    e.op(f"s_lshl_b32 s10, s{S_DH}, 7")
    e.op("s_add_u32 s9, s9, s10")
    g.srd(SUV, P_WUV, "s9", 512 * 8192)
    g.srd(SRD_WS, P_WS, None, G.WS_USED)
    e.op(f"s_lshl_b32 s9, s{S_H}, 7")
    e.op(f"s_lshl_b32 s10, s{S_DH}, 6")
    e.op("s_add_u32 s9, s9, s10")
    e.op("s_mul_i32 s9, s9, 1280")
    g.srd(SWO, P_WOA, "s9", 64 * 1280)
    e.op(f"s_lshl_b32 s9, s{S_KB}, 17")
    g.srd(SCK, P_CKV, "s9", 128 * 1024)
    e.op("s_waitcnt lgkmcnt(0)")
    e.op(f"s_add_u32 s{S_N}, s{S_N}, 0x{NONCE_STEP:x}")
    g.stamp(1)
    g.stage1_compute(X1, W1, M4, A0, A1, ACC, vLDS, 0)
    e.op("s_waitcnt lgkmcnt(0)")
    e.op("s_barrier")
    g.stage1_publish(S_S, S_H, L, vL16, T, 192, T + 4, LQP)
    pf(1)
    POLLA = lambda p: 192 + 4 * p
    lab = e.newlabel("qa")
    e.op("s_cmp_lg_u32 s3, 3")
    e.branch("s_cbranch_scc1", lab)
    e.op("s_setprio 2")
    g.qpoll_issue(G.QAQ, S_H, POLLA, vL16)
    e.op("s_waitcnt vmcnt(0)")
    g.qpoll_finish(G.QAQ, S_H, POLLA, vL16, L, T, LQF)
    e.op("s_setprio 0")
    e.label(lab)
    pf(2, upto=issue_uk)
    e.op("s_barrier")
    g.stamp(2)
    e.op(f"v_lshlrev_b32 v{T}, 4, v{N_}")
    e.op(f"v_add_u32 v{T}, {LQF}, v{T}")
    e.op(f"ds_read_b128 {vr(QC2)}, v{T}")
    pf(3)
    e.op("s_waitcnt lgkmcnt(0)")
    for half in range(2):
        ts = list(range(4 * half, 4 * half + 4))
        for t in ts:
            e.wait_vm(("uk", t))
        for k in range(4):
            for t in ts:
                e.op(f"v_dot2_f32_bf16 v{UK(t)}, v{UK(t)+k}, v{QC2+k}, {'0' if k == 0 else 'v%d' % UK(t)}")
    for k in (8, 4, 2, 1):
        for t in range(8):
            e.op(f"v_add_f32_dpp v{UK(t)}, v{UK(t)}, v{UK(t)} row_ror:{k} row_mask:0xf bank_mask:0xf")
    for k in range(4):
        e.op(f"v_cvt_pk_bf16_f32 v{T+4+k}, v{UK(2*k)}, v{UK(2*k+1)}")
    assert (T + 4) % 2 == 0
    e.op(f"v_lshlrev_b32 v{T}, 4, v{Gq}")
    e.op(f"s_lshl_b32 s7, s{S_P}, 9")
    e.op("s_lshl_b32 s8, s3, 6")
    e.op("s_add_u32 s7, s7, s8")
    e.op(f"s_add_u32 s7, s7, {QA}")
    g.exec_set(0x0001000100010001)
    e.op(f"buffer_store_dwordx4 {vr(T+4)}, v{T}, {sr(SRD_WS,4)}, s7 offen sc1", tag="qast")
    g.exec_set(-1)
    pf(4)
    e.wait_vm("qast")
    e.op("s_barrier")
    g.stamp(3)
    lab = e.newlabel("fl")
    e.op("s_cmp_lg_u32 s3, 0")
    e.branch("s_cbranch_scc1", lab)
    e.op(f"v_and_b32 v{T}, 7, v{L}")
    e.op(f"v_lshrrev_b32 v{T+1}, 3, v{L}")
    e.op(f"v_lshlrev_b32 v{T+1}, 4, v{T+1}")
    e.op(f"s_lshr_b32 s7, s{S_H}, 4")
    e.op("s_lshl_b32 s7, s7, 3")
    e.op(f"v_add3_u32 v{T}, v{T}, v{T+1}, s7")
    e.op(f"v_lshlrev_b32 v{T}, 8, v{T}")
    e.op(f"s_and_b32 s7, s{S_H}, 15")
    e.op("s_lshl_b32 s7, s7, 1")
    e.op(f"s_add_u32 s7, s7, s{S_DH}")
    e.op("s_lshl_b32 s7, s7, 3")
    e.op(f"s_add_u32 s7, s7, {QAF}")
    e.op(f"v_mov_b32 v{T+2}, s{S_N}")
    e.op(f"v_mov_b32 v{T+3}, s{S_N}")
    g.exec_set(0xffffffff)
    e.op(f"buffer_store_dwordx2 {vr(T+2,2)}, v{T}, {sr(SRD_WS,4)}, s7 offen sc1", count=False)
    g.exec_set(-1)
    e.label(lab)
    pf(5, upto=issue_ck)

    def scalar_flag_poll(off_expr_setup):
        off_expr_setup()
        e.op(f"s_mov_b32 s10, s{S_N}")
        e.op(f"s_mov_b32 s11, s{S_N}")
        g.spin_init()
        poll, done = e.newlabel("fpoll"), e.newlabel("fdone")
        e.label(poll)
        e.op("s_load_dwordx8 s[92:99], s[8:9], 0 glc")
        e.op("s_waitcnt lgkmcnt(0)")
        for k in range(4):
            e.op(f"s_xor_b64 s[{92+2*k}:{93+2*k}], s[{92+2*k}:{93+2*k}], s[10:11]")
        e.op("s_or_b64 s[92:93], s[92:93], s[94:95]")
        e.op("s_or_b64 s[96:97], s[96:97], s[98:99]")
        e.op("s_or_b64 s[92:93], s[92:93], s[96:97]")
        e.op("s_cmp_eq_u64 s[92:93], 0")
        e.branch("s_cbranch_scc1", done)
        g.spin_step(done)
        e.branch("s_branch", poll)
        e.label(done)

    def qaf_addr():
        e.op("s_lshl_b32 s7, s2, 8")
        e.op("s_lshl_b32 s8, s3, 5")
        e.op("s_add_u32 s7, s7, s8")
        e.op(f"s_add_u32 s7, s7, {QAF}")
        e.op(f"s_add_u32 s8, s{P_WS}, s7")
        e.op(f"s_addc_u32 s9, s{P_WS+1}, 0")
    scalar_flag_poll(qaf_addr)
    g.stamp(4)
    e.op(f"s_lshl_b32 s7, s{S_HG}, 14")
    e.op("s_lshl_b32 s8, s3, 11")
    e.op("s_add_u32 s7, s7, s8")
    e.op(f"s_add_u32 s7, s7, {QA}")
    for u in range(2):
        e.op(f"buffer_load_dwordx4 {vr(BUF0+4*u)}, v{vL16}, {sr(SRD_WS,4)}, s7 offen offset:{1024*u} sc1", tag=("qa", u))
    pf(6)
    e.wait_vm(("qa", 1))
    e.op(f"s_mul_i32 s7, s3, {2*C_STRIDE}")
    e.op(f"s_add_u32 s7, s7, {L_QA}")
    e.op(f"v_add_u32 v{T}, s7, v{vL16}")
    e.op(f"ds_write_b128 v{T}, {vr(BUF0)}")
    e.op(f"ds_write_b128 v{T}, {vr(BUF0+4)} offset:{C_STRIDE}")
    e.wait_vm(("ck", 15))
    e.op("s_waitcnt lgkmcnt(0)")
    e.op("s_barrier")
    g.stamp(5)
    pf(7)
    vA, vB = T, T + 1
    e.op("s_lshl_b32 s7, s3, 4")
    e.op(f"v_add_u32 v{vA}, s7, v{N_}")
    e.op(f"v_mul_u32_u24 v{vA}, {C_STRIDE}, v{vA}")
    e.op(f"v_lshlrev_b32 v{T+2}, 4, v{Gq}")
    e.op(f"v_add_u32 v{vA}, v{vA}, v{T+2}")
    e.op(f"v_mul_u32_u24 v{vB}, {C_STRIDE}, v{N_}")
    e.op(f"v_add_u32 v{vB}, v{vB}, v{T+2}")
    e.op(f"v_add_u32 v{vB}, {L_QA}, v{vB}")

    def s_reads(b):
        buf = BUF0 if b % 2 == 0 else BUF1
        for i in range(4):
            t = 4 * b + i
            e.op(f"ds_read_b128 {vr(buf+8*i)}, v{vA} offset:{64*t}")
            e.op(f"ds_read_b128 {vr(buf+8*i+4)}, v{vB} offset:{64*t}")
    t2stamp(1)
    s_reads(0)
    for b in range(4):
        if b + 1 < 4:
            s_reads(b + 1)
        buf = BUF0 if b % 2 == 0 else BUF1
        for i in range(4):
            left = (8 if b + 1 < 4 else 0) + (6 - 2 * i)
            e.op(f"s_waitcnt lgkmcnt({left})")
            first = (b == 0 and i == 0)
            e.op(f"v_mfma_f32_16x16x32_bf16 {vr(ACC)}, {vr(buf+8*i)}, {vr(buf+8*i+4)}, {'0' if first else vr(ACC)}")
    t2stamp(2)
    pf(8)
    SC = T + 4
    e.op(f"s_mov_b32 s7, {f32hex(SCALE)}")
    for r in range(4):
        e.op(f"v_mul_f32 v{SC+r}, s7, v{ACC+r}")
    MXr = T + 2
    e.op(f"v_max3_f32 v{MXr}, v{SC}, v{SC+1}, v{SC+2}")
    e.op(f"v_max_f32 v{MXr}, v{MXr}, v{SC+3}")
    g.xor16("v_max_f32", MXr, T + 3)
    g.xor32("v_max_f32", MXr, T + 3)
    vMX = 24
    e.op(f"v_lshlrev_b32 v{vMX}, 5, v{N_}")
    e.op(f"v_add_u32 v{vMX}, {L_MX}, v{vMX}")
    e.op("s_lshl_b32 s7, s3, 2")
    e.op(f"v_add_u32 v{T+3}, s7, v{vMX}")
    g.exec_set(0xffff)
    e.op(f"ds_write_b32 v{T+3}, v{MXr}")
    g.exec_set(-1)
    e.op("s_waitcnt lgkmcnt(0)")
    e.op("s_barrier")
    t2stamp(3)
    e.op(f"ds_read_b128 {vr(BUF0)}, v{vMX}")
    e.op(f"ds_read_b128 {vr(BUF0+4)}, v{vMX} offset:16")
    pf(9)
    e.op("s_waitcnt lgkmcnt(0)")
    vM = 25
    e.op(f"v_max3_f32 v{vM}, v{BUF0}, v{BUF0+1}, v{BUF0+2}")
    e.op(f"v_max3_f32 v{vM}, v{vM}, v{BUF0+3}, v{BUF0+4}")
    e.op(f"v_max3_f32 v{vM}, v{vM}, v{BUF0+5}, v{BUF0+6}")
    e.op(f"v_max_f32 v{vM}, v{vM}, v{BUF0+7}")
    for r in range(4):
        e.op(f"v_sub_f32 v{SC+r}, v{SC+r}, v{vM}")
    for r in range(4):
        e.op(f"v_exp_f32 v{SC+r}, v{SC+r}")
    PP = T + 8
    assert PP % 2 == 0
    e.op(f"v_cvt_pk_bf16_f32 v{PP}, v{SC}, v{SC+1}")
    e.op(f"v_cvt_pk_bf16_f32 v{PP+1}, v{SC+2}, v{SC+3}")
    e.op("s_mov_b32 s7, 0xffff0000")
    e.op(f"v_lshlrev_b32 v{SC}, 16, v{PP}")
    e.op(f"v_and_b32 v{SC+1}, s7, v{PP}")
    e.op(f"v_lshlrev_b32 v{SC+2}, 16, v{PP+1}")
    e.op(f"v_and_b32 v{SC+3}, s7, v{PP+1}")
    e.op(f"v_add_f32 v{SC}, v{SC}, v{SC+1}")
    e.op(f"v_add_f32 v{SC+2}, v{SC+2}, v{SC+3}")
    e.op(f"v_add_f32 v{SC}, v{SC}, v{SC+2}")
    g.xor16("v_add_f32", SC, SC + 1)
    g.xor32("v_add_f32", SC, SC + 1)
    e.op(f"v_mul_u32_u24 v{T}, {P_STRIDE}, v{N_}")
    e.op(f"v_lshlrev_b32 v{T+1}, 4, v{Gq}")
    e.op(f"v_add_u32 v{T}, v{T}, v{T+1}")
    e.op(f"v_add_u32 v{T}, {L_P}, v{T}")
    vPR = 30
    e.op(f"v_mov_b32 v{vPR}, v{T}")
    e.op("s_lshr_b32 s7, s3, 1")
    e.op("s_lshl_b32 s7, s7, 6")
    e.op("s_and_b32 s8, s3, 1")
    e.op("s_lshl_b32 s8, s8, 3")
    e.op("s_add_u32 s7, s7, s8")
    e.op(f"v_add_u32 v{T}, s7, v{T}")
    e.op(f"ds_write_b64 v{T}, {vr(PP,2)}")
    e.op(f"v_add_u32 v{T+3}, {L_LX-L_MX}, v{T+3}")
    g.exec_set(0xffff)
    e.op(f"ds_write_b32 v{T+3}, v{SC}")
    g.exec_set(-1)
    e.op("s_waitcnt lgkmcnt(0)")
    e.op("s_barrier")
    g.stamp(6)
    pf(10)
    PB = 48
    OACC = 64
    TR = 88
    for s in range(4):
        e.op(f"ds_read_b128 {vr(PB+4*s)}, v{vPR} offset:{64*s}")
    vT0, vT1 = T, T + 1
    e.op(f"v_lshrrev_b32 v{T+2}, 2, v{N_}")
    e.op(f"v_lshl_add_u32 v{T+2}, v{Gq}, 2, v{T+2}")
    e.op(f"v_mul_u32_u24 v{vT0}, {C_STRIDE}, v{T+2}")
    e.op(f"v_and_b32 v{T+2}, 3, v{N_}")
    e.op(f"v_lshlrev_b32 v{T+2}, 3, v{T+2}")
    e.op("s_lshl_b32 s7, s3, 7")
    e.op(f"v_add3_u32 v{vT0}, v{vT0}, v{T+2}, s7")
    e.op(f"v_add_u32 v{vT1}, {64*C_STRIDE}, v{vT0}")

    def tr_reads(tau):
        buf = TR if tau % 2 == 0 else BUF0
        for s in range(4):
            base = vT0 if s < 2 else vT1
            for u in range(2):
                off = (32 * (s & 1) + 16 * u) * C_STRIDE + 32 * tau
                e.op(f"ds_read_b64_tr_b16 {vr(buf+4*s+2*u,2)}, v{base} offset:{off}")
    tr_reads(0)
    for tau in range(4):
        if tau + 1 < 4:
            tr_reads(tau + 1)
        buf = TR if tau % 2 == 0 else BUF0
        for s in range(4):
            left = (8 if tau + 1 < 4 else 0) + (6 - 2 * s)
            e.op(f"s_waitcnt lgkmcnt({left})")
            e.op(f"v_mfma_f32_16x16x32_bf16 {vr(OACC+4*tau)}, {vr(buf+4*s)}, {vr(PB+4*s)}, {'0' if s == 0 else vr(OACC+4*tau)}")
    t2stamp(9)
    pf(11)
    e.op(f"v_mul_u32_u24 v{T}, {C_STRIDE}, v{N_}")
    e.op(f"v_lshlrev_b32 v{T+1}, 3, v{Gq}")
    e.op("s_lshl_b32 s7, s3, 7")
    e.op(f"s_add_u32 s7, s7, {L_QA}")
    e.op(f"v_add3_u32 v{T}, v{T}, v{T+1}, s7")
    for tau in range(4):
        o = OACC + 4 * tau
        e.op(f"v_cvt_pk_bf16_f32 v{o}, v{o}, v{o+1}")
        e.op(f"v_cvt_pk_bf16_f32 v{o+1}, v{o+2}, v{o+3}")
        e.op(f"ds_write_b64 v{T}, {vr(o,2)} offset:{32*tau}")
    e.op("s_waitcnt lgkmcnt(0)")
    e.op("s_barrier")
    g.stamp(7)
    e.op(f"s_mul_i32 s7, s3, {2*C_STRIDE}")
    e.op(f"s_add_u32 s7, s7, {L_QA}")
    e.op(f"v_add_u32 v{T}, s7, v{vL16}")
    e.op(f"ds_read_b128 {vr(BUF1)}, v{T}")
    e.op(f"ds_read_b128 {vr(BUF1+4)}, v{T} offset:{C_STRIDE}")
    e.op(f"v_add_u32 v{T+1}, {L_LX-L_MX}, v{vMX}")
    e.op(f"ds_read_b128 {vr(BUF1+8)}, v{T+1}")
    e.op(f"ds_read_b128 {vr(BUF1+12)}, v{T+1} offset:16")
    e.op(f"s_lshl_b32 s7, s{S_HG}, 4")
    e.op("s_lshl_b32 s8, s3, 1")
    e.op("s_add_u32 s7, s7, s8")
    e.op("s_lshl_b32 s7, s7, 5")
    e.op(f"s_add_u32 s7, s7, s{S_KB}")
    e.op("s_lshl_b32 s7, s7, 10")
    e.op(f"s_add_u32 s7, s7, {OA}")
    e.op("s_add_u32 s8, s7, 32768")
    e.op("s_mov_b32 s14, s7")
    e.op("s_waitcnt lgkmcnt(0)")
    lab = e.newlabel("ml")
    e.op("s_cmp_lg_u32 s3, 0")
    e.branch("s_cbranch_scc1", lab)
    b = BUF1 + 8
    e.op(f"v_add_f32 v{b}, v{b}, v{b+1}")
    e.op(f"v_add_f32 v{b+2}, v{b+2}, v{b+3}")
    e.op(f"v_add_f32 v{b+4}, v{b+4}, v{b+5}")
    e.op(f"v_add_f32 v{b+6}, v{b+6}, v{b+7}")
    e.op(f"v_add_f32 v{b}, v{b}, v{b+2}")
    e.op(f"v_add_f32 v{b+4}, v{b+4}, v{b+6}")
    e.op(f"v_add_f32 v{T+3}, v{b}, v{b+4}")
    e.op(f"v_mov_b32 v{T+2}, v{vM}")
    assert (T + 2) % 2 == 0
    e.op(f"v_lshlrev_b32 v{T+1}, 8, v{N_}")
    e.op(f"s_lshl_b32 s7, s{S_HG}, 12")
    e.op(f"s_lshl_b32 s9, s{S_KB}, 3")
    e.op("s_add_u32 s7, s7, s9")
    e.op(f"s_add_u32 s7, s7, {MLA}")
    g.exec_set(0xffff)
    e.op(f"buffer_store_dwordx2 {vr(T+2,2)}, v{T+1}, {sr(SRD_WS,4)}, s7 offen sc1", count=False)
    g.exec_set(-1)
    e.label(lab)
    e.op(f"buffer_store_dwordx4 {vr(BUF1)}, v{vL16}, {sr(SRD_WS,4)}, s14 offen sc1", tag="ost0")
    e.op(f"buffer_store_dwordx4 {vr(BUF1+4)}, v{vL16}, {sr(SRD_WS,4)}, s8 offen sc1", tag="ost1")
    pf(12)
    e.wait_vm("ost1")
    e.op("s_barrier")
    g.stamp(8)
    lab = e.newlabel("fl2")
    e.op("s_cmp_lg_u32 s3, 0")
    e.branch("s_cbranch_scc1", lab)
    e.op(f"v_lshlrev_b32 v{T}, 8, v{L}")
    e.op(f"s_lshl_b32 s7, s{S_HG}, 13")
    e.op(f"s_lshl_b32 s8, s{S_KB}, 3")
    e.op("s_add_u32 s7, s7, s8")
    e.op(f"s_add_u32 s7, s7, {OAF}")
    e.op(f"v_mov_b32 v{T+2}, s{S_N}")
    e.op(f"v_mov_b32 v{T+3}, s{S_N}")
    g.exec_set(0xffffffff)
    e.op(f"buffer_store_dwordx2 {vr(T+2,2)}, v{T}, {sr(SRD_WS,4)}, s7 offen sc1", count=False)
    g.exec_set(-1)
    e.label(lab)
    pf(13)

    def oaf_addr():
        e.op(f"s_lshl_b32 s7, s{S_P}, 8")
        e.op("s_lshl_b32 s8, s3, 5")
        e.op("s_add_u32 s7, s7, s8")
        e.op(f"s_add_u32 s7, s7, {OAF}")
        e.op(f"s_add_u32 s8, s{P_WS}, s7")
        e.op(f"s_addc_u32 s9, s{P_WS+1}, 0")
    scalar_flag_poll(oaf_addr)
    e.op("s_barrier")
    g.stamp(9)
    vKk = 30
    e.op(f"v_and_b32 v{vKk}, 7, v{L}")
    ML = T + 2
    e.op(f"v_and_b32 v{T}, 31, v{L}")
    e.op(f"v_lshlrev_b32 v{T}, 3, v{T}")
    e.op(f"s_lshl_b32 s7, s{S_H}, 8")
    e.op(f"s_add_u32 s7, s7, {MLA}")
    e.op(f"buffer_load_dwordx2 {vr(ML,2)}, v{T}, {sr(SRD_WS,4)}, s7 offen sc1", tag="ml")
    e.op(f"v_lshlrev_b32 v{T}, 10, v{vRHO}")
    e.op(f"v_lshlrev_b32 v{T+1}, 4, v{vKk}")
    e.op("s_lshl_b32 s7, s3, 7")
    e.op(f"v_add3_u32 v{T}, v{T}, v{T+1}, s7")
    e.op(f"s_lshl_b32 s7, s{S_H}, 15")
    e.op(f"s_add_u32 s7, s7, {OA}")
    OT = 48
    for t in range(4):
        e.op(f"buffer_load_dwordx4 {vr(OT+4*t)}, v{T}, {sr(SRD_WS,4)}, s7 offen sc1", tag=("ot", t))
        if t < 3:
            e.op("s_addk_i32 s7, 0x2000")
    pf(14, upto=issue_uv)
    e.wait_vm("ml")
    pstamp(1)
    W_ = T + 4
    e.op(f"v_mov_b32 v{W_}, v{ML}")
    g.wave_reduce("v_max_f32", W_, W_ + 1, lanes=32)
    e.op(f"v_sub_f32 v{W_}, v{ML}, v{W_}")
    e.op(f"v_exp_f32 v{W_}, v{W_}")
    e.op(f"v_mul_f32 v{W_+1}, v{W_}, v{ML+1}")
    g.wave_reduce("v_add_f32", W_ + 1, W_ + 2, lanes=32)
    e.op(f"v_rcp_f32 v{W_+1}, v{W_+1}")
    e.op(f"v_mul_f32 v{W_}, v{W_}, v{W_+1}")
    e.op(f"v_cvt_pk_bf16_f32 v{W_}, v{W_}, v{W_}")
    pstamp(2)
    e.op(f"v_lshlrev_b32 v{W_+1}, 2, v{vRHO}")
    WB = 64
    for t in range(4):
        if t:
            e.op(f"v_add_u32 v{W_+1}, 32, v{W_+1}")
        e.op(f"ds_bpermute_b32 v{WB+t}, v{W_+1}, v{W_}")
    e.op("s_waitcnt lgkmcnt(0)")
    pstamp(3)
    e.wait_vm(("ot", 3), keep=True)
    pstamp(4)
    for t in range(4):
        e.wait_vm(("ot", t))
        A = A0 if t % 2 == 0 else A1
        for r in range(4):
            e.op(f"v_and_b32 v{A+r}, v{WB+t}, v{M8+r}")
        e.op(f"v_mfma_f32_16x16x32_bf16 {vr(ACC)}, {vr(A)}, {vr(OT+4*t)}, {'0' if t == 0 else vr(ACC)}")
    pf(15, upto=issue_wo)
    e.op(f"v_lshlrev_b32 v{T}, 5, v{vKk}")
    e.op(f"v_lshlrev_b32 v{T+1}, 4, v{Gq}")
    e.op(f"v_and_b32 v{T+2}, 1, v{Gq}")
    e.op(f"v_lshlrev_b32 v{T+2}, 4, v{T+2}")
    e.op(f"v_lshrrev_b32 v{T+3}, 1, v{Gq}")
    e.op(f"v_lshlrev_b32 v{T+3}, 8, v{T+3}")
    e.op(f"v_add3_u32 v{T}, v{T}, v{T+2}, v{T+3}")
    e.op("s_lshl_b32 s7, s3, 9")
    e.op(f"v_add_u32 v{T}, s7, v{T}")
    g.exec_set(VALID)
    e.op(f"ds_write_b128 v{T}, {vr(ACC)}")
    g.exec_set(-1)
    e.op(f"v_lshlrev_b32 v{T+1}, 5, v{vRHO}")
    e.op(f"v_add_u32 v{T+1}, s7, v{T+1}")
    e.op("s_waitcnt lgkmcnt(0)")
    pstamp(5)
    CC = 68
    e.op(f"ds_read_b128 {vr(CC)}, v{T+1}")
    e.op(f"ds_read_b128 {vr(CC+4)}, v{T+1} offset:16")
    e.op(f"ds_read_b128 {vr(CC+8)}, v{T+1} offset:256")
    e.op(f"ds_read_b128 {vr(CC+12)}, v{T+1} offset:272")
    e.op("s_waitcnt lgkmcnt(0)")
    for t in range(8):
        e.op(f"v_add_f32 v{CC+t}, v{CC+t}, v{CC+8+t}")
    for t in range(8):
        e.op(f"v_cvt_pk_bf16_f32 v{CC+t}, v{CC+t}, v{CC+t}")
    pstamp(6)
    for t in range(8):
        e.wait_vm(("uv", t))
        A = A0 if t % 2 == 0 else A1
        for r in range(4):
            e.op(f"v_and_b32 v{A+r}, v{CC+t}, v{M8+r}")
        e.op(f"v_mfma_f32_16x16x32_bf16 {vr(ACC)}, {vr(A)}, {vr(UV(t))}, {'0' if t == 0 else vr(ACC)}")
    pstamp(7)
    LCP, CPS = 4096, 528
    e.op(f"v_lshlrev_b32 v{T}, 5, v{vKk}")
    e.op(f"v_and_b32 v{T+2}, 1, v{Gq}")
    e.op(f"v_lshlrev_b32 v{T+2}, 4, v{T+2}")
    e.op(f"v_lshrrev_b32 v{T+3}, 1, v{Gq}")
    e.op(f"v_lshlrev_b32 v{T+3}, 8, v{T+3}")
    e.op(f"v_add3_u32 v{T}, v{T}, v{T+2}, v{T+3}")
    e.op(f"s_mul_i32 s7, s3, {CPS}")
    e.op(f"s_add_u32 s7, s7, {LCP}")
    e.op(f"v_add_u32 v{T}, s7, v{T}")
    g.exec_set(VALID)
    e.op(f"ds_write_b128 v{T}, {vr(ACC)}")
    g.exec_set(-1)
    e.op(f"v_mul_u32_u24 v{T}, {CPS}, v{vKk}")
    e.op(f"v_lshrrev_b32 v{T+2}, 3, v{N_}")
    e.op(f"v_lshl_add_u32 v{T+2}, v{T+2}, 2, v{Gq}")
    e.op("s_lshl_b32 s7, s3, 3")
    e.op(f"v_add_u32 v{T+2}, s7, v{T+2}")
    e.op(f"v_lshl_add_u32 v{T}, v{T+2}, 2, v{T}")
    e.op("s_waitcnt lgkmcnt(0)")
    e.op("s_barrier")
    g.stamp(10)
    e.op(f"ds_read_b32 v{T+2}, v{T} offset:{LCP}")
    e.op(f"ds_read_b32 v{T+3}, v{T} offset:{LCP+256}")
    e.op("s_waitcnt lgkmcnt(0)")
    e.op(f"v_add_f32 v{T+2}, v{T+2}, v{T+3}")
    for perm in ("row_half_mirror", "quad_perm:[2,3,0,1]", "quad_perm:[1,0,3,2]"):
        e.op(f"v_add_f32_dpp v{T+2}, v{T+2}, v{T+2} {perm} row_mask:0xf bank_mask:0xf")
    e.op(f"v_cvt_pk_bf16_f32 v{T+2}, v{T+2}, v{T+2}")
    for r in range(4):
        e.op(f"v_and_b32_dpp v{A0+r}, v{T+2}, v{M4+r} row_newbcast:0 row_mask:0xf bank_mask:0xf")
    for r in range(4):
        e.op(f"v_and_b32_dpp v{A1+r}, v{T+2}, v{M4+r} row_newbcast:8 row_mask:0xf bank_mask:0xf")
    OA5 = 64
    for r2 in range(2):
        for cb in range(5):
            t = 5 * r2 + cb
            e.wait_vm(("wo", t))
            A = A0 if r2 == 0 else A1
            e.op(f"v_mfma_f32_16x16x32_bf16 {vr(OA5+4*cb)}, {vr(A)}, {vr(WO(t))}, {'0' if r2 == 0 else vr(OA5+4*cb)}")
    tstamp(1)
    LF = 12288
    e.op(f"v_lshlrev_b32 v{T}, 5, v{N_}")
    e.op(f"v_lshlrev_b32 v{T+1}, 4, v{Gq}")
    e.op(f"s_mul_i32 s7, s3, 2560")
    e.op(f"s_add_u32 s7, s7, {LF}")
    e.op(f"v_add3_u32 v{T}, v{T}, v{T+1}, s7")
    g.exec_set(0xffffffff)
    for cb in range(5):
        e.op(f"ds_write_b128 v{T}, {vr(OA5+4*cb)} offset:{512*cb}")
    g.exec_set(-1)
    e.op("s_waitcnt lgkmcnt(0)")
    e.op("s_barrier")
    tstamp(2)
    nopub = e.newlabel("nopub")
    e.op("s_cmp_ge_u32 s3, 5")
    e.branch("s_cbranch_scc1", nopub)
    a = 48
    e.op("s_lshl_b32 s7, s3, 9")
    e.op(f"v_lshlrev_b32 v{T}, 3, v{L}")
    e.op(f"v_add_u32 v{T}, s7, v{T}")
    for w in range(8):
        e.op(f"ds_read_b64 {vr(a+2*w,2)}, v{T} offset:{LF+2560*w}")
    gq = T + 4
    e.op(f"v_mov_b32 v{gq+1}, s{S_N}")
    e.op(f"v_mov_b32 v{gq+3}, s{S_N}")
    e.op("s_mul_i32 s7, s2, 5120")
    e.op("s_lshl_b32 s8, s3, 10")
    e.op("s_add_u32 s7, s7, s8")
    e.op(f"s_add_u32 s7, s7, {FA}")
    e.op("s_waitcnt lgkmcnt(0)")
    for w in (1, 3, 5, 7):
        e.op(f"v_add_f32 v{a+2*(w-1)}, v{a+2*(w-1)}, v{a+2*w}")
        e.op(f"v_add_f32 v{a+2*(w-1)+1}, v{a+2*(w-1)+1}, v{a+2*w+1}")
    for w in (2, 6):
        e.op(f"v_add_f32 v{a+2*(w-2)}, v{a+2*(w-2)}, v{a+2*w}")
        e.op(f"v_add_f32 v{a+2*(w-2)+1}, v{a+2*(w-2)+1}, v{a+2*w+1}")
    e.op(f"v_add_f32 v{gq}, v{a}, v{a+8}")
    e.op(f"v_add_f32 v{gq+2}, v{a+1}, v{a+9}")
    e.op(f"buffer_store_dwordx4 {vr(gq)}, v{vL16}, {sr(SRD_WS,4)}, s7 offen sc1", count=False)
    e.label(nopub)
    tstamp(3)
    e.vm = []
    lend = e.newlabel("aend")
    e.op("s_cmp_ge_u32 s2, 40")
    e.branch("s_cbranch_scc1", lend)
    e.op("s_cmp_lg_u32 s3, 5")
    e.branch("s_cbranch_scc1", lend)
    g.srd(SX, P_OUT, None, 2560)
    e.op("s_lshl_b32 s7, s2, 7")
    e.op(f"s_add_u32 s10, s7, {FA}")
    e.op("s_lshl_b32 s14, s2, 5")
    g.final_reduce(8, 5120, 10, 14, SX, T, 48, L, pipelined=True)
    tstamp(6)
    e.op("s_cmp_lg_u32 s2, 0")
    e.branch("s_cbranch_scc1", lend)
    e.op(f"v_mov_b32 v{T}, {EPOCH}")
    e.op(f"v_mov_b32 v{T+1}, s{S_N}")
    g.exec_set(1)
    e.op(f"buffer_store_dword v{T+1}, v{T}, {sr(SRD_WS,4)}, 0 offen sc1", count=False)
    g.exec_set(-1)
    e.label(lend)
    g.stamp(11)
    g.dump_stamps("A")
    e.op("s_endpgm")
```

```python
import argparse
from emit import Emit

NAME = "concat_heads__compressed_kv_cla__mha_block_cached__decode_kernel"

EPOCH = 0
MLG = 0x1000
OB = 0x32000
FB = 0x62000
FA = 0x8A000
QA = 0xDA000
QAF = 0xEA000
MLA = 0xEE000
OAF = 0xF0000
OA = 0x100000
PROF = 0x200000
QB = 0x240000
QAQ = 0x280000
WS_USED = 0x2C0000
NONCE_STEP = 0x9E3779B1
SCALE = 0.08838834764831845 * 1.4426950408889634


def f32hex(x):
    import struct
    return "0x%08x" % struct.unpack("<I", struct.pack("<f", x))[0]


class Cfg:
    def __init__(self, **kw):
        self.nt = "nt"
        self.nt_ckv = "nt"
        self.W = 4
        self.WK = None
        self.K0 = 3
        self.POLL_A = 9
        self.PREV = 2
        self.WA = 6
        self.COMM = 0
        self.ckrot = True
        self.prof = False
        self.cpf = True
        self.spin = 200000
        self.only = None
        self.PFA = [4, 4, 4, 2, 4, 6, 2, 2, 2, 2, 3, 3, 0, 4, 0, 0]
        self.__dict__.update(kw)
        if self.WK is None:
            self.WK = self.W


S_WG, S_WAVE, S_N = 2, 3, 4
P_AX, P_CKV, P_WQA, P_WUK, P_WUV, P_WOA = 16, 18, 20, 22, 24, 26
P_BX, P_BK, P_BV, P_BWQ, P_BWO, P_OUT, P_DBG, P_WS = 32, 34, 36, 38, 40, 42, 44, 46
SRD_WS = 48
S_SPIN = 15


def sr(n, k=2):
    return f"s[{n}:{n+k-1}]"


def vr(n, k=4):
    return f"v[{n}:{n+k-1}]"


class Gen:
    def __init__(self, cfg):
        self.c = cfg
        self.e = Emit()
        self.nstamp = 0

    def srd(self, dst, ptr, off_sgpr, nrec):
        e = self.e
        if off_sgpr is None:
            e.op(f"s_mov_b32 s{dst}, s{ptr}")
            e.op(f"s_mov_b32 s{dst+1}, s{ptr+1}")
        else:
            e.op(f"s_add_u32 s{dst}, s{ptr}, {off_sgpr}")
            e.op(f"s_addc_u32 s{dst+1}, s{ptr+1}, 0")
        e.op(f"s_mov_b32 s{dst+2}, {nrec}")
        e.op(f"s_mov_b32 s{dst+3}, 0x20000")

    def stamp(self, idx, bw=False):
        if not self.c.prof:
            return
        if getattr(self, "in_B", False) and bool(getattr(self.c, "bw", False)) != bw and idx != 0:
            return
        e = self.e
        e.op("s_memrealtime s[78:79]")
        e.op("s_waitcnt lgkmcnt(0)")
        e.op(f"s_mov_b32 s{80+idx}, s78")

    def dump_dbg(self, role):
        e = self.e
        sel = {"A": [(2, 1), (3, 3), (4, 4), (5, 5), (6, 8), (7, 9), (8, 10), (1, 11)],
               "B": [(9, 1), (10, 2), (11, 3), (12, 4), (13, 5), (14, 8), (15, 10), (1, 10)]}[role]
        lab = e.newlabel("nodbg")
        if role == "A":
            e.op("s_cmp_eq_u32 s3, 0")
            e.op("s_cselect_b32 s5, 1, 0")
            e.op("s_cmp_eq_u32 s3, 5")
            e.op("s_cselect_b32 s5, 1, s5")
            e.op("s_cmp_eq_u32 s5, 0")
        else:
            e.op(f"s_cmp_lg_u32 s3, {self.c.COMM}")
        e.branch("s_cbranch_scc1", lab)
        e.op("s_mov_b64 exec, -1")
        e.op("v_mbcnt_lo_u32_b32 v2, -1, 0")
        e.op("v_mbcnt_hi_u32_b32 v2, -1, v2")
        e.op("s_not_b32 s5, s80")
        e.op("v_mov_b32 v3, 0")
        for slot, src in [(0, None)] + sel:
            e.op(f"v_mov_b32 v4, {'s5' if src is None else 's%d' % (80+src)}")
            e.op(f"v_cmp_eq_u32 vcc, {slot}, v2")
            e.op("v_cndmask_b32 v3, v3, v4, vcc")
        e.op("v_lshlrev_b32 v2, 2, v2")
        self.srd(52, P_DBG, None, 256)
        self.exec_set(0xffff)
        e.op("buffer_atomic_umax v3, v2, s[52:55], 0 offen")
        self.exec_set(-1)
        e.label(lab)

    def dump_stamps(self, role=None):
        if not self.c.prof:
            return
        if self.c.prof == "dbg":
            return self.dump_dbg(role)
        e = self.e
        e.op("s_mov_b64 exec, -1")
        e.op("v_mbcnt_lo_u32_b32 v2, -1, 0")
        e.op("v_mbcnt_hi_u32_b32 v2, -1, v2")
        e.op("s_lshl_b32 s5, s2, 3")
        e.op("s_add_u32 s5, s5, s3")
        e.op("s_lshl_b32 s5, s5, 6")
        e.op(f"s_add_u32 s5, s5, {PROF}")
        e.op("v_mov_b32 v3, 0")
        for i in range(16):
            e.op(f"v_mov_b32 v4, s{80+i}")
            e.op(f"v_cmp_eq_u32 vcc, {i}, v2")
            e.op("v_cndmask_b32 v3, v3, v4, vcc")
        e.op("v_lshlrev_b32 v2, 2, v2")
        e.op("v_add_u32 v2, s5, v2")
        e.op("s_mov_b32 exec_lo, 0xffff".replace("exec_lo", "exec_lo"))
        e.op("s_mov_b32 exec_hi, 0")
        e.op(f"buffer_store_dword v3, v2, {sr(SRD_WS,4)}, 0 offen")
        e.op("s_mov_b64 exec, -1")

    def spin_init(self):
        self.e.op(f"s_mov_b32 s{S_SPIN}, 0")

    def spin_step(self, out_label):
        e = self.e
        e.op(f"s_add_u32 s{S_SPIN}, s{S_SPIN}, 1")
        e.op(f"s_cmp_gt_u32 s{S_SPIN}, {self.c.spin}")
        e.branch("s_cbranch_scc1", out_label)

    def wave_reduce(self, op, v, t, lanes=64):
        e = self.e
        for k in (8, 4, 2, 1):
            e.op(f"{op}_dpp v{v}, v{v}, v{v} row_ror:{k} row_mask:0xf bank_mask:0xf")
        self.xor16(op, v, t)
        if lanes == 64:
            self.xor32(op, v, t)

    def xor16(self, op, v, t):
        e = self.e
        e.op(f"v_mov_b32 v{t}, v{v}")
        e.op(f"v_permlane16_swap_b32 v{v}, v{t}")
        e.op(f"{op} v{v}, v{v}, v{t}")

    def xor32(self, op, v, t):
        e = self.e
        e.op(f"v_mov_b32 v{t}, v{v}")
        e.op(f"v_permlane32_swap_b32 v{v}, v{t}")
        e.op(f"{op} v{v}, v{v}, v{t}")

    def make_masks(self, dst, idx_reg, n_reg, t0, t1):
        e = self.e
        e.op(f"v_and_b32 v{t0}, 1, v{n_reg}")
        e.op(f"v_lshlrev_b32 v{t0}, 4, v{t0}")
        e.op(f"v_mov_b32 v{t1}, 0xffff")
        e.op(f"v_lshlrev_b32 v{t0}, v{t0}, v{t1}")
        for r in range(4):
            e.op(f"v_cmp_eq_u32 vcc, {r}, v{idx_reg}")
            e.op(f"v_cndmask_b32 v{dst+r}, 0, v{t0}, vcc")

    def tags_bad(self, acc, tags, first=True):
        e = self.e
        tags = list(tags)
        while tags:
            a = tags.pop(0)
            e.op(f"v_xor_b32 v{a}, s{S_N}, v{a}")
            if tags:
                b = tags.pop(0)
                e.op(f"v_xor_b32 v{b}, s{S_N}, v{b}")
                if first:
                    e.op(f"v_or_b32 v{acc}, v{a}, v{b}")
                else:
                    e.op(f"v_or3_b32 v{acc}, v{acc}, v{a}, v{b}")
            else:
                if first:
                    e.op(f"v_mov_b32 v{acc}, v{a}")
                else:
                    e.op(f"v_or_b32 v{acc}, v{acc}, v{a}")
            first = False

    def poll2(self, issue, nloads, tags, acc, on_ok):
        e = self.e
        loop, ok0, ok1, out = (e.newlabel(n) for n in ("pl", "ok0", "ok1", "pout"))
        self.spin_init()
        issue(0)
        e.label(loop)
        for s_, ok in ((0, ok0), (1, ok1)):
            issue(1 - s_)
            e.op(f"s_waitcnt vmcnt({nloads})")
            self.tags_bad(acc, tags(s_))
            e.op(f"v_cmp_ne_u32 vcc, 0, v{acc}")
            e.op(f"s_cbranch_vccz {ok}")
        e.op(f"s_add_u32 s{S_SPIN}, s{S_SPIN}, 1")
        e.op(f"s_cmp_le_u32 s{S_SPIN}, {self.c.spin}")
        e.op(f"s_cbranch_scc1 {loop}")
        e.label(ok1)
        on_ok(1)
        e.op(f"s_branch {out}")
        e.label(ok0)
        on_ok(0)
        e.label(out)

    def exec_set(self, mask):
        e = self.e
        if mask == -1 or mask == (1 << 64) - 1:
            e.op("s_mov_b64 exec, -1")
        else:
            e.op(f"s_mov_b32 exec_lo, 0x{mask & 0xffffffff:x}")
            e.op(f"s_mov_b32 exec_hi, 0x{mask >> 32:x}")

    def code_prefetch(self, cond_ops, start_expr, nwaves, vtmp, vdst, srd):
        e = self.e
        if not self.c.cpf:
            return
        lab = e.newlabel("cpf")
        for o in cond_ops:
            e.op(o)
        e.branch("s_cbranch_scc0", lab)
        if nwaves < 8:
            e.op(f"s_cmp_lt_u32 s3, {nwaves}")
            e.branch("s_cbranch_scc0", lab)
        here = e.newlabel("pc")
        e.op("s_getpc_b64 s[8:9]")
        e.raw(here + ":")
        if start_expr is None:
            e.op(f"s_mov_b32 s{srd}, s8")
            e.op(f"s_mov_b32 s{srd+1}, s9")
        else:
            e.op(f"s_add_u32 s{srd}, s8, ({start_expr} - {here})")
            e.op(f"s_addc_u32 s{srd+1}, s9, 0")
            e.op(f"s_sub_u32 s{srd}, s{srd}, {nwaves*1024}")
            e.op(f"s_subb_u32 s{srd+1}, s{srd+1}, 0")
        e.op(f"s_mov_b32 s{srd+2}, {nwaves*1024}")
        e.op(f"s_mov_b32 s{srd+3}, 0x20000")
        e.op("s_lshl_b32 s8, s3, 10")
        e.op(f"v_lshlrev_b32 v{vtmp}, 4, v0")
        e.op(f"buffer_load_dwordx4 {vr(vdst)}, v{vtmp}, s[{srd}:{srd+3}], s8 offen", count=False)
        e.label(lab)

    def stage1_setup(self, s_s, s_h, vW, vX, vG, vN, T, SX, SW):
        e = self.e
        e.op(f"v_lshlrev_b32 v{vW}, 13, v{vG}")
        e.op(f"v_lshlrev_b32 v{T}, 4, v{vN}")
        e.op(f"v_add_u32 v{vW}, v{vW}, v{T}")
        e.op(f"s_mul_i32 s7, s{s_s}, 80")
        e.op("s_and_b32 s8, s3, 3")
        e.op("s_mul_i32 s8, s8, 20")
        e.op("s_add_u32 s7, s7, s8")
        e.op(f"v_add_u32 v{vX}, s7, v{vG}")
        e.op(f"v_lshlrev_b32 v{vX}, 1, v{vX}")
        e.op("s_lshl_b32 s14, s7, 13")
        e.op(f"s_lshl_b32 s8, s{s_h}, 8")
        e.op("s_add_u32 s14, s14, s8")

    def stage1_srds(self, SX, SW):
        e = self.e
        e.op("s_cmp_lt_u32 s3, 4")
        e.op(f"s_cselect_b32 s{SX}, s{P_AX}, s{P_BX}")
        e.op(f"s_cselect_b32 s{SX+1}, s{P_AX+1}, s{P_BX+1}")
        e.op(f"s_cselect_b32 s8, s{P_WQA}, s{P_BWQ}")
        e.op(f"s_cselect_b32 s9, s{P_WQA+1}, s{P_BWQ+1}")
        e.op(f"s_mov_b32 s{SX+2}, 1280")
        e.op(f"s_mov_b32 s{SX+3}, 0x20000")
        e.op(f"s_add_u32 s{SW}, s8, s14")
        e.op(f"s_addc_u32 s{SW+1}, s9, 0")
        e.op(f"s_mov_b32 s{SW+2}, {20*8192}")
        e.op(f"s_mov_b32 s{SW+3}, 0x20000")

    def stage1_issue(self, X, WQ, vX, vW, SX, SW):
        e, nt = self.e, self.c.nt
        for t in range(5):
            e.op(f"buffer_load_ushort v{X(t)}, v{vX}, {sr(SX,4)}, 0 offen offset:{8*t}", tag=("x", t))
        for t in range(5):
            e.op(f"s_mov_b32 s7, {t*32768}")
            e.op(f"buffer_load_dwordx4 {vr(WQ(t))}, v{vW}, {sr(SW,4)}, s7 offen {nt}", tag=("wq", t))

    def stage1_compute(self, X, WQ, MASK, A0, A1, ACC, vLDS, LQP):
        e = self.e
        for t in range(5):
            e.wait_vm(("wq", t))
            A = A0 if t % 2 == 0 else A1
            e.op(f"v_lshl_or_b32 v{X(t)}, v{X(t)}, 16, v{X(t)}")
            for r in range(4):
                e.op(f"v_and_b32 v{A+r}, v{X(t)}, v{MASK+r}")
            e.op(f"v_mfma_f32_16x16x32_bf16 {vr(ACC)}, {vr(A)}, {vr(WQ(t))}, {'0' if t == 0 else vr(ACC)}")
        self.exec_set(0xffffffff)
        e.op(f"ds_write_b128 v{vLDS}, {vr(ACC)} offset:{LQP}")
        self.exec_set(-1)

    def stage1_publish(self, s_s, s_h, vL, vL16, T, R, gq, LQP):
        e = self.e
        lab = e.newlabel("s1p")
        e.op("s_and_b32 s7, s3, 3")
        e.op("s_cmp_lg_u32 s7, 3")
        e.branch("s_cbranch_scc1", lab)
        e.op("s_setprio 2")
        e.op("s_and_b32 s7, s3, 4")
        e.op("s_lshl_b32 s7, s7, 9")
        if LQP:
            e.op(f"s_add_u32 s7, s7, {LQP}")
        e.op(f"v_lshlrev_b32 v{T}, 3, v{vL}")
        e.op(f"v_add_u32 v{T}, s7, v{T}")
        for w in range(4):
            e.op(f"ds_read_b64 {vr(R+2*w,2)}, v{T} offset:{512*w}")
        e.op(f"s_lshl_b32 s8, s{s_h}, 3")
        e.op(f"s_add_u32 s8, s8, s{s_s}")
        e.op("s_lshl_b32 s8, s8, 10")
        e.op("s_cmp_eq_u32 s3, 3")
        e.op(f"s_mov_b32 s9, {QB}")
        e.op(f"s_cselect_b32 s9, {QAQ}, s9")
        e.op("s_add_u32 s9, s9, s8")
        e.op(f"v_mov_b32 v{gq+1}, s{S_N}")
        e.op(f"v_mov_b32 v{gq+3}, s{S_N}")
        e.op("s_waitcnt lgkmcnt(0)")
        e.op(f"v_add_f32 v{R}, v{R}, v{R+2}")
        e.op(f"v_add_f32 v{R+1}, v{R+1}, v{R+3}")
        e.op(f"v_add_f32 v{R+4}, v{R+4}, v{R+6}")
        e.op(f"v_add_f32 v{R+5}, v{R+5}, v{R+7}")
        e.op(f"v_add_f32 v{gq}, v{R}, v{R+4}")
        e.op(f"v_add_f32 v{gq+2}, v{R+1}, v{R+5}")
        e.op(f"buffer_store_dwordx4 {vr(gq)}, v{vL16}, {sr(SRD_WS,4)}, s9 offen sc1", count=False)
        e.op("s_setprio 0")
        e.label(lab)

    def qpoll_issue(self, base, s_h, POLL, vL16):
        e = self.e
        e.op(f"s_lshl_b32 s8, s{s_h}, 13")
        e.op(f"s_add_u32 s8, s8, {base}")
        for p in range(8):
            e.op(f"buffer_load_dwordx4 {vr(POLL(p))}, v{vL16}, {sr(SRD_WS,4)}, s8 offen sc1", count=False)
            if p < 7:
                e.op("s_addk_i32 s8, 0x400")

    def qpoll_finish(self, base, s_h, POLL, vL16, vL, T, LQF):
        e = self.e
        self.spin_init()
        chk, done = e.newlabel("qchk"), e.newlabel("qdone")
        e.label(chk)
        self.tags_bad(T, [POLL(p) + k for p in range(8) for k in (1, 3)])
        e.op(f"v_cmp_ne_u32 vcc, 0, v{T}")
        e.op("s_cmp_eq_u64 vcc, 0")
        e.branch("s_cbranch_scc1", done)
        self.spin_step(done)
        self.qpoll_issue(base, s_h, POLL, vL16)
        e.op("s_waitcnt vmcnt(0)")
        e.branch("s_branch", chk)
        e.label(done)
        for step in (1, 2, 4):
            for p in range(0, 8, 2 * step):
                for k in (0, 2):
                    e.op(f"v_add_f32 v{POLL(p)+k}, v{POLL(p)+k}, v{POLL(p+step)+k}")
        a = POLL(0)
        e.op(f"v_cvt_pk_bf16_f32 v{a}, v{a}, v{a+2}")
        e.op(f"v_lshlrev_b32 v{T}, 2, v{vL}")
        e.op(f"v_add_u32 v{T}, {LQF}, v{T}")
        e.op(f"ds_write_b32 v{T}, v{a}")
        e.op("s_waitcnt lgkmcnt(0)")

    def build(self):
        e = self.e
        c = self.c
        e.raw(f"; @launch grid=(256,1,1) block=(512,1,1) lds={LDS_TOTAL}")
        e.raw('.amdgcn_target "amdgcn-amd-amdhsa--gfx950"')
        e.raw(".text")
        e.raw(f".globl {NAME}")
        e.raw(".p2align 8")
        e.raw(f".type {NAME},@function")
        e.raw(f"{NAME}:")
        e.op("s_cmp_ge_u32 s2, 256")
        e.op("s_cbranch_scc1 L_end")
        e.op("s_load_dwordx16 s[16:31], s[0:1], 0")
        e.op("s_load_dwordx16 s[32:47], s[0:1], 48")
        if c.prof:
            e.op("s_memrealtime s[78:79]")
        e.op("v_lshrrev_b32 v1, 6, v0")
        e.op("v_and_b32 v0, 63, v0")
        e.op("v_readfirstlane_b32 s3, v1")
        if c.prof:
            for i in range(16):
                e.op(f"s_mov_b32 s{80+i}, 0")
        e.op("v_lshrrev_b32 v1, 4, v0")
        e.op("v_and_b32 v2, 15, v0")
        e.op("s_cmp_lt_u32 s2, 64")
        e.op("s_cbranch_scc1 L_A")
        self.gen_B()
        e.label("L_A")
        self.gen_A()
        e.raw("L_end:")
        e.raw("    s_endpgm")
        e.raw('.section .rodata,"a"')
        e.raw(".p2align 6")
        e.raw(f".amdhsa_kernel {NAME}")
        e.raw("  .amdhsa_next_free_vgpr 256")
        e.raw("  .amdhsa_next_free_sgpr 102")
        e.raw("  .amdhsa_accum_offset 256")
        e.raw("  .amdhsa_group_segment_fixed_size 0")
        e.raw("  .amdhsa_kernarg_size 112")
        e.raw("  .amdhsa_user_sgpr_count 2")
        e.raw("  .amdhsa_user_sgpr_kernarg_segment_ptr 1")
        e.raw("  .amdhsa_system_sgpr_workgroup_id_x 1")
        e.raw(".end_amdhsa_kernel")
        return e.text()

    def gen_B(self):
        e, c = self.e, self.c
        self.in_B = True
        S_J, S_H = 5, 6
        e.op("s_sub_u32 s7, s2, 64")
        e.op("s_and_b32 s8, s7, 7")
        e.op("s_lshr_b32 s7, s7, 3")
        e.op("s_mul_i32 s9, s7, 43")
        e.op("s_lshr_b32 s9, s9, 8")
        e.op("s_mul_i32 s10, s9, 6")
        e.op(f"s_sub_u32 s{S_J}, s7, s10")
        e.op("s_lshl_b32 s8, s8, 2")
        e.op(f"s_add_u32 s{S_H}, s8, s9")
        B = self.B = type("R", (), {})()
        B.L, B.G, B.Nn = 0, 1, 2
        B.MASK = 4
        B.Q = 8
        B.ACC = 12
        B.A0, B.A1 = 16, 20
        B.vKV, B.vWQ, B.vX, B.vLDS, B.vWS = 24, 25, 26, 27, 28
        B.T = 29
        B.P0, B.P1, B.PD0, B.PD1, B.M, B.Lw = 40, 41, 42, 43, 44, 45
        B.FW = 46
        B.MW = 47
        B.WO = 48
        B.K = 64
        e.op(f"v_lshrrev_b32 v3, 1, v{B.Nn}")
        self.make_masks(B.MASK, 3, B.Nn, B.T, B.T + 1)
        e.op(f"s_lshl_b32 s7, s3, 10")
        e.op(f"v_lshlrev_b32 v{B.vKV}, 4, v{B.L}")
        e.op(f"v_add_u32 v{B.vKV}, s7, v{B.vKV}")
        self.stage1_setup(S_J, S_H, B.vWQ, B.vX, B.G, B.Nn, B.T, 68, 60)
        e.op("s_lshl_b32 s9, s3, 9")
        e.op(f"v_lshlrev_b32 v{B.vLDS}, 5, v{B.Nn}")
        e.op(f"v_lshlrev_b32 v{B.T+1}, 4, v{B.G}")
        e.op(f"v_add3_u32 v{B.vLDS}, v{B.vLDS}, v{B.T+1}, s9")
        e.op(f"v_lshlrev_b32 v{B.vWS}, 4, v{B.L}")
        e.op("s_waitcnt lgkmcnt(0)")
        if c.prof:
            e.op("s_mov_b32 s80, s78")
        e.op(f"s_load_dword s{S_N}, {sr(P_WS)}, {EPOCH}")
        SK, SV, SWQ, SWO, SX = 52, 56, 60, 64, 68
        self.SK, self.SV, self.SWQ, self.SWO, self.SX = SK, SV, SWQ, SWO, SX
        self.stage1_srds(SX, SWQ)
        self.stage1_issue(lambda t: B.T + 2 + t, lambda t: 236 + 4 * t, B.vX, B.vWQ, SX, SWQ)
        e.op(f"s_lshl_b32 s9, s{S_H}, 20")
        e.op(f"s_mul_i32 s10, s{S_J}, {168*1024}")
        e.op("s_add_u32 s9, s9, s10")
        self.srd(SK, P_BK, "s9", 184 * 1024)
        self.srd(SV, P_BV, "s9", 184 * 1024)
        self.srd(SRD_WS, P_WS, None, WS_USED)
        e.op(f"s_mul_i32 s9, s{S_H}, {128*1280}")
        e.op(f"s_lshl_b32 s10, s{S_J}, 8")
        e.op("s_add_u32 s9, s9, s10")
        self.srd(SWO, P_BWO, "s9", 128 * 1280)
        e.op(f"s_cmp_eq_u32 s{S_J}, 5")
        e.branch("s_cbranch_scc1", "L_B5")
        saved = list(e.vm)
        e.raw("L_B21:")
        self.gen_B_variant(21, True)
        e.label("L_B5")
        e.vm = saved
        self.gen_B_variant(23, False)

    def gen_B_variant(self, NR, has_wo):
        e, c, B = self.e, self.c, self.B
        S_J, S_H = 5, 6
        SK, SV, SWQ, SWO, SX = self.SK, self.SV, self.SWQ, self.SWO, self.SX
        nt = c.nt
        K = lambda t: B.K + 4 * t
        V = lambda t: B.K + 4 * NR + 4 * t
        assert V(NR - 1) + 3 <= 255
        WQ = lambda t: 236 + 4 * t
        POLL = lambda p: V(NR - 8 + p)
        X = lambda t: B.T + 2 + t
        LQP, LOP, LFP, LQF, LML = 0, 4096, 8192, 12288, 12544
        COMM = self.c.COMM
        S_KO, S_VO, S_T = 72, 73, 7

        def comm_begin():
            lab = e.newlabel("nc")
            e.op(f"s_cmp_lg_u32 s3, {COMM}")
            e.branch("s_cbranch_scc1", lab)
            return lab

        def comm_end(lab):
            e.label(lab)

        nK = [0]
        nV = [0]

        def issue_K():
            t = nK[0]
            nK[0] += 1
            e.op(f"buffer_load_dwordx4 {vr(K(t))}, v{B.vKV}, {sr(SK,4)}, s{S_KO} offen {nt}", tag=("K", t))
            e.op(f"s_addk_i32 s{S_KO}, 0x2000")

        def issue_V():
            t = nV[0]
            nV[0] += 1
            e.op(f"buffer_load_dwordx4 {vr(V(t))}, v{B.vKV}, {sr(SV,4)}, s{S_VO} offen {nt}", tag=("V", t))
            e.op(f"s_addk_i32 s{S_VO}, 0x2000")

        e.op(f"s_mov_b32 s{S_KO}, 0")
        e.op(f"s_mov_b32 s{S_VO}, 0")
        for _ in range(c.K0):
            issue_K()
        if has_wo:
            self.code_prefetch(["s_cmp_lt_u32 s2, 72"], None, 6, B.T + 8, B.WO, 92)
        else:
            self.code_prefetch([f"s_lshr_b32 s7, s2, 3", "s_cmp_eq_u32 s7, 13"], None, 5, B.T + 8, B.WO, 92)
        self.stamp(1)
        e.op("s_waitcnt lgkmcnt(0)")
        e.op(f"s_add_u32 s{S_N}, s{S_N}, 0x{NONCE_STEP:x}")
        self.stage1_compute(X, WQ, B.MASK, B.A0, B.A1, B.ACC, B.vLDS, LQP)
        e.op("s_waitcnt lgkmcnt(0)")
        e.op("s_barrier")
        self.stamp(2)
        self.stage1_publish(S_J, S_H, B.L, B.vWS, B.T, POLL(0), B.T + 7, LQP)
        while nK[0] < NR:
            e.wait_vm_window(c.WK - 1)
            if nK[0] in (4, 8, 12, 16, 20):
                self.stamp(nK[0] // 4, bw=True)
            issue_K()
            if nK[0] == c.POLL_A:
                lab = comm_begin()
                self.qpoll_issue(QB, S_H, POLL, B.vWS)
                comm_end(lab)
                e.mark("qpoll")
        for _ in range(c.PREV):
            e.wait_vm_window(c.WK - 1)
            issue_V()
        lab = comm_begin()
        e.op("s_setprio 2")
        e.wait_vm("qpoll", keep=True)
        self.qpoll_finish(QB, S_H, POLL, B.vWS, B.L, B.T, LQF)
        e.op("s_setprio 0")
        comm_end(lab)
        e.op("s_barrier")
        self.stamp(3)
        e.op(f"v_lshlrev_b32 v{B.T}, 4, v{B.Nn}")
        e.op(f"ds_read_b128 {vr(B.Q)}, v{B.T} offset:{LQF}")
        e.op("s_waitcnt lgkmcnt(0)")
        def dots(ts):
            for t in ts:
                e.wait_vm(("K", t))
            for k in range(4):
                for t in ts:
                    e.op(f"v_dot2_f32_bf16 v{K(t)}, v{K(t)+k}, v{B.Q+k}, {'0' if k == 0 else 'v%d' % K(t)}")
        chunks = [list(range(i, min(i + 4, NR))) for i in range(0, NR, 4)]
        for ci, ch in enumerate(chunks):
            if nV[0] < NR and ci in (0, 3):
                issue_V()
            dots(ch)
        S0 = self.transpose_reduce([K(t) for t in range(16)], B.P0)
        if nV[0] < NR:
            issue_V()
        S1 = self.transpose_reduce([K(t) for t in range(16, NR)], B.P1)
        nvalid = NR - 16
        e.op(f"s_mov_b32 s7, {f32hex(SCALE)}")
        e.op(f"v_mul_f32 v{B.P0}, s7, v{B.P0}")
        e.op(f"v_mul_f32 v{B.P1}, s7, v{B.P1}")
        e.op(f"v_mov_b32 v{B.T}, 0xff800000")
        e.op(f"v_cmp_gt_u32 vcc, {nvalid}, v{B.Nn}")
        e.op(f"v_cndmask_b32 v{B.P1}, v{B.T}, v{B.P1}, vcc")
        e.op(f"v_max_f32 v{B.M}, v{B.P0}, v{B.P1}")
        self.wave_reduce("v_max_f32", B.M, B.T)
        e.op(f"v_sub_f32 v{B.P0}, v{B.P0}, v{B.M}")
        e.op(f"v_sub_f32 v{B.P1}, v{B.P1}, v{B.M}")
        e.op(f"v_exp_f32 v{B.P0}, v{B.P0}")
        e.op(f"v_exp_f32 v{B.P1}, v{B.P1}")
        e.op(f"v_cvt_pk_bf16_f32 v{B.PD0}, v{B.P0}, v{B.P0}")
        e.op(f"v_cvt_pk_bf16_f32 v{B.PD1}, v{B.P1}, v{B.P1}")
        e.op(f"v_lshlrev_b32 v{B.P0}, 16, v{B.PD0}")
        e.op(f"v_lshlrev_b32 v{B.P1}, 16, v{B.PD1}")
        e.op(f"v_add_f32 v{B.Lw}, v{B.P0}, v{B.P1}")
        self.wave_reduce("v_add_f32", B.Lw, B.T)
        assert B.Lw == B.M + 1 and B.M % 2 == 0
        e.op("s_lshl_b32 s7, s3, 3")
        e.op(f"v_mov_b32 v{B.T}, s7")
        self.exec_set(1)
        e.op(f"ds_write_b64 v{B.T}, {vr(B.M,2)} offset:{LML}")
        self.exec_set(-1)
        e.op("s_waitcnt lgkmcnt(0)")
        e.op("s_barrier")
        self.stamp(4)
        T = B.T
        lab = comm_begin()
        e.op("s_setprio 2")
        e.op(f"v_and_b32 v{T}, 7, v{B.L}")
        e.op(f"v_lshlrev_b32 v{T+1}, 3, v{T}")
        e.op(f"ds_read_b64 {vr(T+3,2)}, v{T+1} offset:{LML}")
        e.op("s_waitcnt lgkmcnt(0)")
        e.op(f"v_mov_b32 v{B.MW}, v{T+3}")
        e.op(f"v_mov_b32 v{T+5}, v{T+3}")
        for k in (4, 2, 1):
            e.op(f"v_max_f32_dpp v{T+5}, v{T+5}, v{T+5} row_ror:{k} row_mask:0xf bank_mask:0xf")
        e.op(f"v_sub_f32 v{T+6}, v{T+3}, v{T+5}")
        e.op(f"v_exp_f32 v{T+6}, v{T+6}")
        e.op(f"v_mul_f32 v{T+6}, v{T+6}, v{T+4}")
        for k in (4, 2, 1):
            e.op(f"v_add_f32_dpp v{T+6}, v{T+6}, v{T+6} row_ror:{k} row_mask:0xf bank_mask:0xf")
        g4 = T + 7
        assert g4 % 2 == 0
        e.op(f"v_mov_b32 v{g4}, v{T+5}")
        e.op(f"v_mov_b32 v{g4+1}, s{S_N}")
        e.op(f"v_mov_b32 v{g4+2}, v{T+6}")
        e.op(f"v_mov_b32 v{g4+3}, s{S_N}")
        e.op(f"s_lshl_b32 s8, s{S_H}, 7")
        e.op(f"s_add_u32 s8, s8, {MLG}")
        e.op(f"s_lshl_b32 s9, s{S_J}, 4")
        e.op("s_add_u32 s9, s9, s8")
        e.op(f"v_mov_b32 v{T+1}, 0")
        self.exec_set(1)
        e.op(f"buffer_store_dwordx4 {vr(g4)}, v{T+1}, {sr(SRD_WS,4)}, s9 offen sc1", count=False)
        self.exec_set(-1)
        e.op("s_setprio 0")
        comm_end(lab)
        def a_regs(t):
            A = B.A0 if t % 2 == 0 else B.A1
            pd = B.PD0 if t < 16 else B.PD1
            for r in range(4):
                e.op(f"v_and_b32_dpp v{A+r}, v{pd}, v{B.MASK+r} row_newbcast:{t & 15} row_mask:0xf bank_mask:0xf")
            return A
        ML_ISSUE = min(6, NR - 8)
        ML_CHECK = NR - 5
        wo_issued = False
        A = a_regs(0)
        for t in range(NR):
            while nV[0] < NR and nV[0] < t + c.W:
                issue_V()
            if nV[0] == NR and has_wo and not wo_issued:
                for u in range(4):
                    if u == 0:
                        e.op("s_lshl_b32 s7, s3, 4")
                        e.op(f"v_add_u32 v{T}, s7, v{B.G}")
                        e.op(f"v_mul_u32_u24 v{T}, 1280, v{T}")
                        e.op(f"v_lshlrev_b32 v{T+1}, 4, v{B.Nn}")
                        e.op(f"v_add_u32 v{B.vWQ}, v{T}, v{T+1}")
                    e.op(f"s_mov_b32 s7, {5120*u}")
                    e.op(f"buffer_load_dwordx4 {vr(B.WO+4*u)}, v{B.vWQ}, {sr(SWO,4)}, s7 offen {nt}", tag=("wo", u))
                wo_issued = True
            e.wait_vm(("V", t))
            if t in (0, 4, 8, 12, 16, 20):
                self.stamp(6 + t // 4, bw=True)
            e.op(f"v_mfma_f32_16x16x32_bf16 {vr(B.ACC)}, {vr(A)}, {vr(V(t))}, {'0' if t == 0 else vr(B.ACC)}")
            if t + 1 < NR:
                A = a_regs(t + 1)
            if t == ML_ISSUE:
                lab = comm_begin()
                self.ml_poll_issue(B, T)
                comm_end(lab)
                e.mark("mlpoll")
            if t == ML_CHECK:
                lab = comm_begin()
                e.wait_vm("mlpoll", keep=True)
                self.ml_poll_finish(B, T)
                comm_end(lab)
        self.stamp(5)
        self.exec_set(0xffffffff)
        e.op(f"ds_write_b128 v{B.vLDS}, {vr(B.ACC)} offset:{LOP}")
        self.exec_set(-1)
        e.op("s_waitcnt lgkmcnt(0)")
        e.op("s_barrier")
        self.stamp(6)
        lab = comm_begin()
        e.op("s_setprio 2")
        a = K(0)
        e.op(f"v_lshlrev_b32 v{T}, 3, v{B.L}")
        for w in range(8):
            e.op(f"ds_read_b64 {vr(a+2*w,2)}, v{T} offset:{LOP+512*w}")
        e.op(f"s_mul_i32 s8, s{S_H}, 6")
        e.op(f"s_add_u32 s9, s8, s{S_J}")
        e.op("s_lshl_b32 s9, s9, 10")
        e.op(f"s_add_u32 s9, s9, {OB}")
        e.op(f"v_mov_b32 v{g4+1}, s{S_N}")
        e.op(f"v_mov_b32 v{g4+3}, s{S_N}")
        e.op("s_waitcnt lgkmcnt(0)")
        e.op(f"v_mul_f32 v{g4}, s92, v{a}")
        e.op(f"v_mul_f32 v{g4+2}, s92, v{a+1}")
        e.op(f"v_mul_f32 v{T+1}, s93, v{a+2}")
        e.op(f"v_mul_f32 v{T+2}, s93, v{a+3}")
        for w in range(2, 8, 2):
            e.op(f"v_fmac_f32 v{g4}, s{92+w}, v{a+2*w}")
            e.op(f"v_fmac_f32 v{g4+2}, s{92+w}, v{a+2*w+1}")
            e.op(f"v_fmac_f32 v{T+1}, s{93+w}, v{a+2*w+2}")
            e.op(f"v_fmac_f32 v{T+2}, s{93+w}, v{a+2*w+3}")
        e.op(f"v_add_f32 v{g4}, v{g4}, v{T+1}")
        e.op(f"v_add_f32 v{g4+2}, v{g4+2}, v{T+2}")
        e.op(f"buffer_store_dwordx4 {vr(g4)}, v{B.vWS}, {sr(SRD_WS,4)}, s9 offen sc1", count=False)
        e.op("s_setprio 0")
        comm_end(lab)
        self.stamp(7)
        if has_wo:
            self.gen_B_tail(K, T, LFP, COMM, comm_begin, comm_end)
        else:
            self.gen_B_final(K, T)
        self.stamp(10)
        self.dump_stamps("B")
        e.op("s_endpgm")

    def pending_K(self, e):
        return sum(1 for t in e.vm if isinstance(t, tuple) and t[0] == "K")

    def copy4(self, base):
        if base % 2 == 0:
            self.c4 = base
        else:
            raise AssertionError("odd base")

    def transpose_reduce(self, R, dst):
        e = self.e
        n = len(R)
        for t in range(8):
            if t < n:
                e.op(f"v_add_f32_dpp v{R[t]}, v{R[t]}, v{R[t]} row_ror:8 row_mask:0xf bank_mask:0x3")
        for t in range(8):
            if t + 8 < n:
                e.op(f"v_add_f32_dpp v{R[t]}, v{R[t+8]}, v{R[t+8]} row_ror:8 row_mask:0xf bank_mask:0xc")
        m = min(n, 8)
        for t in range(4):
            if t < m:
                e.op(f"v_add_f32_dpp v{R[t]}, v{R[t]}, v{R[t]} row_half_mirror row_mask:0xf bank_mask:0x5")
        for t in range(4):
            if t + 4 < m:
                e.op(f"v_add_f32_dpp v{R[t]}, v{R[t+4]}, v{R[t+4]} row_half_mirror row_mask:0xf bank_mask:0xa")
        assert m >= 4
        for t in range(4):
            e.op(f"v_add_f32_dpp v{R[t]}, v{R[t]}, v{R[t]} quad_perm:[2,3,0,1] row_mask:0xf bank_mask:0xf")
        e.op("s_mov_b32 s8, 0xcccccccc")
        e.op("s_mov_b32 s9, 0xcccccccc")
        e.op("s_mov_b32 s10, 0xaaaaaaaa")
        e.op("s_mov_b32 s11, 0xaaaaaaaa")
        e.op(f"v_cndmask_b32 v{R[0]}, v{R[0]}, v{R[2]}, s[8:9]")
        e.op(f"v_cndmask_b32 v{R[1]}, v{R[1]}, v{R[3]}, s[8:9]")
        for t in range(2):
            e.op(f"v_add_f32_dpp v{R[t]}, v{R[t]}, v{R[t]} quad_perm:[1,0,3,2] row_mask:0xf bank_mask:0xf")
        e.op(f"v_cndmask_b32 v{dst}, v{R[0]}, v{R[1]}, s[10:11]")
        return dst

    def ml_poll_issue(self, B, T):
        e = self.e
        S_H = 6
        e.op(f"v_and_b32 v{T}, 7, v{B.L}")
        e.op(f"v_min_u32 v{T}, 5, v{T}")
        e.op(f"v_lshlrev_b32 v{T}, 4, v{T}")
        e.op(f"s_lshl_b32 s8, s{S_H}, 7")
        e.op(f"s_add_u32 s8, s8, {MLG}")
        e.op(f"buffer_load_dwordx4 {vr(T+7)}, v{T}, {sr(SRD_WS,4)}, s8 offen sc1", count=False)

    def ml_poll_finish(self, B, T):
        e = self.e
        g4 = T + 7
        self.spin_init()
        chk, done = e.newlabel("mlchk"), e.newlabel("mldone")
        e.label(chk)
        self.tags_bad(T + 1, [g4 + 1, g4 + 3])
        e.op(f"v_cmp_ne_u32 vcc, 0, v{T+1}")
        e.op("s_cmp_eq_u64 vcc, 0")
        e.branch("s_cbranch_scc1", done)
        self.spin_step(done)
        self.ml_poll_issue(B, T)
        e.op("s_waitcnt vmcnt(0)")
        e.branch("s_branch", chk)
        e.label(done)
        e.op(f"v_and_b32 v{T}, 7, v{B.L}")
        e.op(f"v_cmp_gt_u32 vcc, 6, v{T}")
        e.op(f"v_cndmask_b32 v{g4+2}, 0, v{g4+2}, vcc")
        e.op(f"v_mov_b32 v{T+2}, v{g4}")
        for k in (4, 2, 1):
            e.op(f"v_max_f32_dpp v{T+2}, v{T+2}, v{T+2} row_ror:{k} row_mask:0xf bank_mask:0xf")
        e.op(f"v_sub_f32 v{T+3}, v{g4}, v{T+2}")
        e.op(f"v_exp_f32 v{T+3}, v{T+3}")
        e.op(f"v_mul_f32 v{T+3}, v{T+3}, v{g4+2}")
        for k in (4, 2, 1):
            e.op(f"v_add_f32_dpp v{T+3}, v{T+3}, v{T+3} row_ror:{k} row_mask:0xf bank_mask:0xf")
        e.op(f"v_rcp_f32 v{T+3}, v{T+3}")
        e.op(f"v_sub_f32 v{T+4}, v{B.MW}, v{T+2}")
        e.op(f"v_exp_f32 v{T+4}, v{T+4}")
        e.op(f"v_mul_f32 v{T+4}, v{T+4}, v{T+3}")
        for w in range(8):
            e.op(f"v_readlane_b32 s{92+w}, v{T+4}, {w}")

    def gen_B_final(self, K, T):
        e, c, B = self.e, self.c, self.B
        S_H = 6
        fin = e.newlabel("bfin")
        e.op(f"s_mov_b32 s14, s{S_H}")
        e.op("s_cmp_eq_u32 s3, 1")
        go = e.newlabel("bgo")
        e.branch("s_cbranch_scc1", go)
        e.op("s_cmp_lg_u32 s3, 2")
        e.branch("s_cbranch_scc1", fin)
        e.op(f"s_cmp_ge_u32 s{S_H}, 8")
        e.branch("s_cbranch_scc1", fin)
        e.op("s_add_u32 s14, s14, 32")
        e.label(go)
        self.srd(68, P_OUT, None, 2560)
        e.op("s_lshr_b32 s7, s14, 3")
        e.op("s_lshl_b32 s7, s7, 15")
        e.op("s_and_b32 s8, s14, 7")
        e.op("s_lshl_b32 s8, s8, 7")
        e.op("s_add_u32 s7, s7, s8")
        e.op(f"s_add_u32 s10, s7, {FB}")
        e.op("s_lshl_b32 s14, s14, 5")
        e.op("s_add_u32 s14, s14, 1280")
        self.final_reduce(4, 1024, 10, 14, 68, T, K(0), B.L, pipelined=True)
        e.label(fin)

    def final_reduce(self, nload, stride, s_base, s_out, s_outsrd, T, D, vL, pipelined):
        e = self.e
        e.op(f"v_lshrrev_b32 v{T}, 3, v{vL}")
        e.op(f"v_mul_u32_u24 v{T}, {stride}, v{T}")
        e.op(f"v_and_b32 v{T+1}, 7, v{vL}")
        e.op(f"v_lshlrev_b32 v{T+1}, 4, v{T+1}")
        e.op(f"v_add_u32 v{T}, v{T}, v{T+1}")
        R = D + 8 * nload
        S = lambda k, u: D + 4 * nload * k + 4 * u

        def issue(k):
            e.op(f"s_mov_b32 s7, s{s_base}")
            for u in range(nload):
                e.op(f"buffer_load_dwordx4 {vr(S(k, u))}, v{T}, {sr(SRD_WS,4)}, s7 offen sc1", count=False)
                if u + 1 < nload:
                    e.op(f"s_add_u32 s7, s7, {8*stride}")

        def on_ok(k):
            n = nload
            while n > 2:
                h = n // 2
                for u in range(h):
                    for j in (0, 2):
                        e.op(f"v_add_f32 v{S(k,u)+j}, v{S(k,u)+j}, v{S(k,u+h)+j}")
                n = h
            for j in (0, 2):
                e.op(f"v_add_f32 v{R+j}, v{S(k,0)+j}, v{S(k,1)+j}")
        tags = lambda k: [S(k, u) + j for u in range(nload) for j in (1, 3)]
        if pipelined:
            self.poll2(issue, nload, tags, T + 2, on_ok)
        else:
            self.spin_init()
            poll, done = e.newlabel("rpoll"), e.newlabel("rdone")
            e.label(poll)
            issue(0)
            e.op("s_waitcnt vmcnt(0)")
            self.tags_bad(T + 2, tags(0))
            e.op(f"v_cmp_ne_u32 vcc, 0, v{T+2}")
            e.op(f"s_cbranch_vccz {done}")
            e.op("s_sleep 2")
            self.spin_step(done)
            e.branch("s_branch", poll)
            e.label(done)
            on_ok(0)
        for j in (0, 2):
            e.op(f"v_add_f32_dpp v{R+j}, v{R+j}, v{R+j} row_ror:8 row_mask:0xf bank_mask:0xf")
        for j in (0, 2):
            e.op(f"v_mov_b32 v{T+2+j//2}, v{R+j}")
        for j in (0, 2):
            e.op(f"v_permlane16_swap_b32 v{R+j}, v{T+2+j//2}")
        for j in (0, 2):
            e.op(f"v_add_f32 v{R+j}, v{R+j}, v{T+2+j//2}")
        for j in (0, 2):
            e.op(f"v_mov_b32 v{T+2+j//2}, v{R+j}")
        for j in (0, 2):
            e.op(f"v_permlane32_swap_b32 v{R+j}, v{T+2+j//2}")
        for j in (0, 2):
            e.op(f"v_add_f32 v{R+j}, v{R+j}, v{T+2+j//2}")
        e.op(f"v_cvt_pk_bf16_f32 v{R}, v{R}, v{R+2}")
        e.op(f"v_lshlrev_b32 v{T}, 2, v{vL}")
        self.exec_set(0xff)
        e.op(f"buffer_store_dword v{R}, v{T}, s[{s_outsrd}:{s_outsrd+3}], s{s_out} offen", count=False)
        self.exec_set(-1)

    def gen_B_tail(self, K, T, LFP, COMM, comm_begin, comm_end):
        e, c, B = self.e, self.c, self.B
        S_J, S_H = 5, 6
        g4 = K(8)
        e.op(f"v_lshrrev_b32 v{T}, 3, v{B.L}")
        e.op(f"v_lshlrev_b32 v{T}, 10, v{T}")
        e.op(f"v_and_b32 v{T+1}, 7, v{B.L}")
        e.op(f"v_lshlrev_b32 v{T+1}, 4, v{T+1}")
        e.op(f"s_lshl_b32 s8, s3, 7")
        e.op(f"v_add3_u32 v{T}, v{T}, v{T+1}, s8")
        e.op(f"s_mul_i32 s8, s{S_H}, {6*1024}")
        e.op(f"s_add_u32 s8, s8, {OB}")
        S = lambda k: K(9 + k)
        for k in (0, 2):
            e.op(f"v_mov_b32 v{g4+k}, 0")
        self.exec_set(0x0000ffffffffffff)

        def issue(k):
            e.op(f"buffer_load_dwordx4 {vr(S(k))}, v{T}, {sr(SRD_WS,4)}, s8 offen sc1", count=False)

        def on_ok(k):
            e.op(f"v_mov_b32 v{g4}, v{S(k)}")
            e.op(f"v_mov_b32 v{g4+2}, v{S(k)+2}")
        self.poll2(issue, 1, lambda k: [S(k) + 1, S(k) + 3], T + 2, on_ok)
        e.vm = []
        self.exec_set(-1)
        self.stamp(8)
        for k in (0, 2):
            e.op(f"v_add_f32_dpp v{g4+k}, v{g4+k}, v{g4+k} row_ror:8 row_mask:0xf bank_mask:0xf")
        for k in (0, 2):
            e.op(f"v_mov_b32 v{T+2+k//2}, v{g4+k}")
        for k in (0, 2):
            e.op(f"v_permlane16_swap_b32 v{g4+k}, v{T+2+k//2}")
        for k in (0, 2):
            e.op(f"v_add_f32 v{g4+k}, v{g4+k}, v{T+2+k//2}")
        for k in (0, 2):
            e.op(f"v_mov_b32 v{T+2+k//2}, v{g4+k}")
        for k in (0, 2):
            e.op(f"v_permlane32_swap_b32 v{g4+k}, v{T+2+k//2}")
        for k in (0, 2):
            e.op(f"v_add_f32 v{g4+k}, v{g4+k}, v{T+2+k//2}")
        e.op(f"v_cvt_pk_bf16_f32 v{g4}, v{g4}, v{g4}")
        e.op(f"v_cvt_pk_bf16_f32 v{g4+2}, v{g4+2}, v{g4+2}")
        e.op("s_mov_b32 s8, 0xffff0000")
        e.op("s_mov_b32 s9, 0xffff0000")
        e.op(f"v_cndmask_b32 v{g4}, v{g4}, v{g4+2}, s[8:9]")
        e.op(f"v_mov_b32_dpp v{g4}, v{g4} row_shl:1 row_mask:0xc bank_mask:0xf")
        for u in range(4):
            A = B.A0 if u % 2 == 0 else B.A1
            for r in range(4):
                e.op(f"v_and_b32_dpp v{A+r}, v{g4}, v{B.MASK+r} row_newbcast:{2*u} row_mask:0xf bank_mask:0xf")
            e.op(f"v_mfma_f32_16x16x32_bf16 {vr(B.ACC)}, {vr(A)}, {vr(B.WO+4*u)}, {'0' if u == 0 else vr(B.ACC)}")
        self.exec_set(0xffffffff)
        e.op(f"ds_write_b128 v{B.vLDS}, {vr(B.ACC)} offset:{LFP}")
        self.exec_set(-1)
        e.op("s_waitcnt lgkmcnt(0)")
        e.op("s_barrier")
        self.stamp(9)
        lab = comm_begin()
        a = K(0)
        e.op(f"v_lshlrev_b32 v{T}, 3, v{B.L}")
        for w in range(8):
            e.op(f"ds_read_b64 {vr(a+2*w,2)}, v{T} offset:{LFP+512*w}")
        e.op(f"s_lshl_b32 s8, s{S_J}, 5")
        e.op(f"s_add_u32 s8, s8, s{S_H}")
        e.op("s_lshl_b32 s8, s8, 10")
        e.op(f"s_add_u32 s8, s8, {FB}")
        g = T + 7
        e.op(f"v_mov_b32 v{g+1}, s{S_N}")
        e.op(f"v_mov_b32 v{g+3}, s{S_N}")
        e.op("s_waitcnt lgkmcnt(0)")
        for w in (1, 3, 5, 7):
            e.op(f"v_add_f32 v{a+2*(w-1)}, v{a+2*(w-1)}, v{a+2*w}")
            e.op(f"v_add_f32 v{a+2*(w-1)+1}, v{a+2*(w-1)+1}, v{a+2*w+1}")
        for w in (2, 6):
            e.op(f"v_add_f32 v{a+2*(w-2)}, v{a+2*(w-2)}, v{a+2*w}")
            e.op(f"v_add_f32 v{a+2*(w-2)+1}, v{a+2*(w-2)+1}, v{a+2*w+1}")
        e.op(f"v_add_f32 v{g}, v{a}, v{a+8}")
        e.op(f"v_add_f32 v{g+2}, v{a+1}, v{a+9}")
        e.op(f"buffer_store_dwordx4 {vr(g)}, v{B.vWS}, {sr(SRD_WS,4)}, s8 offen sc1", count=False)
        comm_end(lab)

    def gen_A(self):
        self.in_B = False
        from gen_a import gen_A
        gen_A(self)


L_C = 0
C_STRIDE = 1056
L_QA = 128 * C_STRIDE
L_P = L_QA + 16 * C_STRIDE
P_STRIDE = 288
L_QACC = L_P + 16 * P_STRIDE
L_MX = L_QACC + 256
L_LX = L_MX + 512
L_CTX = L_LX + 512
L_END = L_CTX + 256
LDS_TOTAL = 160 * 1024
assert L_END <= LDS_TOTAL


def main():
    ap = argparse.ArgumentParser()
    ap.add_argument("-o", default="concat_heads__compressed_kv_cla__mha_block_cached__decode.s")
    ap.add_argument("--set", nargs="*", default=[])
    a = ap.parse_args()
    kw = {}
    for s in a.set:
        k, v = s.split("=")
        try:
            v = eval(v) if v.startswith("[") else int(v)
        except ValueError:
            v = {"True": True, "False": False, "None": None}.get(v, v)
        kw[k] = v
    g = Gen(Cfg(**kw))
    txt = g.build()
    open(a.o, "w").write(txt)
    print("wrote", a.o, len(txt), "bytes;", g.e.nops, "nop pads")


if __name__ == "__main__":
    main()
```

```python
import gen as G
from gen import (sr, vr, f32hex, SCALE, S_N, SRD_WS, P_AX, P_CKV, P_WQA, P_WUK, P_WUV, P_WOA, P_OUT, P_WS,
                 EPOCH, QA, QAF, MLA, OAF, OA, FA, FB, NONCE_STEP,
                 L_C, C_STRIDE, L_QA, L_P, P_STRIDE, L_QACC, L_MX, L_LX, L_CTX)


def gen_A(g):
    e, c = g.e, g.c
    tail = getattr(c, "tail", False)
    if tail:
        real_stamp = g.stamp
        keep = {True: (9, 10, 11), "p3": (9, 10, 11), "t2": (4, 5, 6, 7, 8)}[tail]
        g.stamp = lambda i, **kw: real_stamp(i) if i in keep else None
    tstamp = (lambda i: real_stamp(i)) if tail is True else (lambda i: None)
    pstamp = (lambda i: real_stamp(i)) if tail == "p3" else (lambda i: None)
    t2stamp = (lambda i: real_stamp(i)) if tail == "t2" else (lambda i: None)
    nt = c.nt
    e.vm = []
    S_DH, S_H, S_KB, S_HG, S_P = 5, 6, 12, 13, 76
    SX, SWQ, SUK, SUV, SWO, SCK = 52, 56, 60, 64, 68, 72
    L, Gq, N_ = 0, 1, 2
    M8, M4 = 4, 8
    ACC = 12
    A0, A1 = 16, 20
    vX, vWQ, vUK, vWO, vL16, vRHO, vK = 24, 25, 26, 27, 28, 29, 30
    QC2 = 40

    T = 36
    WQ = lambda t: 48 + 4 * t
    UK = lambda t: 88 + 4 * t
    UV = lambda t: 120 + 4 * t
    WO = lambda t: 152 + 4 * t
    X = lambda t: 192 + t
    BUF0, BUF1 = 192, 224
    VALID = 0xFF00FF0000FF00FF

    e.op("s_lshr_b32 s7, s2, 3")
    e.op("s_and_b32 s8, s2, 7")
    e.op("s_lshl_b32 s8, s8, 3")
    e.op(f"s_add_u32 s{S_P}, s7, s8")
    e.op(f"s_lshr_b32 s6, s{S_P}, 1")
    e.op(f"s_and_b32 s5, s{S_P}, 1")
    e.op("s_and_b32 s12, s2, 7")
    e.op("s_lshr_b32 s7, s2, 4")
    e.op("s_lshl_b32 s7, s7, 3")
    e.op("s_add_u32 s12, s12, s7")
    e.op("s_lshr_b32 s13, s2, 3")
    e.op("s_and_b32 s13, s13, 1")
    S_CKX = 79 if not c.prof else 14
    S_CKX = 101
    e.op(f"s_lshl_b32 s{S_CKX}, s{S_HG}, 3")
    if c.avar:
        e.op(f"s_cmp_eq_u32 s{S_HG}, {c.A1_HG}")
        e.branch("s_cbranch_scc1", "L_A1")
        gen_A_body(g, 0, locals())
        e.label("L_A1")
        gen_A_body(g, 1, locals())
    else:
        gen_A_body(g, 0, locals())


def gen_A_body(g, variant, env):
    e, c = g.e, g.c
    nt = c.nt
    e.vm = []
    (S_DH, S_H, S_KB, S_HG, S_P, SX, SWQ, SUK, SUV, SWO, SCK, L, Gq, N_, M8, M4, ACC, A0, A1, vX, vWQ, vUK, vWO, vL16, vRHO, vK,
     QC2, T, UK, UV, WO, BUF0, BUF1, VALID, S_CKX, tstamp, pstamp, t2stamp, tail) = (env[k] for k in (
        "S_DH S_H S_KB S_HG S_P SX SWQ SUK SUV SWO SCK L Gq N_ M8 M4 ACC A0 A1 vX vWQ vUK vWO vL16 vRHO vK "
        "QC2 T UK UV WO BUF0 BUF1 VALID S_CKX tstamp pstamp t2stamp tail").split())
    S_S = 77
    e.op(f"s_add_u32 s{S_S}, s{S_DH}, 6")
    vS1W, vS1X, vLDS = 25, 24, 33
    X1 = lambda t: 192 + t
    W1 = lambda t: 48 + 4 * t
    LQP, LQF = L_QA, L_QA + 4096
    e.op(f"v_lshrrev_b32 v3, 1, v{N_}")
    g.make_masks(M4, 3, N_, T, T + 1)
    g.stage1_setup(S_S, S_H, vS1W, vS1X, Gq, N_, T, SX, SWQ)
    e.op("s_lshl_b32 s9, s3, 9")
    e.op(f"v_lshlrev_b32 v{vLDS}, 5, v{N_}")
    e.op(f"v_lshlrev_b32 v{T+1}, 4, v{Gq}")
    e.op(f"s_add_u32 s9, s9, {LQP}")
    e.op(f"v_add3_u32 v{vLDS}, v{vLDS}, v{T+1}, s9")
    e.op("s_lshl_b32 s7, s3, 5")
    e.op(f"v_lshlrev_b32 v{T}, 3, v{Gq}")
    e.op(f"v_add_u32 v{T}, s7, v{T}")
    e.op(f"v_lshlrev_b32 v{T}, 13, v{T}")
    e.op(f"v_lshlrev_b32 v{T+1}, 4, v{N_}")
    vUK2 = 34
    e.op(f"v_add_u32 v{vUK2}, v{T}, v{T+1}")
    e.op("s_waitcnt lgkmcnt(0)")
    if c.prof:
        e.op("s_mov_b32 s80, s78")
    e.op(f"s_load_dword s{S_N}, {sr(P_WS)}, {EPOCH}")
    g.stage1_srds(SX, SWQ)
    g.stage1_issue(X1, W1, vS1X, vS1W, SX, SWQ)
    e.op(f"s_lshl_b32 s9, s{S_H}, 8")
    e.op(f"s_lshl_b32 s10, s{S_DH}, 21")
    e.op("s_add_u32 s9, s9, s10")
    g.srd(SUK, P_WUK, "s9", 256 * 8192)
    def issue_uk(t):
        e.op(f"s_mov_b32 s7, {t*8192}")
        e.op(f"buffer_load_dwordx4 {vr(UK(t))}, v{vUK2}, {sr(SUK,4)}, s7 offen {nt}", tag=("uk", t))

    def issue_ck(i):
        e.op(f"s_lshl_b32 s7, s3, 4")
        if c.ckrot and not c.avar:
            e.op(f"s_xor_b32 s8, s{S_CKX}, {i}")
            e.op("s_add_u32 s7, s7, s8")
        else:
            e.op(f"s_add_u32 s7, s7, {i}")
        e.op(f"s_mul_i32 s8, s7, {C_STRIDE}")
        e.op("s_lshl_b32 s7, s7, 10")
        e.op("s_mov_b32 m0, s8")
        e.op(f"buffer_load_dwordx4 v{vL16}, {sr(SCK,4)}, s7 offen {c.nt_ckv} lds", tag=("ck", i))

    def issue_uv(t):
        e.op(f"s_mov_b32 s7, {t*8192}")
        e.op(f"buffer_load_dwordx4 {vr(UV(t))}, v{vUK}, {sr(SUV,4)}, s7 offen {nt}", tag=("uv", t))

    def issue_wo(t):
        r2, cb = t // 5, t % 5
        e.op(f"s_mov_b32 s7, {5120*r2}")
        e.op(f"buffer_load_dwordx4 {vr(WO(t))}, v{vWO}, {sr(SWO,4)}, s7 offen offset:{256*cb} {nt}", tag=("wo", t))
    queue = ([(issue_uk, t) for t in range(8)] + [(issue_ck, t) for t in range(16)] +
             [(issue_uv, t) for t in range(8)] + [(issue_wo, t) for t in range(10)])
    sched = list(c.PFA)
    if variant == 1:
        n = c.A1_UV
        queue = ([(issue_uk, t) for t in range(8)] + [(issue_uv, t) for t in range(n)] + [(issue_ck, t) for t in range(16)] +
                 [(issue_uv, t) for t in range(n, 8)] + [(issue_wo, t) for t in range(10)])
        sched = list(c.PFA1)

    def pf(point, upto=None):
        n = sched[point] if point < len(sched) else 0
        while queue and (n > 0 or (upto is not None and any(f is upto for f, _ in queue))):
            f, t = queue.pop(0)
            f(t)
            n -= 1
    pf(0)
    if not c.avar:
        g.code_prefetch(["s_cmp_lt_u32 s2, 8"], "L_end", 8, T, 224, 92)
    e.op(f"v_lshrrev_b32 v{vRHO}, 3, v{L}")
    e.op(f"v_and_b32 v{vK}, 7, v{L}")
    e.op(f"v_lshrrev_b32 v3, 1, v{vK}")
    g.make_masks(M8, 3, N_, T, T + 1)
    e.op("s_lshl_b32 s7, s3, 6")
    e.op(f"v_lshlrev_b32 v{T}, 3, v{vRHO}")
    e.op(f"v_add_u32 v{T}, s7, v{T}")
    e.op(f"v_lshlrev_b32 v{T}, 13, v{T}")
    e.op(f"v_lshlrev_b32 v{T+1}, 4, v{vK}")
    e.op(f"v_add_u32 v{vUK}, v{T}, v{T+1}")
    e.op("s_lshl_b32 s7, s3, 3")
    e.op(f"v_add_u32 v{T}, s7, v{Gq}")
    e.op(f"v_mul_u32_u24 v{T}, 1280, v{T}")
    e.op(f"v_lshlrev_b32 v{T+1}, 4, v{N_}")
    e.op(f"v_add_u32 v{vWO}, v{T}, v{T+1}")
    e.op(f"v_lshlrev_b32 v{vL16}, 4, v{L}")
    e.op(f"s_lshl_b32 s9, s{S_H}, 8")
    e.op(f"s_lshl_b32 s10, s{S_DH}, 7")
    e.op("s_add_u32 s9, s9, s10")
    g.srd(SUV, P_WUV, "s9", 512 * 8192)
    g.srd(SRD_WS, P_WS, None, G.WS_USED)
    e.op(f"s_lshl_b32 s9, s{S_H}, 7")
    e.op(f"s_lshl_b32 s10, s{S_DH}, 6")
    e.op("s_add_u32 s9, s9, s10")
    e.op("s_mul_i32 s9, s9, 1280")
    g.srd(SWO, P_WOA, "s9", 64 * 1280)
    e.op(f"s_lshl_b32 s9, s{S_KB}, 17")
    g.srd(SCK, P_CKV, "s9", 128 * 1024)
    e.op("s_waitcnt lgkmcnt(0)")
    e.op(f"s_add_u32 s{S_N}, s{S_N}, 0x{NONCE_STEP:x}")
    g.stamp(1)
    g.stage1_compute(X1, W1, M4, A0, A1, ACC, vLDS, 0)
    e.op("s_waitcnt lgkmcnt(0)")
    e.op("s_barrier")
    g.stage1_publish(S_S, S_H, L, vL16, T, 192, T + 4, LQP)
    pf(1)
    POLLA = lambda p: 192 + 4 * p
    lab = e.newlabel("qa")
    e.op("s_cmp_lg_u32 s3, 3")
    e.branch("s_cbranch_scc1", lab)
    e.op("s_setprio 2")
    fast = G.QAQX if c.dual else None
    g.spin_init()
    g.qpoll_issue(G.QAQ, S_H, POLLA, vL16, fast)
    e.op("s_waitcnt vmcnt(0)")
    g.qpoll_finish(G.QAQ, S_H, POLLA, vL16, L, T, LQF, fast if c.dual else None)
    e.op("s_setprio 0")
    e.label(lab)
    pf(2, upto=issue_uk)
    e.op("s_barrier")
    g.stamp(2)
    e.op(f"v_lshlrev_b32 v{T}, 4, v{N_}")
    e.op(f"v_add_u32 v{T}, {LQF}, v{T}")
    e.op(f"ds_read_b128 {vr(QC2)}, v{T}")
    pf(3)
    e.op("s_waitcnt lgkmcnt(0)")
    for half in range(2):
        ts = list(range(4 * half, 4 * half + 4))
        for t in ts:
            e.wait_vm(("uk", t))
        for k in range(4):
            for t in ts:
                e.op(f"v_dot2_f32_bf16 v{UK(t)}, v{UK(t)+k}, v{QC2+k}, {'0' if k == 0 else 'v%d' % UK(t)}")
    for k in (8, 4, 2, 1):
        for t in range(8):
            e.op(f"v_add_f32_dpp v{UK(t)}, v{UK(t)}, v{UK(t)} row_ror:{k} row_mask:0xf bank_mask:0xf")
    for k in range(4):
        e.op(f"v_cvt_pk_bf16_f32 v{T+4+k}, v{UK(2*k)}, v{UK(2*k+1)}")
    assert (T + 4) % 2 == 0
    e.op(f"v_lshlrev_b32 v{T}, 4, v{Gq}")
    e.op(f"s_lshl_b32 s7, s{S_P}, 9")
    e.op("s_lshl_b32 s8, s3, 6")
    e.op("s_add_u32 s7, s7, s8")
    e.op(f"s_add_u32 s7, s7, {QA}")
    g.exec_set(0x0001000100010001)
    e.op(f"buffer_store_dwordx4 {vr(T+4)}, v{T}, {sr(SRD_WS,4)}, s7 offen sc1", tag="qast")
    g.exec_set(-1)
    pf(4)
    e.wait_vm("qast")
    e.op("s_barrier")
    g.stamp(3)
    lab = e.newlabel("fl")
    e.op("s_cmp_lg_u32 s3, 0")
    e.branch("s_cbranch_scc1", lab)
    e.op(f"v_and_b32 v{T}, 7, v{L}")
    e.op(f"v_lshrrev_b32 v{T+1}, 3, v{L}")
    e.op(f"v_lshlrev_b32 v{T+1}, 4, v{T+1}")
    e.op(f"s_lshr_b32 s7, s{S_H}, 4")
    e.op("s_lshl_b32 s7, s7, 3")
    e.op(f"v_add3_u32 v{T}, v{T}, v{T+1}, s7")
    e.op(f"v_lshlrev_b32 v{T}, 8, v{T}")
    e.op(f"s_and_b32 s7, s{S_H}, 15")
    e.op("s_lshl_b32 s7, s7, 1")
    e.op(f"s_add_u32 s7, s7, s{S_DH}")
    e.op("s_lshl_b32 s7, s7, 3")
    e.op(f"s_add_u32 s7, s7, {QAF}")
    e.op(f"v_mov_b32 v{T+2}, s{S_N}")
    e.op(f"v_mov_b32 v{T+3}, s{S_N}")
    g.exec_set(0xffffffff)
    e.op(f"buffer_store_dwordx2 {vr(T+2,2)}, v{T}, {sr(SRD_WS,4)}, s7 offen sc1", count=False)
    g.exec_set(-1)
    e.label(lab)
    pf(5, upto=issue_ck)

    def scalar_flag_poll(off_expr_setup):
        off_expr_setup()
        e.op(f"s_mov_b32 s10, s{S_N}")
        e.op(f"s_mov_b32 s11, s{S_N}")
        g.spin_init()
        poll, done = e.newlabel("fpoll"), e.newlabel("fdone")
        e.label(poll)
        e.op("s_load_dwordx8 s[92:99], s[8:9], 0 glc")
        e.op("s_waitcnt lgkmcnt(0)")
        for k in range(4):
            e.op(f"s_xor_b64 s[{92+2*k}:{93+2*k}], s[{92+2*k}:{93+2*k}], s[10:11]")
        e.op("s_or_b64 s[92:93], s[92:93], s[94:95]")
        e.op("s_or_b64 s[96:97], s[96:97], s[98:99]")
        e.op("s_or_b64 s[92:93], s[92:93], s[96:97]")
        e.op("s_cmp_eq_u64 s[92:93], 0")
        e.branch("s_cbranch_scc1", done)
        g.spin_step(done)
        e.branch("s_branch", poll)
        e.label(done)

    def qaf_addr():
        e.op("s_lshl_b32 s7, s2, 8")
        e.op("s_lshl_b32 s8, s3, 5")
        e.op("s_add_u32 s7, s7, s8")
        e.op(f"s_add_u32 s7, s7, {QAF}")
        e.op(f"s_add_u32 s8, s{P_WS}, s7")
        e.op(f"s_addc_u32 s9, s{P_WS+1}, 0")
    scalar_flag_poll(qaf_addr)
    g.stamp(4)
    e.op(f"s_lshl_b32 s7, s{S_HG}, 14")
    e.op("s_lshl_b32 s8, s3, 11")
    e.op("s_add_u32 s7, s7, s8")
    e.op(f"s_add_u32 s7, s7, {QA}")
    for u in range(2):
        e.op(f"buffer_load_dwordx4 {vr(BUF0+4*u)}, v{vL16}, {sr(SRD_WS,4)}, s7 offen offset:{1024*u} sc1", tag=("qa", u))
    pf(6)
    e.wait_vm(("qa", 1))
    e.op(f"s_mul_i32 s7, s3, {2*C_STRIDE}")
    e.op(f"s_add_u32 s7, s7, {L_QA}")
    e.op(f"v_add_u32 v{T}, s7, v{vL16}")
    e.op(f"ds_write_b128 v{T}, {vr(BUF0)}")
    e.op(f"ds_write_b128 v{T}, {vr(BUF0+4)} offset:{C_STRIDE}")
    e.wait_vm(("ck", 15))
    e.op("s_waitcnt lgkmcnt(0)")
    e.op("s_barrier")
    g.stamp(5)
    pf(7)
    vA, vB = T, T + 1
    e.op("s_lshl_b32 s7, s3, 4")
    e.op(f"v_add_u32 v{vA}, s7, v{N_}")
    e.op(f"v_mul_u32_u24 v{vA}, {C_STRIDE}, v{vA}")
    e.op(f"v_lshlrev_b32 v{T+2}, 4, v{Gq}")
    e.op(f"v_add_u32 v{vA}, v{vA}, v{T+2}")
    e.op(f"v_mul_u32_u24 v{vB}, {C_STRIDE}, v{N_}")
    e.op(f"v_add_u32 v{vB}, v{vB}, v{T+2}")
    e.op(f"v_add_u32 v{vB}, {L_QA}, v{vB}")

    def s_reads(b):
        buf = BUF0 if b % 2 == 0 else BUF1
        for i in range(4):
            t = 4 * b + i
            e.op(f"ds_read_b128 {vr(buf+8*i)}, v{vA} offset:{64*t}")
            e.op(f"ds_read_b128 {vr(buf+8*i+4)}, v{vB} offset:{64*t}")
    t2stamp(1)
    s_reads(0)
    for b in range(4):
        if b + 1 < 4:
            s_reads(b + 1)
        buf = BUF0 if b % 2 == 0 else BUF1
        for i in range(4):
            left = (8 if b + 1 < 4 else 0) + (6 - 2 * i)
            e.op(f"s_waitcnt lgkmcnt({left})")
            first = (b == 0 and i == 0)
            e.op(f"v_mfma_f32_16x16x32_bf16 {vr(ACC)}, {vr(buf+8*i)}, {vr(buf+8*i+4)}, {'0' if first else vr(ACC)}")
    t2stamp(2)
    pf(8)
    SC = T + 4
    e.op(f"s_mov_b32 s7, {f32hex(SCALE)}")
    for r in range(4):
        e.op(f"v_mul_f32 v{SC+r}, s7, v{ACC+r}")
    MXr = T + 2
    e.op(f"v_max3_f32 v{MXr}, v{SC}, v{SC+1}, v{SC+2}")
    e.op(f"v_max_f32 v{MXr}, v{MXr}, v{SC+3}")
    g.xor16("v_max_f32", MXr, T + 3)
    g.xor32("v_max_f32", MXr, T + 3)
    vMX = 24
    e.op(f"v_lshlrev_b32 v{vMX}, 5, v{N_}")
    e.op(f"v_add_u32 v{vMX}, {L_MX}, v{vMX}")
    e.op("s_lshl_b32 s7, s3, 2")
    e.op(f"v_add_u32 v{T+3}, s7, v{vMX}")
    g.exec_set(0xffff)
    e.op(f"ds_write_b32 v{T+3}, v{MXr}")
    g.exec_set(-1)
    e.op("s_waitcnt lgkmcnt(0)")
    e.op("s_barrier")
    t2stamp(3)
    e.op(f"ds_read_b128 {vr(BUF0)}, v{vMX}")
    e.op(f"ds_read_b128 {vr(BUF0+4)}, v{vMX} offset:16")
    pf(9)
    e.op("s_waitcnt lgkmcnt(0)")
    vM = 25
    e.op(f"v_max3_f32 v{vM}, v{BUF0}, v{BUF0+1}, v{BUF0+2}")
    e.op(f"v_max3_f32 v{vM}, v{vM}, v{BUF0+3}, v{BUF0+4}")
    e.op(f"v_max3_f32 v{vM}, v{vM}, v{BUF0+5}, v{BUF0+6}")
    e.op(f"v_max_f32 v{vM}, v{vM}, v{BUF0+7}")
    for r in range(4):
        e.op(f"v_sub_f32 v{SC+r}, v{SC+r}, v{vM}")
    for r in range(4):
        e.op(f"v_exp_f32 v{SC+r}, v{SC+r}")
    PP = T + 8
    assert PP % 2 == 0
    e.op(f"v_cvt_pk_bf16_f32 v{PP}, v{SC}, v{SC+1}")
    e.op(f"v_cvt_pk_bf16_f32 v{PP+1}, v{SC+2}, v{SC+3}")
    e.op("s_mov_b32 s7, 0xffff0000")
    e.op(f"v_lshlrev_b32 v{SC}, 16, v{PP}")
    e.op(f"v_and_b32 v{SC+1}, s7, v{PP}")
    e.op(f"v_lshlrev_b32 v{SC+2}, 16, v{PP+1}")
    e.op(f"v_and_b32 v{SC+3}, s7, v{PP+1}")
    e.op(f"v_add_f32 v{SC}, v{SC}, v{SC+1}")
    e.op(f"v_add_f32 v{SC+2}, v{SC+2}, v{SC+3}")
    e.op(f"v_add_f32 v{SC}, v{SC}, v{SC+2}")
    g.xor16("v_add_f32", SC, SC + 1)
    g.xor32("v_add_f32", SC, SC + 1)
    e.op(f"v_mul_u32_u24 v{T}, {P_STRIDE}, v{N_}")
    e.op(f"v_lshlrev_b32 v{T+1}, 4, v{Gq}")
    e.op(f"v_add_u32 v{T}, v{T}, v{T+1}")
    e.op(f"v_add_u32 v{T}, {L_P}, v{T}")
    vPR = 30
    e.op(f"v_mov_b32 v{vPR}, v{T}")
    e.op("s_lshr_b32 s7, s3, 1")
    e.op("s_lshl_b32 s7, s7, 6")
    e.op("s_and_b32 s8, s3, 1")
    e.op("s_lshl_b32 s8, s8, 3")
    e.op("s_add_u32 s7, s7, s8")
    e.op(f"v_add_u32 v{T}, s7, v{T}")
    e.op(f"ds_write_b64 v{T}, {vr(PP,2)}")
    e.op(f"v_add_u32 v{T+3}, {L_LX-L_MX}, v{T+3}")
    g.exec_set(0xffff)
    e.op(f"ds_write_b32 v{T+3}, v{SC}")
    g.exec_set(-1)
    e.op("s_waitcnt lgkmcnt(0)")
    e.op("s_barrier")
    g.stamp(6)
    pf(10)
    PB = 48
    OACC = 64
    TR = 88
    for s in range(4):
        e.op(f"ds_read_b128 {vr(PB+4*s)}, v{vPR} offset:{64*s}")
    vT0, vT1 = T, T + 1
    e.op(f"v_lshrrev_b32 v{T+2}, 2, v{N_}")
    e.op(f"v_lshl_add_u32 v{T+2}, v{Gq}, 2, v{T+2}")
    e.op(f"v_mul_u32_u24 v{vT0}, {C_STRIDE}, v{T+2}")
    e.op(f"v_and_b32 v{T+2}, 3, v{N_}")
    e.op(f"v_lshlrev_b32 v{T+2}, 3, v{T+2}")
    e.op("s_lshl_b32 s7, s3, 7")
    e.op(f"v_add3_u32 v{vT0}, v{vT0}, v{T+2}, s7")
    e.op(f"v_add_u32 v{vT1}, {64*C_STRIDE}, v{vT0}")

    def tr_reads(tau):
        buf = TR if tau % 2 == 0 else BUF0
        for s in range(4):
            base = vT0 if s < 2 else vT1
            for u in range(2):
                off = (32 * (s & 1) + 16 * u) * C_STRIDE + 32 * tau
                e.op(f"ds_read_b64_tr_b16 {vr(buf+4*s+2*u,2)}, v{base} offset:{off}")
    tr_reads(0)
    for tau in range(4):
        if tau + 1 < 4:
            tr_reads(tau + 1)
        buf = TR if tau % 2 == 0 else BUF0
        for s in range(4):
            left = (8 if tau + 1 < 4 else 0) + (6 - 2 * s)
            e.op(f"s_waitcnt lgkmcnt({left})")
            e.op(f"v_mfma_f32_16x16x32_bf16 {vr(OACC+4*tau)}, {vr(buf+4*s)}, {vr(PB+4*s)}, {'0' if s == 0 else vr(OACC+4*tau)}")
    t2stamp(9)
    pf(11)
    e.op(f"v_mul_u32_u24 v{T}, {C_STRIDE}, v{N_}")
    e.op(f"v_lshlrev_b32 v{T+1}, 3, v{Gq}")
    e.op("s_lshl_b32 s7, s3, 7")
    e.op(f"s_add_u32 s7, s7, {L_QA}")
    e.op(f"v_add3_u32 v{T}, v{T}, v{T+1}, s7")
    for tau in range(4):
        o = OACC + 4 * tau
        e.op(f"v_cvt_pk_bf16_f32 v{o}, v{o}, v{o+1}")
        e.op(f"v_cvt_pk_bf16_f32 v{o+1}, v{o+2}, v{o+3}")
        e.op(f"ds_write_b64 v{T}, {vr(o,2)} offset:{32*tau}")
    e.op("s_waitcnt lgkmcnt(0)")
    e.op("s_barrier")
    g.stamp(7)
    e.op(f"s_mul_i32 s7, s3, {2*C_STRIDE}")
    e.op(f"s_add_u32 s7, s7, {L_QA}")
    e.op(f"v_add_u32 v{T}, s7, v{vL16}")
    e.op(f"ds_read_b128 {vr(BUF1)}, v{T}")
    e.op(f"ds_read_b128 {vr(BUF1+4)}, v{T} offset:{C_STRIDE}")
    e.op(f"v_add_u32 v{T+1}, {L_LX-L_MX}, v{vMX}")
    e.op(f"ds_read_b128 {vr(BUF1+8)}, v{T+1}")
    e.op(f"ds_read_b128 {vr(BUF1+12)}, v{T+1} offset:16")
    e.op(f"s_lshl_b32 s7, s{S_HG}, 4")
    e.op("s_lshl_b32 s8, s3, 1")
    e.op("s_add_u32 s7, s7, s8")
    e.op("s_lshl_b32 s7, s7, 5")
    e.op(f"s_add_u32 s7, s7, s{S_KB}")
    e.op("s_lshl_b32 s7, s7, 10")
    e.op(f"s_add_u32 s7, s7, {OA}")
    e.op("s_add_u32 s8, s7, 32768")
    e.op("s_mov_b32 s14, s7")
    e.op("s_waitcnt lgkmcnt(0)")
    lab = e.newlabel("ml")
    e.op("s_cmp_lg_u32 s3, 0")
    e.branch("s_cbranch_scc1", lab)
    b = BUF1 + 8
    e.op(f"v_add_f32 v{b}, v{b}, v{b+1}")
    e.op(f"v_add_f32 v{b+2}, v{b+2}, v{b+3}")
    e.op(f"v_add_f32 v{b+4}, v{b+4}, v{b+5}")
    e.op(f"v_add_f32 v{b+6}, v{b+6}, v{b+7}")
    e.op(f"v_add_f32 v{b}, v{b}, v{b+2}")
    e.op(f"v_add_f32 v{b+4}, v{b+4}, v{b+6}")
    e.op(f"v_add_f32 v{T+3}, v{b}, v{b+4}")
    e.op(f"v_mov_b32 v{T+2}, v{vM}")
    assert (T + 2) % 2 == 0
    e.op(f"v_lshlrev_b32 v{T+1}, 8, v{N_}")
    e.op(f"s_lshl_b32 s7, s{S_HG}, 12")
    e.op(f"s_lshl_b32 s9, s{S_KB}, 3")
    e.op("s_add_u32 s7, s7, s9")
    e.op(f"s_add_u32 s7, s7, {MLA}")
    g.exec_set(0xffff)
    e.op(f"buffer_store_dwordx2 {vr(T+2,2)}, v{T+1}, {sr(SRD_WS,4)}, s7 offen sc1", count=False)
    g.exec_set(-1)
    e.label(lab)
    e.op(f"buffer_store_dwordx4 {vr(BUF1)}, v{vL16}, {sr(SRD_WS,4)}, s14 offen sc1", tag="ost0")
    e.op(f"buffer_store_dwordx4 {vr(BUF1+4)}, v{vL16}, {sr(SRD_WS,4)}, s8 offen sc1", tag="ost1")
    pf(12)
    e.wait_vm("ost1")
    e.op("s_barrier")
    g.stamp(8)
    lab = e.newlabel("fl2")
    e.op("s_cmp_lg_u32 s3, 0")
    e.branch("s_cbranch_scc1", lab)
    e.op(f"v_lshlrev_b32 v{T}, 8, v{L}")
    e.op(f"s_lshl_b32 s7, s{S_HG}, 13")
    e.op(f"s_lshl_b32 s8, s{S_KB}, 3")
    e.op("s_add_u32 s7, s7, s8")
    e.op(f"s_add_u32 s7, s7, {OAF}")
    e.op(f"v_mov_b32 v{T+2}, s{S_N}")
    e.op(f"v_mov_b32 v{T+3}, s{S_N}")
    g.exec_set(0xffffffff)
    e.op(f"buffer_store_dwordx2 {vr(T+2,2)}, v{T}, {sr(SRD_WS,4)}, s7 offen sc1", count=False)
    g.exec_set(-1)
    e.label(lab)
    pf(13)

    def oaf_addr():
        e.op(f"s_lshl_b32 s7, s{S_P}, 8")
        e.op("s_lshl_b32 s8, s3, 5")
        e.op("s_add_u32 s7, s7, s8")
        e.op(f"s_add_u32 s7, s7, {OAF}")
        e.op(f"s_add_u32 s8, s{P_WS}, s7")
        e.op(f"s_addc_u32 s9, s{P_WS+1}, 0")
    scalar_flag_poll(oaf_addr)
    e.op("s_barrier")
    g.stamp(9)
    vKk = 30
    e.op(f"v_and_b32 v{vKk}, 7, v{L}")
    ML = T + 2
    e.op(f"v_and_b32 v{T}, 31, v{L}")
    e.op(f"v_lshlrev_b32 v{T}, 3, v{T}")
    e.op(f"s_lshl_b32 s7, s{S_H}, 8")
    e.op(f"s_add_u32 s7, s7, {MLA}")
    e.op(f"buffer_load_dwordx2 {vr(ML,2)}, v{T}, {sr(SRD_WS,4)}, s7 offen sc1", tag="ml")
    e.op(f"v_lshlrev_b32 v{T}, 10, v{vRHO}")
    e.op(f"v_lshlrev_b32 v{T+1}, 4, v{vKk}")
    e.op("s_lshl_b32 s7, s3, 7")
    e.op(f"v_add3_u32 v{T}, v{T}, v{T+1}, s7")
    e.op(f"s_lshl_b32 s7, s{S_H}, 15")
    e.op(f"s_add_u32 s7, s7, {OA}")
    OT = 48
    for t in range(4):
        e.op(f"buffer_load_dwordx4 {vr(OT+4*t)}, v{T}, {sr(SRD_WS,4)}, s7 offen sc1", tag=("ot", t))
        if t < 3:
            e.op("s_addk_i32 s7, 0x2000")
    pf(14, upto=issue_uv)
    e.wait_vm("ml")
    pstamp(1)
    W_ = T + 4
    e.op(f"v_mov_b32 v{W_}, v{ML}")
    g.wave_reduce("v_max_f32", W_, W_ + 1, lanes=32)
    e.op(f"v_sub_f32 v{W_}, v{ML}, v{W_}")
    e.op(f"v_exp_f32 v{W_}, v{W_}")
    e.op(f"v_mul_f32 v{W_+1}, v{W_}, v{ML+1}")
    g.wave_reduce("v_add_f32", W_ + 1, W_ + 2, lanes=32)
    e.op(f"v_rcp_f32 v{W_+1}, v{W_+1}")
    e.op(f"v_mul_f32 v{W_}, v{W_}, v{W_+1}")
    e.op(f"v_cvt_pk_bf16_f32 v{W_}, v{W_}, v{W_}")
    pstamp(2)
    e.op(f"v_lshlrev_b32 v{W_+1}, 2, v{vRHO}")
    WB = 64
    for t in range(4):
        if t:
            e.op(f"v_add_u32 v{W_+1}, 32, v{W_+1}")
        e.op(f"ds_bpermute_b32 v{WB+t}, v{W_+1}, v{W_}")
    e.op("s_waitcnt lgkmcnt(0)")
    pstamp(3)
    e.wait_vm(("ot", 3), keep=True)
    pstamp(4)
    for t in range(4):
        e.wait_vm(("ot", t))
        A = A0 if t % 2 == 0 else A1
        for r in range(4):
            e.op(f"v_and_b32 v{A+r}, v{WB+t}, v{M8+r}")
        e.op(f"v_mfma_f32_16x16x32_bf16 {vr(ACC)}, {vr(A)}, {vr(OT+4*t)}, {'0' if t == 0 else vr(ACC)}")
    pf(15, upto=issue_wo)
    e.op(f"v_lshlrev_b32 v{T}, 5, v{vKk}")
    e.op(f"v_lshlrev_b32 v{T+1}, 4, v{Gq}")
    e.op(f"v_and_b32 v{T+2}, 1, v{Gq}")
    e.op(f"v_lshlrev_b32 v{T+2}, 4, v{T+2}")
    e.op(f"v_lshrrev_b32 v{T+3}, 1, v{Gq}")
    e.op(f"v_lshlrev_b32 v{T+3}, 8, v{T+3}")
    e.op(f"v_add3_u32 v{T}, v{T}, v{T+2}, v{T+3}")
    e.op("s_lshl_b32 s7, s3, 9")
    e.op(f"v_add_u32 v{T}, s7, v{T}")
    g.exec_set(VALID)
    e.op(f"ds_write_b128 v{T}, {vr(ACC)}")
    g.exec_set(-1)
    e.op(f"v_lshlrev_b32 v{T+1}, 5, v{vRHO}")
    e.op(f"v_add_u32 v{T+1}, s7, v{T+1}")
    e.op("s_waitcnt lgkmcnt(0)")
    pstamp(5)
    CC = 68
    e.op(f"ds_read_b128 {vr(CC)}, v{T+1}")
    e.op(f"ds_read_b128 {vr(CC+4)}, v{T+1} offset:16")
    e.op(f"ds_read_b128 {vr(CC+8)}, v{T+1} offset:256")
    e.op(f"ds_read_b128 {vr(CC+12)}, v{T+1} offset:272")
    e.op("s_waitcnt lgkmcnt(0)")
    for t in range(8):
        e.op(f"v_add_f32 v{CC+t}, v{CC+t}, v{CC+8+t}")
    for t in range(8):
        e.op(f"v_cvt_pk_bf16_f32 v{CC+t}, v{CC+t}, v{CC+t}")
    pstamp(6)
    for t in range(8):
        e.wait_vm(("uv", t))
        A = A0 if t % 2 == 0 else A1
        for r in range(4):
            e.op(f"v_and_b32 v{A+r}, v{CC+t}, v{M8+r}")
        e.op(f"v_mfma_f32_16x16x32_bf16 {vr(ACC)}, {vr(A)}, {vr(UV(t))}, {'0' if t == 0 else vr(ACC)}")
    pstamp(7)
    LCP, CPS = 4096, 528
    e.op(f"v_lshlrev_b32 v{T}, 5, v{vKk}")
    e.op(f"v_and_b32 v{T+2}, 1, v{Gq}")
    e.op(f"v_lshlrev_b32 v{T+2}, 4, v{T+2}")
    e.op(f"v_lshrrev_b32 v{T+3}, 1, v{Gq}")
    e.op(f"v_lshlrev_b32 v{T+3}, 8, v{T+3}")
    e.op(f"v_add3_u32 v{T}, v{T}, v{T+2}, v{T+3}")
    e.op(f"s_mul_i32 s7, s3, {CPS}")
    e.op(f"s_add_u32 s7, s7, {LCP}")
    e.op(f"v_add_u32 v{T}, s7, v{T}")
    g.exec_set(VALID)
    e.op(f"ds_write_b128 v{T}, {vr(ACC)}")
    g.exec_set(-1)
    e.op(f"v_mul_u32_u24 v{T}, {CPS}, v{vKk}")
    e.op(f"v_lshrrev_b32 v{T+2}, 3, v{N_}")
    e.op(f"v_lshl_add_u32 v{T+2}, v{T+2}, 2, v{Gq}")
    e.op("s_lshl_b32 s7, s3, 3")
    e.op(f"v_add_u32 v{T+2}, s7, v{T+2}")
    e.op(f"v_lshl_add_u32 v{T}, v{T+2}, 2, v{T}")
    e.op("s_waitcnt lgkmcnt(0)")
    e.op("s_barrier")
    g.stamp(10)
    e.op(f"ds_read_b32 v{T+2}, v{T} offset:{LCP}")
    e.op(f"ds_read_b32 v{T+3}, v{T} offset:{LCP+256}")
    e.op("s_waitcnt lgkmcnt(0)")
    e.op(f"v_add_f32 v{T+2}, v{T+2}, v{T+3}")
    for perm in ("row_half_mirror", "quad_perm:[2,3,0,1]", "quad_perm:[1,0,3,2]"):
        e.op(f"v_add_f32_dpp v{T+2}, v{T+2}, v{T+2} {perm} row_mask:0xf bank_mask:0xf")
    e.op(f"v_cvt_pk_bf16_f32 v{T+2}, v{T+2}, v{T+2}")
    for r in range(4):
        e.op(f"v_and_b32_dpp v{A0+r}, v{T+2}, v{M4+r} row_newbcast:0 row_mask:0xf bank_mask:0xf")
    for r in range(4):
        e.op(f"v_and_b32_dpp v{A1+r}, v{T+2}, v{M4+r} row_newbcast:8 row_mask:0xf bank_mask:0xf")
    OA5 = 64
    for r2 in range(2):
        for cb in range(5):
            t = 5 * r2 + cb
            e.wait_vm(("wo", t))
            A = A0 if r2 == 0 else A1
            e.op(f"v_mfma_f32_16x16x32_bf16 {vr(OA5+4*cb)}, {vr(A)}, {vr(WO(t))}, {'0' if r2 == 0 else vr(OA5+4*cb)}")
    tstamp(1)
    LF = 12288
    e.op(f"v_lshlrev_b32 v{T}, 5, v{N_}")
    e.op(f"v_lshlrev_b32 v{T+1}, 4, v{Gq}")
    e.op(f"s_mul_i32 s7, s3, 2560")
    e.op(f"s_add_u32 s7, s7, {LF}")
    e.op(f"v_add3_u32 v{T}, v{T}, v{T+1}, s7")
    g.exec_set(0xffffffff)
    for cb in range(5):
        e.op(f"ds_write_b128 v{T}, {vr(OA5+4*cb)} offset:{512*cb}")
    g.exec_set(-1)
    e.op("s_waitcnt lgkmcnt(0)")
    e.op("s_barrier")
    tstamp(2)
    nopub = e.newlabel("nopub")
    e.op("s_cmp_ge_u32 s3, 5")
    e.branch("s_cbranch_scc1", nopub)
    a = 48
    e.op("s_lshl_b32 s7, s3, 9")
    e.op(f"v_lshlrev_b32 v{T}, 3, v{L}")
    e.op(f"v_add_u32 v{T}, s7, v{T}")
    for w in range(8):
        e.op(f"ds_read_b64 {vr(a+2*w,2)}, v{T} offset:{LF+2560*w}")
    gq = T + 4
    e.op(f"v_mov_b32 v{gq+1}, s{S_N}")
    e.op(f"v_mov_b32 v{gq+3}, s{S_N}")
    e.op("s_mul_i32 s7, s2, 5120")
    e.op("s_lshl_b32 s8, s3, 10")
    e.op("s_add_u32 s7, s7, s8")
    e.op(f"s_add_u32 s7, s7, {FA}")
    e.op("s_waitcnt lgkmcnt(0)")
    for w in (1, 3, 5, 7):
        e.op(f"v_add_f32 v{a+2*(w-1)}, v{a+2*(w-1)}, v{a+2*w}")
        e.op(f"v_add_f32 v{a+2*(w-1)+1}, v{a+2*(w-1)+1}, v{a+2*w+1}")
    for w in (2, 6):
        e.op(f"v_add_f32 v{a+2*(w-2)}, v{a+2*(w-2)}, v{a+2*w}")
        e.op(f"v_add_f32 v{a+2*(w-2)+1}, v{a+2*(w-2)+1}, v{a+2*w+1}")
    e.op(f"v_add_f32 v{gq}, v{a}, v{a+8}")
    e.op(f"v_add_f32 v{gq+2}, v{a+1}, v{a+9}")
    e.op(f"buffer_store_dwordx4 {vr(gq)}, v{vL16}, {sr(SRD_WS,4)}, s7 offen sc1", count=False)
    e.label(nopub)
    tstamp(3)
    e.vm = []
    lend = e.newlabel("aend")
    e.op("s_cmp_ge_u32 s2, 40")
    e.branch("s_cbranch_scc1", lend)
    e.op("s_cmp_lg_u32 s3, 5")
    e.branch("s_cbranch_scc1", lend)
    g.srd(SX, P_OUT, None, 2560)
    e.op("s_lshl_b32 s7, s2, 7")
    e.op(f"s_add_u32 s10, s7, {FA}")
    e.op("s_lshl_b32 s14, s2, 5")
    g.final_reduce(8, 5120, 10, 14, SX, T, 48, L, pipelined=c.FAPOLL)
    tstamp(6)
    e.op("s_cmp_lg_u32 s2, 0")
    e.branch("s_cbranch_scc1", lend)
    e.op(f"v_mov_b32 v{T}, {EPOCH}")
    e.op(f"v_mov_b32 v{T+1}, s{S_N}")
    g.exec_set(1)
    e.op(f"buffer_store_dword v{T+1}, v{T}, {sr(SRD_WS,4)}, 0 offen sc1", count=False)
    g.exec_set(-1)
    e.label(lend)
    g.stamp(11)
    g.dump_stamps("A")
    e.op("s_endpgm")
```

```python
import argparse
from emit import Emit

NAME = "concat_heads__compressed_kv_cla__mha_block_cached__decode_kernel"

EPOCH = 0
MLG = 0x1000
OB = 0x32000
FB = 0x62000
FA = 0x8A000
QA = 0xDA000
QAF = 0xEA000
MLA = 0xEE000
OAF = 0xF0000
OA = 0x100000
PROF = 0x200000
QB = 0x240000
QAQ = 0x280000
QAQX = 0x2C0000
OBX = 0x300000
WS_USED = 0x340000
NONCE_STEP = 0x9E3779B1
SCALE = 0.08838834764831845 * 1.4426950408889634


def f32hex(x):
    import struct
    return "0x%08x" % struct.unpack("<I", struct.pack("<f", x))[0]


class Cfg:
    def __init__(self, **kw):
        self.nt = "nt"
        self.nt_ckv = ""
        self.W = 4
        self.WK = 3
        self.K0 = 2
        self.POLL_A = 9
        self.PREV = 2
        self.WA = 6
        self.COMM = 0
        self.avar, self.A1_UV, self.A1_HG = False, 8, 0
        self.PFA1 = [4, 4, 8, 2, 6, 8, 0, 3, 0, 0, 3, 0, 0, 4, 0, 0]
        self.dual = False
        self.OPOLL, self.FBPOLL, self.FAPOLL = 0, 'pipe', 4
        self.ckrot = True
        self.prof = False
        self.cpf = False
        self.spin = 200000
        self.only = None
        self.PFA = [4, 4, 8, 2, 6, 4, 2, 5, 0, 0, 3, 0, 0, 4, 0, 0]
        self.__dict__.update(kw)
        if self.WK is None:
            self.WK = self.W


S_WG, S_WAVE, S_N = 2, 3, 4
P_AX, P_CKV, P_WQA, P_WUK, P_WUV, P_WOA = 16, 18, 20, 22, 24, 26
P_BX, P_BK, P_BV, P_BWQ, P_BWO, P_OUT, P_DBG, P_WS = 32, 34, 36, 38, 40, 42, 44, 46
SRD_WS = 48
S_SPIN = 15


def sr(n, k=2):
    return f"s[{n}:{n+k-1}]"


def vr(n, k=4):
    return f"v[{n}:{n+k-1}]"


class Gen:
    def __init__(self, cfg):
        self.c = cfg
        self.e = Emit()
        self.nstamp = 0

    def srd(self, dst, ptr, off_sgpr, nrec):
        e = self.e
        if off_sgpr is None:
            e.op(f"s_mov_b32 s{dst}, s{ptr}")
            e.op(f"s_mov_b32 s{dst+1}, s{ptr+1}")
        else:
            e.op(f"s_add_u32 s{dst}, s{ptr}, {off_sgpr}")
            e.op(f"s_addc_u32 s{dst+1}, s{ptr+1}, 0")
        e.op(f"s_mov_b32 s{dst+2}, {nrec}")
        e.op(f"s_mov_b32 s{dst+3}, 0x20000")

    def stamp(self, idx, bw=False):
        if not self.c.prof:
            return
        if getattr(self, "in_B", False) and bool(getattr(self.c, "bw", False)) != bw and idx != 0:
            return
        e = self.e
        e.op("s_memrealtime s[78:79]")
        e.op("s_waitcnt lgkmcnt(0)")
        e.op(f"s_mov_b32 s{80+idx}, s78")

    def dump_dbg(self, role):
        e = self.e
        sel = {"A": [(2, 1), (3, 3), (4, 4), (5, 5), (6, 8), (7, 9), (8, 10), (1, 11)],
               "B": [(9, 1), (10, 2), (11, 3), (12, 4), (13, 5), (14, 8), (15, 10), (1, 10)]}[role]
        lab = e.newlabel("nodbg")
        if role == "A":
            e.op("s_cmp_eq_u32 s3, 0")
            e.op("s_cselect_b32 s5, 1, 0")
            e.op("s_cmp_eq_u32 s3, 5")
            e.op("s_cselect_b32 s5, 1, s5")
            e.op("s_cmp_eq_u32 s5, 0")
        else:
            e.op(f"s_cmp_lg_u32 s3, {self.c.COMM}")
        e.branch("s_cbranch_scc1", lab)
        e.op("s_mov_b64 exec, -1")
        e.op("v_mbcnt_lo_u32_b32 v2, -1, 0")
        e.op("v_mbcnt_hi_u32_b32 v2, -1, v2")
        e.op("s_not_b32 s5, s80")
        e.op("v_mov_b32 v3, 0")
        for slot, src in [(0, None)] + sel:
            e.op(f"v_mov_b32 v4, {'s5' if src is None else 's%d' % (80+src)}")
            e.op(f"v_cmp_eq_u32 vcc, {slot}, v2")
            e.op("v_cndmask_b32 v3, v3, v4, vcc")
        e.op("v_lshlrev_b32 v2, 2, v2")
        self.srd(52, P_DBG, None, 256)
        self.exec_set(0xffff)
        e.op("buffer_atomic_umax v3, v2, s[52:55], 0 offen")
        self.exec_set(-1)
        e.label(lab)

    def dump_stamps(self, role=None):
        if not self.c.prof:
            return
        if self.c.prof == "dbg":
            return self.dump_dbg(role)
        e = self.e
        e.op("s_mov_b64 exec, -1")
        e.op("v_mbcnt_lo_u32_b32 v2, -1, 0")
        e.op("v_mbcnt_hi_u32_b32 v2, -1, v2")
        e.op("s_lshl_b32 s5, s2, 3")
        e.op("s_add_u32 s5, s5, s3")
        e.op("s_lshl_b32 s5, s5, 6")
        e.op(f"s_add_u32 s5, s5, {PROF}")
        e.op("v_mov_b32 v3, 0")
        for i in range(16):
            e.op(f"v_mov_b32 v4, s{80+i}")
            e.op(f"v_cmp_eq_u32 vcc, {i}, v2")
            e.op("v_cndmask_b32 v3, v3, v4, vcc")
        e.op("v_lshlrev_b32 v2, 2, v2")
        e.op("v_add_u32 v2, s5, v2")
        e.op("s_mov_b32 exec_lo, 0xffff".replace("exec_lo", "exec_lo"))
        e.op("s_mov_b32 exec_hi, 0")
        e.op(f"buffer_store_dword v3, v2, {sr(SRD_WS,4)}, 0 offen")
        e.op("s_mov_b64 exec, -1")

    def spin_init(self):
        self.e.op(f"s_mov_b32 s{S_SPIN}, 0")

    def spin_step(self, out_label):
        e = self.e
        e.op(f"s_add_u32 s{S_SPIN}, s{S_SPIN}, 1")
        e.op(f"s_cmp_gt_u32 s{S_SPIN}, {self.c.spin}")
        e.branch("s_cbranch_scc1", out_label)

    def wave_reduce(self, op, v, t, lanes=64):
        e = self.e
        for k in (8, 4, 2, 1):
            e.op(f"{op}_dpp v{v}, v{v}, v{v} row_ror:{k} row_mask:0xf bank_mask:0xf")
        self.xor16(op, v, t)
        if lanes == 64:
            self.xor32(op, v, t)

    def xor16(self, op, v, t):
        e = self.e
        e.op(f"v_mov_b32 v{t}, v{v}")
        e.op(f"v_permlane16_swap_b32 v{v}, v{t}")
        e.op(f"{op} v{v}, v{v}, v{t}")

    def xor32(self, op, v, t):
        e = self.e
        e.op(f"v_mov_b32 v{t}, v{v}")
        e.op(f"v_permlane32_swap_b32 v{v}, v{t}")
        e.op(f"{op} v{v}, v{v}, v{t}")

    def make_masks(self, dst, idx_reg, n_reg, t0, t1):
        e = self.e
        e.op(f"v_and_b32 v{t0}, 1, v{n_reg}")
        e.op(f"v_lshlrev_b32 v{t0}, 4, v{t0}")
        e.op(f"v_mov_b32 v{t1}, 0xffff")
        e.op(f"v_lshlrev_b32 v{t0}, v{t0}, v{t1}")
        for r in range(4):
            e.op(f"v_cmp_eq_u32 vcc, {r}, v{idx_reg}")
            e.op(f"v_cndmask_b32 v{dst+r}, 0, v{t0}, vcc")

    def tags_bad(self, acc, tags, first=True):
        e = self.e
        tags = list(tags)
        while tags:
            a = tags.pop(0)
            e.op(f"v_xor_b32 v{a}, s{S_N}, v{a}")
            if tags:
                b = tags.pop(0)
                e.op(f"v_xor_b32 v{b}, s{S_N}, v{b}")
                if first:
                    e.op(f"v_or_b32 v{acc}, v{a}, v{b}")
                else:
                    e.op(f"v_or3_b32 v{acc}, v{acc}, v{a}, v{b}")
            else:
                if first:
                    e.op(f"v_mov_b32 v{acc}, v{a}")
                else:
                    e.op(f"v_or_b32 v{acc}, v{acc}, v{a}")
            first = False

    def poll2(self, issue, nloads, tags, acc, on_ok):
        e = self.e
        loop, ok0, ok1, out = (e.newlabel(n) for n in ("pl", "ok0", "ok1", "pout"))
        self.spin_init()
        issue(0)
        e.label(loop)
        for s_, ok in ((0, ok0), (1, ok1)):
            issue(1 - s_)
            e.op(f"s_waitcnt vmcnt({nloads})")
            self.tags_bad(acc, tags(s_))
            e.op(f"v_cmp_ne_u32 vcc, 0, v{acc}")
            e.op(f"s_cbranch_vccz {ok}")
        e.op(f"s_add_u32 s{S_SPIN}, s{S_SPIN}, 1")
        e.op(f"s_cmp_le_u32 s{S_SPIN}, {self.c.spin}")
        e.op(f"s_cbranch_scc1 {loop}")
        e.label(ok1)
        on_ok(1)
        e.op(f"s_branch {out}")
        e.label(ok0)
        on_ok(0)
        e.label(out)

    def poll1(self, issue, tags, acc, on_ok, sleep=0):
        e = self.e
        poll, done = e.newlabel("pq"), e.newlabel("pqd")
        self.spin_init()
        e.label(poll)
        issue(0)
        e.op("s_waitcnt vmcnt(0)")
        self.tags_bad(acc, tags(0))
        e.op(f"v_cmp_ne_u32 vcc, 0, v{acc}")
        e.op(f"s_cbranch_vccz {done}")
        if sleep:
            e.op(f"s_sleep {sleep}")
        e.op(f"s_add_u32 s{S_SPIN}, s{S_SPIN}, 1")
        e.op(f"s_cmp_le_u32 s{S_SPIN}, {self.c.spin}")
        e.op(f"s_cbranch_scc1 {poll}")
        e.label(done)
        on_ok(0)

    def exec_set(self, mask):
        e = self.e
        if mask == -1 or mask == (1 << 64) - 1:
            e.op("s_mov_b64 exec, -1")
        else:
            e.op(f"s_mov_b32 exec_lo, 0x{mask & 0xffffffff:x}")
            e.op(f"s_mov_b32 exec_hi, 0x{mask >> 32:x}")

    def code_prefetch(self, cond_ops, start_expr, nwaves, vtmp, vdst, srd):
        e = self.e
        if not self.c.cpf:
            return
        lab = e.newlabel("cpf")
        for o in cond_ops:
            e.op(o)
        e.branch("s_cbranch_scc0", lab)
        if nwaves < 8:
            e.op(f"s_cmp_lt_u32 s3, {nwaves}")
            e.branch("s_cbranch_scc0", lab)
        here = e.newlabel("pc")
        e.op("s_getpc_b64 s[8:9]")
        e.raw(here + ":")
        if start_expr is None:
            e.op(f"s_mov_b32 s{srd}, s8")
            e.op(f"s_mov_b32 s{srd+1}, s9")
        else:
            e.op(f"s_add_u32 s{srd}, s8, ({start_expr} - {here})")
            e.op(f"s_addc_u32 s{srd+1}, s9, 0")
            e.op(f"s_sub_u32 s{srd}, s{srd}, {nwaves*1024}")
            e.op(f"s_subb_u32 s{srd+1}, s{srd+1}, 0")
        e.op(f"s_mov_b32 s{srd+2}, {nwaves*1024}")
        e.op(f"s_mov_b32 s{srd+3}, 0x20000")
        e.op("s_lshl_b32 s8, s3, 10")
        e.op(f"v_lshlrev_b32 v{vtmp}, 4, v0")
        e.op(f"buffer_load_dwordx4 {vr(vdst)}, v{vtmp}, s[{srd}:{srd+3}], s8 offen", count=False)
        e.label(lab)

    def stage1_setup(self, s_s, s_h, vW, vX, vG, vN, T, SX, SW):
        e = self.e
        e.op(f"v_lshlrev_b32 v{vW}, 13, v{vG}")
        e.op(f"v_lshlrev_b32 v{T}, 4, v{vN}")
        e.op(f"v_add_u32 v{vW}, v{vW}, v{T}")
        e.op(f"s_mul_i32 s7, s{s_s}, 80")
        e.op("s_and_b32 s8, s3, 3")
        e.op("s_mul_i32 s8, s8, 20")
        e.op("s_add_u32 s7, s7, s8")
        e.op(f"v_add_u32 v{vX}, s7, v{vG}")
        e.op(f"v_lshlrev_b32 v{vX}, 1, v{vX}")
        e.op("s_lshl_b32 s14, s7, 13")
        e.op(f"s_lshl_b32 s8, s{s_h}, 8")
        e.op("s_add_u32 s14, s14, s8")

    def stage1_srds(self, SX, SW):
        e = self.e
        e.op("s_cmp_lt_u32 s3, 4")
        e.op(f"s_cselect_b32 s{SX}, s{P_AX}, s{P_BX}")
        e.op(f"s_cselect_b32 s{SX+1}, s{P_AX+1}, s{P_BX+1}")
        e.op(f"s_cselect_b32 s8, s{P_WQA}, s{P_BWQ}")
        e.op(f"s_cselect_b32 s9, s{P_WQA+1}, s{P_BWQ+1}")
        e.op(f"s_mov_b32 s{SX+2}, 1280")
        e.op(f"s_mov_b32 s{SX+3}, 0x20000")
        e.op(f"s_add_u32 s{SW}, s8, s14")
        e.op(f"s_addc_u32 s{SW+1}, s9, 0")
        e.op(f"s_mov_b32 s{SW+2}, {20*8192}")
        e.op(f"s_mov_b32 s{SW+3}, 0x20000")

    def stage1_issue(self, X, WQ, vX, vW, SX, SW):
        e, nt = self.e, self.c.nt
        for t in range(5):
            e.op(f"buffer_load_ushort v{X(t)}, v{vX}, {sr(SX,4)}, 0 offen offset:{8*t}", tag=("x", t))
        for t in range(5):
            e.op(f"s_mov_b32 s7, {t*32768}")
            e.op(f"buffer_load_dwordx4 {vr(WQ(t))}, v{vW}, {sr(SW,4)}, s7 offen {nt}", tag=("wq", t))

    def stage1_compute(self, X, WQ, MASK, A0, A1, ACC, vLDS, LQP):
        e = self.e
        for t in range(5):
            e.wait_vm(("wq", t))
            A = A0 if t % 2 == 0 else A1
            e.op(f"v_lshl_or_b32 v{X(t)}, v{X(t)}, 16, v{X(t)}")
            for r in range(4):
                e.op(f"v_and_b32 v{A+r}, v{X(t)}, v{MASK+r}")
            e.op(f"v_mfma_f32_16x16x32_bf16 {vr(ACC)}, {vr(A)}, {vr(WQ(t))}, {'0' if t == 0 else vr(ACC)}")
        self.exec_set(0xffffffff)
        e.op(f"ds_write_b128 v{vLDS}, {vr(ACC)} offset:{LQP}")
        self.exec_set(-1)

    def stage1_publish(self, s_s, s_h, vL, vL16, T, R, gq, LQP):
        e = self.e
        lab = e.newlabel("s1p")
        e.op("s_and_b32 s7, s3, 3")
        e.op("s_cmp_lg_u32 s7, 3")
        e.branch("s_cbranch_scc1", lab)
        e.op("s_setprio 2")
        e.op("s_and_b32 s7, s3, 4")
        e.op("s_lshl_b32 s7, s7, 9")
        if LQP:
            e.op(f"s_add_u32 s7, s7, {LQP}")
        e.op(f"v_lshlrev_b32 v{T}, 3, v{vL}")
        e.op(f"v_add_u32 v{T}, s7, v{T}")
        for w in range(4):
            e.op(f"ds_read_b64 {vr(R+2*w,2)}, v{T} offset:{512*w}")
        e.op(f"s_lshl_b32 s8, s{s_h}, 3")
        e.op(f"s_add_u32 s8, s8, s{s_s}")
        e.op("s_lshl_b32 s8, s8, 10")
        e.op("s_cmp_eq_u32 s3, 3")
        e.op(f"s_mov_b32 s9, {QB}")
        e.op(f"s_cselect_b32 s9, {QAQ}, s9")
        e.op("s_add_u32 s9, s9, s8")
        e.op(f"v_mov_b32 v{gq+1}, s{S_N}")
        e.op(f"v_mov_b32 v{gq+3}, s{S_N}")
        e.op("s_waitcnt lgkmcnt(0)")
        e.op(f"v_add_f32 v{R}, v{R}, v{R+2}")
        e.op(f"v_add_f32 v{R+1}, v{R+1}, v{R+3}")
        e.op(f"v_add_f32 v{R+4}, v{R+4}, v{R+6}")
        e.op(f"v_add_f32 v{R+5}, v{R+5}, v{R+7}")
        e.op(f"v_add_f32 v{gq}, v{R}, v{R+4}")
        e.op(f"v_add_f32 v{gq+2}, v{R+1}, v{R+5}")
        if self.c.dual:
            lab2 = e.newlabel("s1x")
            e.op("s_cmp_lg_u32 s3, 3")
            e.branch("s_cbranch_scc1", lab2)
            e.op(f"s_add_u32 s8, s8, {QAQX}")
            e.op(f"buffer_store_dwordx4 {vr(gq)}, v{vL16}, {sr(SRD_WS,4)}, s8 offen", count=False)
            e.label(lab2)
        e.op(f"buffer_store_dwordx4 {vr(gq)}, v{vL16}, {sr(SRD_WS,4)}, s9 offen sc1", count=False)
        e.op("s_setprio 0")
        e.label(lab)

    def dual_base(self, dst, fast, slow):
        e = self.e
        e.op(f"s_and_b32 s{dst}, s{S_SPIN}, 3")
        e.op(f"s_cmp_eq_u32 s{dst}, 3")
        e.op(f"s_mov_b32 s{dst}, {fast}")
        e.op(f"s_cselect_b32 s{dst}, {slow}, s{dst}")

    def qpoll_issue(self, base, s_h, POLL, vL16, fast=None):
        e = self.e
        if fast is not None:
            self.dual_base(9, fast, base)
            e.op(f"s_lshl_b32 s8, s{s_h}, 13")
            e.op("s_add_u32 s8, s8, s9")
        else:
            e.op(f"s_lshl_b32 s8, s{s_h}, 13")
            e.op(f"s_add_u32 s8, s8, {base}")
        for p in range(8):
            e.op(f"buffer_load_dwordx4 {vr(POLL(p))}, v{vL16}, {sr(SRD_WS,4)}, s8 offen sc1", count=False)
            if p < 7:
                e.op("s_addk_i32 s8, 0x400")

    def qpoll_finish(self, base, s_h, POLL, vL16, vL, T, LQF, fast=None):
        e = self.e
        if fast is None:
            self.spin_init()
        chk, done = e.newlabel("qchk"), e.newlabel("qdone")
        e.label(chk)
        self.tags_bad(T, [POLL(p) + k for p in range(8) for k in (1, 3)])
        e.op(f"v_cmp_ne_u32 vcc, 0, v{T}")
        e.op("s_cmp_eq_u64 vcc, 0")
        e.branch("s_cbranch_scc1", done)
        self.spin_step(done)
        self.qpoll_issue(base, s_h, POLL, vL16, fast)
        e.op("s_waitcnt vmcnt(0)")
        e.branch("s_branch", chk)
        e.label(done)
        for step in (1, 2, 4):
            for p in range(0, 8, 2 * step):
                for k in (0, 2):
                    e.op(f"v_add_f32 v{POLL(p)+k}, v{POLL(p)+k}, v{POLL(p+step)+k}")
        a = POLL(0)
        e.op(f"v_cvt_pk_bf16_f32 v{a}, v{a}, v{a+2}")
        e.op(f"v_lshlrev_b32 v{T}, 2, v{vL}")
        e.op(f"v_add_u32 v{T}, {LQF}, v{T}")
        e.op(f"ds_write_b32 v{T}, v{a}")
        e.op("s_waitcnt lgkmcnt(0)")

    def build(self):
        e = self.e
        c = self.c
        e.raw(f"; @launch grid=(256,1,1) block=(512,1,1) lds={LDS_TOTAL}")
        e.raw('.amdgcn_target "amdgcn-amd-amdhsa--gfx950"')
        e.raw(".text")
        e.raw(f".globl {NAME}")
        e.raw(".p2align 8")
        e.raw(f".type {NAME},@function")
        e.raw(f"{NAME}:")
        e.op("s_cmp_ge_u32 s2, 256")
        e.op("s_cbranch_scc1 L_end")
        e.op("s_load_dwordx16 s[16:31], s[0:1], 0")
        e.op("s_load_dwordx16 s[32:47], s[0:1], 48")
        if c.prof:
            e.op("s_memrealtime s[78:79]")
        e.op("v_lshrrev_b32 v1, 6, v0")
        e.op("v_and_b32 v0, 63, v0")
        e.op("v_readfirstlane_b32 s3, v1")
        if c.prof:
            for i in range(16):
                e.op(f"s_mov_b32 s{80+i}, 0")
        e.op("v_lshrrev_b32 v1, 4, v0")
        e.op("v_and_b32 v2, 15, v0")
        e.op("s_cmp_lt_u32 s2, 64")
        e.op("s_cbranch_scc1 L_A")
        self.gen_B()
        e.label("L_A")
        self.gen_A()
        e.raw("L_end:")
        e.raw("    s_endpgm")
        e.raw('.section .rodata,"a"')
        e.raw(".p2align 6")
        e.raw(f".amdhsa_kernel {NAME}")
        e.raw("  .amdhsa_next_free_vgpr 256")
        e.raw("  .amdhsa_next_free_sgpr 102")
        e.raw("  .amdhsa_accum_offset 256")
        e.raw("  .amdhsa_group_segment_fixed_size 0")
        e.raw("  .amdhsa_kernarg_size 112")
        e.raw("  .amdhsa_user_sgpr_count 2")
        e.raw("  .amdhsa_user_sgpr_kernarg_segment_ptr 1")
        e.raw("  .amdhsa_system_sgpr_workgroup_id_x 1")
        e.raw(".end_amdhsa_kernel")
        return e.text()

    def gen_B(self):
        e, c = self.e, self.c
        self.in_B = True
        S_J, S_H = 5, 6
        e.op("s_sub_u32 s7, s2, 64")
        e.op("s_and_b32 s8, s7, 7")
        e.op("s_lshr_b32 s7, s7, 3")
        e.op("s_mul_i32 s9, s7, 43")
        e.op("s_lshr_b32 s9, s9, 8")
        e.op("s_mul_i32 s10, s9, 6")
        e.op(f"s_sub_u32 s{S_J}, s7, s10")
        e.op("s_lshl_b32 s8, s8, 2")
        e.op(f"s_add_u32 s{S_H}, s8, s9")
        B = self.B = type("R", (), {})()
        B.L, B.G, B.Nn = 0, 1, 2
        B.MASK = 4
        B.Q = 8
        B.ACC = 12
        B.A0, B.A1 = 16, 20
        B.vKV, B.vWQ, B.vX, B.vLDS, B.vWS = 24, 25, 26, 27, 28
        B.T = 29
        B.P0, B.P1, B.PD0, B.PD1, B.M, B.Lw = 40, 41, 42, 43, 44, 45
        B.FW = 46
        B.MW = 47
        B.WO = 48
        B.K = 64
        e.op(f"v_lshrrev_b32 v3, 1, v{B.Nn}")
        self.make_masks(B.MASK, 3, B.Nn, B.T, B.T + 1)
        e.op(f"s_lshl_b32 s7, s3, 10")
        e.op(f"v_lshlrev_b32 v{B.vKV}, 4, v{B.L}")
        e.op(f"v_add_u32 v{B.vKV}, s7, v{B.vKV}")
        self.stage1_setup(S_J, S_H, B.vWQ, B.vX, B.G, B.Nn, B.T, 68, 60)
        e.op("s_lshl_b32 s9, s3, 9")
        e.op(f"v_lshlrev_b32 v{B.vLDS}, 5, v{B.Nn}")
        e.op(f"v_lshlrev_b32 v{B.T+1}, 4, v{B.G}")
        e.op(f"v_add3_u32 v{B.vLDS}, v{B.vLDS}, v{B.T+1}, s9")
        e.op(f"v_lshlrev_b32 v{B.vWS}, 4, v{B.L}")
        e.op("s_waitcnt lgkmcnt(0)")
        if c.prof:
            e.op("s_mov_b32 s80, s78")
        e.op(f"s_load_dword s{S_N}, {sr(P_WS)}, {EPOCH}")
        SK, SV, SWQ, SWO, SX = 52, 56, 60, 64, 68
        self.SK, self.SV, self.SWQ, self.SWO, self.SX = SK, SV, SWQ, SWO, SX
        self.stage1_srds(SX, SWQ)
        self.stage1_issue(lambda t: B.T + 2 + t, lambda t: 236 + 4 * t, B.vX, B.vWQ, SX, SWQ)
        e.op(f"s_lshl_b32 s9, s{S_H}, 20")
        e.op(f"s_mul_i32 s10, s{S_J}, {168*1024}")
        e.op("s_add_u32 s9, s9, s10")
        self.srd(SK, P_BK, "s9", 184 * 1024)
        self.srd(SV, P_BV, "s9", 184 * 1024)
        self.srd(SRD_WS, P_WS, None, WS_USED)
        e.op(f"s_mul_i32 s9, s{S_H}, {128*1280}")
        e.op(f"s_lshl_b32 s10, s{S_J}, 8")
        e.op("s_add_u32 s9, s9, s10")
        self.srd(SWO, P_BWO, "s9", 128 * 1280)
        e.op(f"s_cmp_eq_u32 s{S_J}, 5")
        e.branch("s_cbranch_scc1", "L_B5")
        saved = list(e.vm)
        e.raw("L_B21:")
        self.gen_B_variant(21, True)
        e.label("L_B5")
        e.vm = saved
        self.gen_B_variant(23, False)

    def gen_B_variant(self, NR, has_wo):
        e, c, B = self.e, self.c, self.B
        S_J, S_H = 5, 6
        SK, SV, SWQ, SWO, SX = self.SK, self.SV, self.SWQ, self.SWO, self.SX
        nt = c.nt
        K = lambda t: B.K + 4 * t
        V = lambda t: B.K + 4 * NR + 4 * t
        assert V(NR - 1) + 3 <= 255
        WQ = lambda t: 236 + 4 * t
        POLL = lambda p: V(NR - 8 + p)
        X = lambda t: B.T + 2 + t
        LQP, LOP, LFP, LQF, LML = 0, 4096, 8192, 12288, 12544
        COMM = self.c.COMM
        S_KO, S_VO, S_T = 72, 73, 7

        def comm_begin():
            lab = e.newlabel("nc")
            e.op(f"s_cmp_lg_u32 s3, {COMM}")
            e.branch("s_cbranch_scc1", lab)
            return lab

        def comm_end(lab):
            e.label(lab)

        nK = [0]
        nV = [0]

        def issue_K():
            t = nK[0]
            nK[0] += 1
            e.op(f"buffer_load_dwordx4 {vr(K(t))}, v{B.vKV}, {sr(SK,4)}, s{S_KO} offen {nt}", tag=("K", t))
            e.op(f"s_addk_i32 s{S_KO}, 0x2000")

        def issue_V():
            t = nV[0]
            nV[0] += 1
            e.op(f"buffer_load_dwordx4 {vr(V(t))}, v{B.vKV}, {sr(SV,4)}, s{S_VO} offen {nt}", tag=("V", t))
            e.op(f"s_addk_i32 s{S_VO}, 0x2000")

        e.op(f"s_mov_b32 s{S_KO}, 0")
        e.op(f"s_mov_b32 s{S_VO}, 0")
        for _ in range(c.K0):
            issue_K()
        if has_wo:
            self.code_prefetch(["s_cmp_lt_u32 s2, 72"], None, 6, B.T + 8, B.WO, 92)
        else:
            self.code_prefetch([f"s_lshr_b32 s7, s2, 3", "s_cmp_eq_u32 s7, 13"], None, 5, B.T + 8, B.WO, 92)
        self.stamp(1)
        e.op("s_waitcnt lgkmcnt(0)")
        e.op(f"s_add_u32 s{S_N}, s{S_N}, 0x{NONCE_STEP:x}")
        self.stage1_compute(X, WQ, B.MASK, B.A0, B.A1, B.ACC, B.vLDS, LQP)
        e.op("s_waitcnt lgkmcnt(0)")
        e.op("s_barrier")
        self.stamp(2)
        self.stage1_publish(S_J, S_H, B.L, B.vWS, B.T, POLL(0), B.T + 7, LQP)
        while nK[0] < NR:
            e.wait_vm_window(c.WK - 1)
            if nK[0] in (4, 8, 12, 16, 20):
                self.stamp(nK[0] // 4, bw=True)
            issue_K()
            if nK[0] == c.POLL_A:
                lab = comm_begin()
                self.qpoll_issue(QB, S_H, POLL, B.vWS)
                comm_end(lab)
                e.mark("qpoll")
        for _ in range(c.PREV):
            e.wait_vm_window(c.WK - 1)
            issue_V()
        lab = comm_begin()
        e.op("s_setprio 2")
        e.wait_vm("qpoll", keep=True)
        self.qpoll_finish(QB, S_H, POLL, B.vWS, B.L, B.T, LQF)
        e.op("s_setprio 0")
        comm_end(lab)
        e.op("s_barrier")
        self.stamp(3)
        e.op(f"v_lshlrev_b32 v{B.T}, 4, v{B.Nn}")
        e.op(f"ds_read_b128 {vr(B.Q)}, v{B.T} offset:{LQF}")
        e.op("s_waitcnt lgkmcnt(0)")
        def dots(ts):
            for t in ts:
                e.wait_vm(("K", t))
            for k in range(4):
                for t in ts:
                    e.op(f"v_dot2_f32_bf16 v{K(t)}, v{K(t)+k}, v{B.Q+k}, {'0' if k == 0 else 'v%d' % K(t)}")
        chunks = [list(range(i, min(i + 4, NR))) for i in range(0, NR, 4)]
        for ci, ch in enumerate(chunks):
            if nV[0] < NR and ci in (0, 3):
                issue_V()
            dots(ch)
        S0 = self.transpose_reduce([K(t) for t in range(16)], B.P0)
        if nV[0] < NR:
            issue_V()
        S1 = self.transpose_reduce([K(t) for t in range(16, NR)], B.P1)
        nvalid = NR - 16
        e.op(f"s_mov_b32 s7, {f32hex(SCALE)}")
        e.op(f"v_mul_f32 v{B.P0}, s7, v{B.P0}")
        e.op(f"v_mul_f32 v{B.P1}, s7, v{B.P1}")
        e.op(f"v_mov_b32 v{B.T}, 0xff800000")
        e.op(f"v_cmp_gt_u32 vcc, {nvalid}, v{B.Nn}")
        e.op(f"v_cndmask_b32 v{B.P1}, v{B.T}, v{B.P1}, vcc")
        e.op(f"v_max_f32 v{B.M}, v{B.P0}, v{B.P1}")
        self.wave_reduce("v_max_f32", B.M, B.T)
        e.op(f"v_sub_f32 v{B.P0}, v{B.P0}, v{B.M}")
        e.op(f"v_sub_f32 v{B.P1}, v{B.P1}, v{B.M}")
        e.op(f"v_exp_f32 v{B.P0}, v{B.P0}")
        e.op(f"v_exp_f32 v{B.P1}, v{B.P1}")
        e.op(f"v_cvt_pk_bf16_f32 v{B.PD0}, v{B.P0}, v{B.P0}")
        e.op(f"v_cvt_pk_bf16_f32 v{B.PD1}, v{B.P1}, v{B.P1}")
        e.op(f"v_lshlrev_b32 v{B.P0}, 16, v{B.PD0}")
        e.op(f"v_lshlrev_b32 v{B.P1}, 16, v{B.PD1}")
        e.op(f"v_add_f32 v{B.Lw}, v{B.P0}, v{B.P1}")
        self.wave_reduce("v_add_f32", B.Lw, B.T)
        assert B.Lw == B.M + 1 and B.M % 2 == 0
        e.op("s_lshl_b32 s7, s3, 3")
        e.op(f"v_mov_b32 v{B.T}, s7")
        self.exec_set(1)
        e.op(f"ds_write_b64 v{B.T}, {vr(B.M,2)} offset:{LML}")
        self.exec_set(-1)
        e.op("s_waitcnt lgkmcnt(0)")
        e.op("s_barrier")
        self.stamp(4)
        T = B.T
        lab = comm_begin()
        e.op("s_setprio 2")
        e.op(f"v_and_b32 v{T}, 7, v{B.L}")
        e.op(f"v_lshlrev_b32 v{T+1}, 3, v{T}")
        e.op(f"ds_read_b64 {vr(T+3,2)}, v{T+1} offset:{LML}")
        e.op("s_waitcnt lgkmcnt(0)")
        e.op(f"v_mov_b32 v{B.MW}, v{T+3}")
        e.op(f"v_mov_b32 v{T+5}, v{T+3}")
        for k in (4, 2, 1):
            e.op(f"v_max_f32_dpp v{T+5}, v{T+5}, v{T+5} row_ror:{k} row_mask:0xf bank_mask:0xf")
        e.op(f"v_sub_f32 v{T+6}, v{T+3}, v{T+5}")
        e.op(f"v_exp_f32 v{T+6}, v{T+6}")
        e.op(f"v_mul_f32 v{T+6}, v{T+6}, v{T+4}")
        for k in (4, 2, 1):
            e.op(f"v_add_f32_dpp v{T+6}, v{T+6}, v{T+6} row_ror:{k} row_mask:0xf bank_mask:0xf")
        g4 = T + 7
        assert g4 % 2 == 0
        e.op(f"v_mov_b32 v{g4}, v{T+5}")
        e.op(f"v_mov_b32 v{g4+1}, s{S_N}")
        e.op(f"v_mov_b32 v{g4+2}, v{T+6}")
        e.op(f"v_mov_b32 v{g4+3}, s{S_N}")
        e.op(f"s_lshl_b32 s8, s{S_H}, 7")
        e.op(f"s_add_u32 s8, s8, {MLG}")
        e.op(f"s_lshl_b32 s9, s{S_J}, 4")
        e.op("s_add_u32 s9, s9, s8")
        e.op(f"v_mov_b32 v{T+1}, 0")
        self.exec_set(1)
        e.op(f"buffer_store_dwordx4 {vr(g4)}, v{T+1}, {sr(SRD_WS,4)}, s9 offen sc1", count=False)
        self.exec_set(-1)
        e.op("s_setprio 0")
        comm_end(lab)
        def a_regs(t):
            A = B.A0 if t % 2 == 0 else B.A1
            pd = B.PD0 if t < 16 else B.PD1
            for r in range(4):
                e.op(f"v_and_b32_dpp v{A+r}, v{pd}, v{B.MASK+r} row_newbcast:{t & 15} row_mask:0xf bank_mask:0xf")
            return A
        ML_ISSUE = min(6, NR - 8)
        ML_CHECK = NR - 5
        wo_issued = False
        A = a_regs(0)
        for t in range(NR):
            while nV[0] < NR and nV[0] < t + c.W:
                issue_V()
            if nV[0] == NR and has_wo and not wo_issued:
                for u in range(4):
                    if u == 0:
                        e.op("s_lshl_b32 s7, s3, 4")
                        e.op(f"v_add_u32 v{T}, s7, v{B.G}")
                        e.op(f"v_mul_u32_u24 v{T}, 1280, v{T}")
                        e.op(f"v_lshlrev_b32 v{T+1}, 4, v{B.Nn}")
                        e.op(f"v_add_u32 v{B.vWQ}, v{T}, v{T+1}")
                    e.op(f"s_mov_b32 s7, {5120*u}")
                    e.op(f"buffer_load_dwordx4 {vr(B.WO+4*u)}, v{B.vWQ}, {sr(SWO,4)}, s7 offen {nt}", tag=("wo", u))
                wo_issued = True
            e.wait_vm(("V", t))
            if t in (0, 4, 8, 12, 16, 20):
                self.stamp(6 + t // 4, bw=True)
            e.op(f"v_mfma_f32_16x16x32_bf16 {vr(B.ACC)}, {vr(A)}, {vr(V(t))}, {'0' if t == 0 else vr(B.ACC)}")
            if t + 1 < NR:
                A = a_regs(t + 1)
            if t == ML_ISSUE:
                lab = comm_begin()
                self.ml_poll_issue(B, T)
                comm_end(lab)
                e.mark("mlpoll")
            if t == ML_CHECK:
                lab = comm_begin()
                e.wait_vm("mlpoll", keep=True)
                self.ml_poll_finish(B, T)
                comm_end(lab)
        self.stamp(5)
        self.exec_set(0xffffffff)
        e.op(f"ds_write_b128 v{B.vLDS}, {vr(B.ACC)} offset:{LOP}")
        self.exec_set(-1)
        e.op("s_waitcnt lgkmcnt(0)")
        e.op("s_barrier")
        self.stamp(6)
        lab = comm_begin()
        e.op("s_setprio 2")
        a = K(0)
        e.op(f"v_lshlrev_b32 v{T}, 3, v{B.L}")
        for w in range(8):
            e.op(f"ds_read_b64 {vr(a+2*w,2)}, v{T} offset:{LOP+512*w}")
        e.op(f"s_mul_i32 s8, s{S_H}, 6")
        e.op(f"s_add_u32 s9, s8, s{S_J}")
        e.op("s_lshl_b32 s9, s9, 10")
        e.op(f"s_add_u32 s9, s9, {OB}")
        e.op(f"v_mov_b32 v{g4+1}, s{S_N}")
        e.op(f"v_mov_b32 v{g4+3}, s{S_N}")
        e.op("s_waitcnt lgkmcnt(0)")
        e.op(f"v_mul_f32 v{g4}, s92, v{a}")
        e.op(f"v_mul_f32 v{g4+2}, s92, v{a+1}")
        e.op(f"v_mul_f32 v{T+1}, s93, v{a+2}")
        e.op(f"v_mul_f32 v{T+2}, s93, v{a+3}")
        for w in range(2, 8, 2):
            e.op(f"v_fmac_f32 v{g4}, s{92+w}, v{a+2*w}")
            e.op(f"v_fmac_f32 v{g4+2}, s{92+w}, v{a+2*w+1}")
            e.op(f"v_fmac_f32 v{T+1}, s{93+w}, v{a+2*w+2}")
            e.op(f"v_fmac_f32 v{T+2}, s{93+w}, v{a+2*w+3}")
        e.op(f"v_add_f32 v{g4}, v{g4}, v{T+1}")
        e.op(f"v_add_f32 v{g4+2}, v{g4+2}, v{T+2}")
        if c.dual:
            e.op(f"s_add_u32 s8, s9, {OBX - OB}")
            e.op(f"buffer_store_dwordx4 {vr(g4)}, v{B.vWS}, {sr(SRD_WS,4)}, s8 offen", count=False)
        e.op(f"buffer_store_dwordx4 {vr(g4)}, v{B.vWS}, {sr(SRD_WS,4)}, s9 offen sc1", count=False)
        e.op("s_setprio 0")
        comm_end(lab)
        self.stamp(7)
        if has_wo:
            self.gen_B_tail(K, T, LFP, COMM, comm_begin, comm_end)
        else:
            self.gen_B_final(K, T)
        self.stamp(10)
        self.dump_stamps("B")
        e.op("s_endpgm")

    def pending_K(self, e):
        return sum(1 for t in e.vm if isinstance(t, tuple) and t[0] == "K")

    def copy4(self, base):
        if base % 2 == 0:
            self.c4 = base
        else:
            raise AssertionError("odd base")

    def transpose_reduce(self, R, dst):
        e = self.e
        n = len(R)
        for t in range(8):
            if t < n:
                e.op(f"v_add_f32_dpp v{R[t]}, v{R[t]}, v{R[t]} row_ror:8 row_mask:0xf bank_mask:0x3")
        for t in range(8):
            if t + 8 < n:
                e.op(f"v_add_f32_dpp v{R[t]}, v{R[t+8]}, v{R[t+8]} row_ror:8 row_mask:0xf bank_mask:0xc")
        m = min(n, 8)
        for t in range(4):
            if t < m:
                e.op(f"v_add_f32_dpp v{R[t]}, v{R[t]}, v{R[t]} row_half_mirror row_mask:0xf bank_mask:0x5")
        for t in range(4):
            if t + 4 < m:
                e.op(f"v_add_f32_dpp v{R[t]}, v{R[t+4]}, v{R[t+4]} row_half_mirror row_mask:0xf bank_mask:0xa")
        assert m >= 4
        for t in range(4):
            e.op(f"v_add_f32_dpp v{R[t]}, v{R[t]}, v{R[t]} quad_perm:[2,3,0,1] row_mask:0xf bank_mask:0xf")
        e.op("s_mov_b32 s8, 0xcccccccc")
        e.op("s_mov_b32 s9, 0xcccccccc")
        e.op("s_mov_b32 s10, 0xaaaaaaaa")
        e.op("s_mov_b32 s11, 0xaaaaaaaa")
        e.op(f"v_cndmask_b32 v{R[0]}, v{R[0]}, v{R[2]}, s[8:9]")
        e.op(f"v_cndmask_b32 v{R[1]}, v{R[1]}, v{R[3]}, s[8:9]")
        for t in range(2):
            e.op(f"v_add_f32_dpp v{R[t]}, v{R[t]}, v{R[t]} quad_perm:[1,0,3,2] row_mask:0xf bank_mask:0xf")
        e.op(f"v_cndmask_b32 v{dst}, v{R[0]}, v{R[1]}, s[10:11]")
        return dst

    def ml_poll_issue(self, B, T):
        e = self.e
        S_H = 6
        e.op(f"v_and_b32 v{T}, 7, v{B.L}")
        e.op(f"v_min_u32 v{T}, 5, v{T}")
        e.op(f"v_lshlrev_b32 v{T}, 4, v{T}")
        e.op(f"s_lshl_b32 s8, s{S_H}, 7")
        e.op(f"s_add_u32 s8, s8, {MLG}")
        e.op(f"buffer_load_dwordx4 {vr(T+7)}, v{T}, {sr(SRD_WS,4)}, s8 offen sc1", count=False)

    def ml_poll_finish(self, B, T):
        e = self.e
        g4 = T + 7
        self.spin_init()
        chk, done = e.newlabel("mlchk"), e.newlabel("mldone")
        e.label(chk)
        self.tags_bad(T + 1, [g4 + 1, g4 + 3])
        e.op(f"v_cmp_ne_u32 vcc, 0, v{T+1}")
        e.op("s_cmp_eq_u64 vcc, 0")
        e.branch("s_cbranch_scc1", done)
        self.spin_step(done)
        self.ml_poll_issue(B, T)
        e.op("s_waitcnt vmcnt(0)")
        e.branch("s_branch", chk)
        e.label(done)
        e.op(f"v_and_b32 v{T}, 7, v{B.L}")
        e.op(f"v_cmp_gt_u32 vcc, 6, v{T}")
        e.op(f"v_cndmask_b32 v{g4+2}, 0, v{g4+2}, vcc")
        e.op(f"v_mov_b32 v{T+2}, v{g4}")
        for k in (4, 2, 1):
            e.op(f"v_max_f32_dpp v{T+2}, v{T+2}, v{T+2} row_ror:{k} row_mask:0xf bank_mask:0xf")
        e.op(f"v_sub_f32 v{T+3}, v{g4}, v{T+2}")
        e.op(f"v_exp_f32 v{T+3}, v{T+3}")
        e.op(f"v_mul_f32 v{T+3}, v{T+3}, v{g4+2}")
        for k in (4, 2, 1):
            e.op(f"v_add_f32_dpp v{T+3}, v{T+3}, v{T+3} row_ror:{k} row_mask:0xf bank_mask:0xf")
        e.op(f"v_rcp_f32 v{T+3}, v{T+3}")
        e.op(f"v_sub_f32 v{T+4}, v{B.MW}, v{T+2}")
        e.op(f"v_exp_f32 v{T+4}, v{T+4}")
        e.op(f"v_mul_f32 v{T+4}, v{T+4}, v{T+3}")
        for w in range(8):
            e.op(f"v_readlane_b32 s{92+w}, v{T+4}, {w}")

    def gen_B_final(self, K, T):
        e, c, B = self.e, self.c, self.B
        S_H = 6
        fin = e.newlabel("bfin")
        e.op(f"s_mov_b32 s14, s{S_H}")
        e.op("s_cmp_eq_u32 s3, 1")
        go = e.newlabel("bgo")
        e.branch("s_cbranch_scc1", go)
        e.op("s_cmp_lg_u32 s3, 2")
        e.branch("s_cbranch_scc1", fin)
        e.op(f"s_cmp_ge_u32 s{S_H}, 8")
        e.branch("s_cbranch_scc1", fin)
        e.op("s_add_u32 s14, s14, 32")
        e.label(go)
        self.srd(68, P_OUT, None, 2560)
        e.op("s_lshr_b32 s7, s14, 3")
        e.op("s_lshl_b32 s7, s7, 15")
        e.op("s_and_b32 s8, s14, 7")
        e.op("s_lshl_b32 s8, s8, 7")
        e.op("s_add_u32 s7, s7, s8")
        e.op(f"s_add_u32 s10, s7, {FB}")
        e.op("s_lshl_b32 s14, s14, 5")
        e.op("s_add_u32 s14, s14, 1280")
        self.final_reduce(4, 1024, 10, 14, 68, T, K(0), B.L, pipelined=c.FBPOLL)
        e.label(fin)

    def final_reduce(self, nload, stride, s_base, s_out, s_outsrd, T, D, vL, pipelined):
        e = self.e
        e.op(f"v_lshrrev_b32 v{T}, 3, v{vL}")
        e.op(f"v_mul_u32_u24 v{T}, {stride}, v{T}")
        e.op(f"v_and_b32 v{T+1}, 7, v{vL}")
        e.op(f"v_lshlrev_b32 v{T+1}, 4, v{T+1}")
        e.op(f"v_add_u32 v{T}, v{T}, v{T+1}")
        R = D + 8 * nload
        S = lambda k, u: D + 4 * nload * k + 4 * u

        def issue(k):
            e.op(f"s_mov_b32 s7, s{s_base}")
            for u in range(nload):
                e.op(f"buffer_load_dwordx4 {vr(S(k, u))}, v{T}, {sr(SRD_WS,4)}, s7 offen sc1", count=False)
                if u + 1 < nload:
                    e.op(f"s_add_u32 s7, s7, {8*stride}")

        def on_ok(k):
            n = nload
            while n > 2:
                h = n // 2
                for u in range(h):
                    for j in (0, 2):
                        e.op(f"v_add_f32 v{S(k,u)+j}, v{S(k,u)+j}, v{S(k,u+h)+j}")
                n = h
            for j in (0, 2):
                e.op(f"v_add_f32 v{R+j}, v{S(k,0)+j}, v{S(k,1)+j}")
        tags = lambda k: [S(k, u) + j for u in range(nload) for j in (1, 3)]
        if pipelined == "pipe":
            self.poll2(issue, nload, tags, T + 2, on_ok)
        else:
            self.poll1(issue, tags, T + 2, on_ok, sleep=pipelined)
        for j in (0, 2):
            e.op(f"v_add_f32_dpp v{R+j}, v{R+j}, v{R+j} row_ror:8 row_mask:0xf bank_mask:0xf")
        for j in (0, 2):
            e.op(f"v_mov_b32 v{T+2+j//2}, v{R+j}")
        for j in (0, 2):
            e.op(f"v_permlane16_swap_b32 v{R+j}, v{T+2+j//2}")
        for j in (0, 2):
            e.op(f"v_add_f32 v{R+j}, v{R+j}, v{T+2+j//2}")
        for j in (0, 2):
            e.op(f"v_mov_b32 v{T+2+j//2}, v{R+j}")
        for j in (0, 2):
            e.op(f"v_permlane32_swap_b32 v{R+j}, v{T+2+j//2}")
        for j in (0, 2):
            e.op(f"v_add_f32 v{R+j}, v{R+j}, v{T+2+j//2}")
        e.op(f"v_cvt_pk_bf16_f32 v{R}, v{R}, v{R+2}")
        e.op(f"v_lshlrev_b32 v{T}, 2, v{vL}")
        self.exec_set(0xff)
        e.op(f"buffer_store_dword v{R}, v{T}, s[{s_outsrd}:{s_outsrd+3}], s{s_out} offen", count=False)
        self.exec_set(-1)

    def gen_B_tail(self, K, T, LFP, COMM, comm_begin, comm_end):
        e, c, B = self.e, self.c, self.B
        S_J, S_H = 5, 6
        g4 = K(8)
        e.op(f"v_lshrrev_b32 v{T}, 3, v{B.L}")
        e.op(f"v_lshlrev_b32 v{T}, 10, v{T}")
        e.op(f"v_and_b32 v{T+1}, 7, v{B.L}")
        e.op(f"v_lshlrev_b32 v{T+1}, 4, v{T+1}")
        e.op(f"s_lshl_b32 s8, s3, 7")
        e.op(f"v_add3_u32 v{T}, v{T}, v{T+1}, s8")
        e.op(f"s_mul_i32 s10, s{S_H}, {6*1024}")
        e.op(f"s_add_u32 s8, s10, {OB}")
        S = lambda k: K(9 + k)
        for k in (0, 2):
            e.op(f"v_mov_b32 v{g4+k}, 0")
        self.exec_set(0x0000ffffffffffff)

        def issue(k):
            if c.dual:
                self.dual_base(8, OBX, OB)
                e.op("s_add_u32 s8, s8, s10")
            e.op(f"buffer_load_dwordx4 {vr(S(k))}, v{T}, {sr(SRD_WS,4)}, s8 offen sc1", count=False)

        def on_ok(k):
            e.op(f"v_mov_b32 v{g4}, v{S(k)}")
            e.op(f"v_mov_b32 v{g4+2}, v{S(k)+2}")
        if c.OPOLL == "pipe":
            self.poll2(issue, 1, lambda k: [S(k) + 1, S(k) + 3], T + 2, on_ok)
        else:
            self.poll1(issue, lambda k: [S(k) + 1, S(k) + 3], T + 2, on_ok, sleep=c.OPOLL)
        e.vm = []
        self.exec_set(-1)
        self.stamp(8)
        for k in (0, 2):
            e.op(f"v_add_f32_dpp v{g4+k}, v{g4+k}, v{g4+k} row_ror:8 row_mask:0xf bank_mask:0xf")
        for k in (0, 2):
            e.op(f"v_mov_b32 v{T+2+k//2}, v{g4+k}")
        for k in (0, 2):
            e.op(f"v_permlane16_swap_b32 v{g4+k}, v{T+2+k//2}")
        for k in (0, 2):
            e.op(f"v_add_f32 v{g4+k}, v{g4+k}, v{T+2+k//2}")
        for k in (0, 2):
            e.op(f"v_mov_b32 v{T+2+k//2}, v{g4+k}")
        for k in (0, 2):
            e.op(f"v_permlane32_swap_b32 v{g4+k}, v{T+2+k//2}")
        for k in (0, 2):
            e.op(f"v_add_f32 v{g4+k}, v{g4+k}, v{T+2+k//2}")
        e.op(f"v_cvt_pk_bf16_f32 v{g4}, v{g4}, v{g4}")
        e.op(f"v_cvt_pk_bf16_f32 v{g4+2}, v{g4+2}, v{g4+2}")
        e.op("s_mov_b32 s8, 0xffff0000")
        e.op("s_mov_b32 s9, 0xffff0000")
        e.op(f"v_cndmask_b32 v{g4}, v{g4}, v{g4+2}, s[8:9]")
        e.op(f"v_mov_b32_dpp v{g4}, v{g4} row_shl:1 row_mask:0xc bank_mask:0xf")
        for u in range(4):
            A = B.A0 if u % 2 == 0 else B.A1
            for r in range(4):
                e.op(f"v_and_b32_dpp v{A+r}, v{g4}, v{B.MASK+r} row_newbcast:{2*u} row_mask:0xf bank_mask:0xf")
            e.op(f"v_mfma_f32_16x16x32_bf16 {vr(B.ACC)}, {vr(A)}, {vr(B.WO+4*u)}, {'0' if u == 0 else vr(B.ACC)}")
        self.exec_set(0xffffffff)
        e.op(f"ds_write_b128 v{B.vLDS}, {vr(B.ACC)} offset:{LFP}")
        self.exec_set(-1)
        e.op("s_waitcnt lgkmcnt(0)")
        e.op("s_barrier")
        self.stamp(9)
        lab = comm_begin()
        a = K(0)
        e.op(f"v_lshlrev_b32 v{T}, 3, v{B.L}")
        for w in range(8):
            e.op(f"ds_read_b64 {vr(a+2*w,2)}, v{T} offset:{LFP+512*w}")
        e.op(f"s_lshl_b32 s8, s{S_J}, 5")
        e.op(f"s_add_u32 s8, s8, s{S_H}")
        e.op("s_lshl_b32 s8, s8, 10")
        e.op(f"s_add_u32 s8, s8, {FB}")
        g = T + 7
        e.op(f"v_mov_b32 v{g+1}, s{S_N}")
        e.op(f"v_mov_b32 v{g+3}, s{S_N}")
        e.op("s_waitcnt lgkmcnt(0)")
        for w in (1, 3, 5, 7):
            e.op(f"v_add_f32 v{a+2*(w-1)}, v{a+2*(w-1)}, v{a+2*w}")
            e.op(f"v_add_f32 v{a+2*(w-1)+1}, v{a+2*(w-1)+1}, v{a+2*w+1}")
        for w in (2, 6):
            e.op(f"v_add_f32 v{a+2*(w-2)}, v{a+2*(w-2)}, v{a+2*w}")
            e.op(f"v_add_f32 v{a+2*(w-2)+1}, v{a+2*(w-2)+1}, v{a+2*w+1}")
        e.op(f"v_add_f32 v{g}, v{a}, v{a+8}")
        e.op(f"v_add_f32 v{g+2}, v{a+1}, v{a+9}")
        e.op(f"buffer_store_dwordx4 {vr(g)}, v{B.vWS}, {sr(SRD_WS,4)}, s8 offen sc1", count=False)
        comm_end(lab)

    def gen_A(self):
        self.in_B = False
        from gen_a import gen_A
        gen_A(self)


L_C = 0
C_STRIDE = 1056
L_QA = 128 * C_STRIDE
L_P = L_QA + 16 * C_STRIDE
P_STRIDE = 288
L_QACC = L_P + 16 * P_STRIDE
L_MX = L_QACC + 256
L_LX = L_MX + 512
L_CTX = L_LX + 512
L_END = L_CTX + 256
LDS_TOTAL = 160 * 1024
assert L_END <= LDS_TOTAL


def main():
    ap = argparse.ArgumentParser()
    ap.add_argument("-o", default="concat_heads__compressed_kv_cla__mha_block_cached__decode.s")
    ap.add_argument("--set", nargs="*", default=[])
    a = ap.parse_args()
    kw = {}
    for s in a.set:
        k, v = s.split("=")
        try:
            v = eval(v) if v.startswith("[") else int(v)
        except ValueError:
            v = {"True": True, "False": False, "None": None}.get(v, v)
        kw[k] = v
    g = Gen(Cfg(**kw))
    txt = g.build()
    open(a.o, "w").write(txt)
    print("wrote", a.o, len(txt), "bytes;", g.e.nops, "nop pads")


if __name__ == "__main__":
    main()
```

```python
import gen as G
from gen import (sr, vr, f32hex, SCALE, S_N, SRD_WS, P_AX, P_CKV, P_WQA, P_WUK, P_WUV, P_WOA, P_OUT, P_WS,
                 EPOCH, QA, QAF, MLA, OAF, OA, FA, FB, NONCE_STEP,
                 L_C, C_STRIDE, L_QA, L_P, P_STRIDE, L_QACC, L_MX, L_LX, L_CTX)


def gen_A(g):
    e, c = g.e, g.c
    tail = getattr(c, "tail", False)
    if tail:
        real_stamp = g.stamp
        keep = {True: (9, 10, 11), "p3": (9, 10, 11), "t2": (4, 5, 6, 7, 8)}[tail]
        g.stamp = lambda i, **kw: real_stamp(i) if i in keep else None
    tstamp = (lambda i: real_stamp(i)) if tail is True else (lambda i: None)
    pstamp = (lambda i: real_stamp(i)) if tail == "p3" else (lambda i: None)
    t2stamp = (lambda i: real_stamp(i)) if tail == "t2" else (lambda i: None)
    nt = c.nt
    e.vm = []
    S_DH, S_H, S_KB, S_HG, S_P = 5, 6, 12, 13, 76
    SX, SWQ, SUK, SUV, SWO, SCK = 52, 56, 60, 64, 68, 72
    L, Gq, N_ = 0, 1, 2
    M8, M4 = 4, 8
    ACC = 12
    A0, A1 = 16, 20
    vX, vWQ, vUK, vWO, vL16, vRHO, vK = 24, 25, 26, 27, 28, 29, 30
    QC2 = 40

    T = 36
    WQ = lambda t: 48 + 4 * t
    UK = lambda t: 88 + 4 * t
    UV = lambda t: 120 + 4 * t
    WO = lambda t: 152 + 4 * t
    X = lambda t: 192 + t
    BUF0, BUF1 = 192, 224
    VALID = 0xFF00FF0000FF00FF

    S_A, S_T = 100, 14
    if c.xmap:
        e.op("s_lshr_b32 s6, s2, 3")
        e.op("s_and_b32 s5, s2, 1")
        e.op(f"s_lshl_b32 s{S_P}, s6, 1")
        e.op(f"s_add_u32 s{S_P}, s{S_P}, s5")
        e.op(f"s_mov_b32 s{S_A}, s{S_P}")
        e.op("s_lshr_b32 s12, s6, 1")
        e.op("s_lshl_b32 s7, s5, 4")
        e.op("s_add_u32 s12, s12, s7")
        e.op("s_and_b32 s13, s6, 1")
    else:
        e.op("s_lshr_b32 s7, s2, 3")
        e.op("s_and_b32 s8, s2, 7")
        e.op("s_lshl_b32 s8, s8, 3")
        e.op(f"s_add_u32 s{S_P}, s7, s8")
        e.op(f"s_lshr_b32 s6, s{S_P}, 1")
        e.op(f"s_and_b32 s5, s{S_P}, 1")
        e.op("s_and_b32 s12, s2, 7")
        e.op("s_lshr_b32 s7, s2, 4")
        e.op("s_lshl_b32 s7, s7, 3")
        e.op("s_add_u32 s12, s12, s7")
        e.op("s_lshr_b32 s13, s2, 3")
        e.op("s_and_b32 s13, s13, 1")
        e.op(f"s_mov_b32 s{S_A}, s2")
    S_CKX = 79 if not c.prof else 14
    S_CKX = 101
    e.op(f"s_lshl_b32 s{S_CKX}, s{S_HG}, 3")
    if c.avar:
        e.op(f"s_cmp_eq_u32 s{S_HG}, {c.A1_HG}")
        e.branch("s_cbranch_scc1", "L_A1")
        gen_A_body(g, 0, locals())
        e.label("L_A1")
        gen_A_body(g, 1, locals())
    else:
        gen_A_body(g, 0, locals())


def gen_A_body(g, variant, env):
    e, c = g.e, g.c
    nt = c.nt
    e.vm = []
    (S_DH, S_H, S_KB, S_HG, S_P, SX, SWQ, SUK, SUV, SWO, SCK, L, Gq, N_, M8, M4, ACC, A0, A1, vX, vWQ, vUK, vWO, vL16, vRHO, vK,
     QC2, T, UK, UV, WO, BUF0, BUF1, VALID, S_CKX, tstamp, pstamp, t2stamp, tail, S_A) = (env[k] for k in (
        "S_DH S_H S_KB S_HG S_P SX SWQ SUK SUV SWO SCK L Gq N_ M8 M4 ACC A0 A1 vX vWQ vUK vWO vL16 vRHO vK "
        "QC2 T UK UV WO BUF0 BUF1 VALID S_CKX tstamp pstamp t2stamp tail S_A").split())
    S_S = 77
    e.op(f"s_add_u32 s{S_S}, s{S_DH}, 6")
    vS1W, vS1X, vLDS = 25, 24, 33
    X1 = lambda t: 192 + t
    W1 = lambda t: 48 + 4 * t
    LQP, LQF = L_QA, L_QA + 4096
    g.stage1_setup(S_S, S_H, vS1W, vS1X, Gq, N_, T, SX, SWQ)
    e.op("s_waitcnt lgkmcnt(0)")
    if c.prof:
        e.op("s_mov_b32 s80, s78")
    g.stage1_srds(SX, SWQ)
    g.stage1_issue(X1, W1, vS1X, vS1W, SX, SWQ)
    e.op(f"s_load_dword s{S_N}, {sr(P_WS)}, {EPOCH}")
    e.op("s_lshl_b32 s7, s3, 5")
    e.op(f"v_lshlrev_b32 v{T}, 3, v{Gq}")
    e.op(f"v_add_u32 v{T}, s7, v{T}")
    e.op(f"v_lshlrev_b32 v{T}, 13, v{T}")
    e.op(f"v_lshlrev_b32 v{T+1}, 4, v{N_}")
    vUK2 = 34
    e.op(f"v_add_u32 v{vUK2}, v{T}, v{T+1}")
    e.op(f"s_lshl_b32 s9, s{S_H}, 8")
    e.op(f"s_lshl_b32 s10, s{S_DH}, 21")
    e.op("s_add_u32 s9, s9, s10")
    g.srd(SUK, P_WUK, "s9", 256 * 8192)
    def issue_uk(t):
        e.op(f"s_mov_b32 s7, {t*8192}")
        e.op(f"buffer_load_dwordx4 {vr(UK(t))}, v{vUK2}, {sr(SUK,4)}, s7 offen {nt}", tag=("uk", t))

    def issue_ck(i):
        e.op(f"s_lshl_b32 s7, s3, 4")
        if c.ckrot and not c.avar:
            e.op(f"s_xor_b32 s8, s{S_CKX}, {i}")
            e.op("s_add_u32 s7, s7, s8")
        else:
            e.op(f"s_add_u32 s7, s7, {i}")
        e.op(f"s_mul_i32 s8, s7, {C_STRIDE}")
        e.op("s_lshl_b32 s7, s7, 10")
        e.op("s_mov_b32 m0, s8")
        e.op(f"buffer_load_dwordx4 v{vL16}, {sr(SCK,4)}, s7 offen {c.nt_ckv} lds", tag=("ck", i))

    def issue_uv(t):
        e.op(f"s_mov_b32 s7, {t*8192}")
        e.op(f"buffer_load_dwordx4 {vr(UV(t))}, v{vUK}, {sr(SUV,4)}, s7 offen {nt}", tag=("uv", t))

    def issue_wo(t):
        r2, cb = t // 5, t % 5
        e.op(f"s_mov_b32 s7, {5120*r2}")
        e.op(f"buffer_load_dwordx4 {vr(WO(t))}, v{vWO}, {sr(SWO,4)}, s7 offen offset:{256*cb} {nt}", tag=("wo", t))
    queue = ([(issue_uk, t) for t in range(8)] + [(issue_ck, t) for t in range(16)] +
             [(issue_uv, t) for t in range(8)] + [(issue_wo, t) for t in range(10)])
    sched = list(c.PFA)
    if variant == 1:
        n = c.A1_UV
        queue = ([(issue_uk, t) for t in range(8)] + [(issue_uv, t) for t in range(n)] + [(issue_ck, t) for t in range(16)] +
                 [(issue_uv, t) for t in range(n, 8)] + [(issue_wo, t) for t in range(10)])
        sched = list(c.PFA1)

    def pf(point, upto=None):
        n = sched[point] if point < len(sched) else 0
        while queue and (n > 0 or (upto is not None and any(f is upto for f, _ in queue))):
            f, t = queue.pop(0)
            f(t)
            n -= 1
    pf(0)
    if not c.avar:
        g.code_prefetch(["s_cmp_lt_u32 s2, 8"], "L_end", 8, T, 224, 92)
    e.op(f"v_lshrrev_b32 v3, 1, v{N_}")
    g.make_masks(M4, 3, N_, T, T + 1)
    e.op("s_lshl_b32 s9, s3, 9")
    e.op(f"v_lshlrev_b32 v{vLDS}, 5, v{N_}")
    e.op(f"v_lshlrev_b32 v{T+1}, 4, v{Gq}")
    e.op(f"s_add_u32 s9, s9, {LQP}")
    e.op(f"v_add3_u32 v{vLDS}, v{vLDS}, v{T+1}, s9")
    e.op(f"v_lshrrev_b32 v{vRHO}, 3, v{L}")
    e.op(f"v_and_b32 v{vK}, 7, v{L}")
    e.op(f"v_lshrrev_b32 v3, 1, v{vK}")
    g.make_masks(M8, 3, N_, T, T + 1)
    e.op("s_lshl_b32 s7, s3, 6")
    e.op(f"v_lshlrev_b32 v{T}, 3, v{vRHO}")
    e.op(f"v_add_u32 v{T}, s7, v{T}")
    e.op(f"v_lshlrev_b32 v{T}, 13, v{T}")
    e.op(f"v_lshlrev_b32 v{T+1}, 4, v{vK}")
    e.op(f"v_add_u32 v{vUK}, v{T}, v{T+1}")
    e.op("s_lshl_b32 s7, s3, 3")
    e.op(f"v_add_u32 v{T}, s7, v{Gq}")
    e.op(f"v_mul_u32_u24 v{T}, 1280, v{T}")
    e.op(f"v_lshlrev_b32 v{T+1}, 4, v{N_}")
    e.op(f"v_add_u32 v{vWO}, v{T}, v{T+1}")
    e.op(f"v_lshlrev_b32 v{vL16}, 4, v{L}")
    e.op(f"s_lshl_b32 s9, s{S_H}, 8")
    e.op(f"s_lshl_b32 s10, s{S_DH}, 7")
    e.op("s_add_u32 s9, s9, s10")
    g.srd(SUV, P_WUV, "s9", 512 * 8192)
    g.srd(SRD_WS, P_WS, None, G.WS_USED)
    e.op(f"s_lshl_b32 s9, s{S_H}, 7")
    e.op(f"s_lshl_b32 s10, s{S_DH}, 6")
    e.op("s_add_u32 s9, s9, s10")
    e.op("s_mul_i32 s9, s9, 1280")
    g.srd(SWO, P_WOA, "s9", 64 * 1280)
    e.op(f"s_lshl_b32 s9, s{S_KB}, 17")
    g.srd(SCK, P_CKV, "s9", 128 * 1024)
    e.op("s_waitcnt lgkmcnt(0)")
    e.op(f"s_add_u32 s{S_N}, s{S_N}, 0x{NONCE_STEP:x}")
    g.stamp(1)
    g.stage1_compute(X1, W1, M4, A0, A1, ACC, vLDS, 0)
    e.op("s_waitcnt lgkmcnt(0)")
    e.op("s_barrier")
    g.stage1_publish(S_S, S_H, L, vL16, T, 192, T + 4, LQP)
    pf(1)
    POLLA = lambda p: 192 + 4 * p
    lab = e.newlabel("qa")
    e.op("s_cmp_lg_u32 s3, 3")
    e.branch("s_cbranch_scc1", lab)
    e.op("s_setprio 2")
    fast = G.QAQX if c.dual else None
    g.spin_init()
    g.qpoll_issue(G.QAQ, S_H, POLLA, vL16, fast)
    e.op("s_waitcnt vmcnt(0)")
    g.qpoll_finish(G.QAQ, S_H, POLLA, vL16, L, T, LQF, fast if c.dual else None)
    e.op("s_setprio 0")
    e.label(lab)
    pf(2, upto=issue_uk)
    e.op("s_barrier")
    g.stamp(2)
    e.op(f"v_lshlrev_b32 v{T}, 4, v{N_}")
    e.op(f"v_add_u32 v{T}, {LQF}, v{T}")
    e.op(f"ds_read_b128 {vr(QC2)}, v{T}")
    pf(3)
    e.op("s_waitcnt lgkmcnt(0)")
    for half in range(2):
        ts = list(range(4 * half, 4 * half + 4))
        for t in ts:
            e.wait_vm(("uk", t))
        for k in range(4):
            for t in ts:
                e.op(f"v_dot2_f32_bf16 v{UK(t)}, v{UK(t)+k}, v{QC2+k}, {'0' if k == 0 else 'v%d' % UK(t)}")
    for k in (8, 4, 2, 1):
        for t in range(8):
            e.op(f"v_add_f32_dpp v{UK(t)}, v{UK(t)}, v{UK(t)} row_ror:{k} row_mask:0xf bank_mask:0xf")
    for k in range(4):
        e.op(f"v_cvt_pk_bf16_f32 v{T+4+k}, v{UK(2*k)}, v{UK(2*k+1)}")
    assert (T + 4) % 2 == 0
    e.op(f"v_lshlrev_b32 v{T}, 4, v{Gq}")
    e.op(f"s_lshl_b32 s7, s{S_P}, 9")
    e.op("s_lshl_b32 s8, s3, 6")
    e.op("s_add_u32 s7, s7, s8")
    e.op(f"s_add_u32 s7, s7, {QA}")
    g.exec_set(0x0001000100010001)
    e.op(f"buffer_store_dwordx4 {vr(T+4)}, v{T}, {sr(SRD_WS,4)}, s7 offen sc1", tag="qast")
    g.exec_set(-1)
    pf(4)
    e.wait_vm("qast")
    e.op("s_barrier")
    g.stamp(3)
    lab = e.newlabel("fl")
    e.op("s_cmp_lg_u32 s3, 0")
    e.branch("s_cbranch_scc1", lab)
    e.op(f"s_lshr_b32 s7, s{S_H}, 4")
    e.op(f"v_lshlrev_b32 v{T}, 1, v{L}")
    e.op(f"v_add_u32 v{T}, s7, v{T}")
    e.op(f"v_lshlrev_b32 v{T}, 8, v{T}")
    e.op(f"s_and_b32 s7, s{S_H}, 15")
    e.op("s_lshl_b32 s7, s7, 1")
    e.op(f"s_add_u32 s7, s7, s{S_DH}")
    e.op("s_lshl_b32 s7, s7, 3")
    e.op(f"s_add_u32 s7, s7, {QAF}")
    e.op(f"v_mov_b32 v{T+2}, s{S_N}")
    e.op(f"v_mov_b32 v{T+3}, s{S_N}")
    g.exec_set(0xffffffff)
    e.op(f"buffer_store_dwordx2 {vr(T+2,2)}, v{T}, {sr(SRD_WS,4)}, s7 offen sc1", count=False)
    g.exec_set(-1)
    e.label(lab)
    pf(5, upto=issue_ck)

    def scalar_flag_poll(off_expr_setup):
        off_expr_setup()
        e.op(f"s_mov_b32 s10, s{S_N}")
        e.op(f"s_mov_b32 s11, s{S_N}")
        g.spin_init()
        poll, done = e.newlabel("fpoll"), e.newlabel("fdone")
        e.label(poll)
        e.op("s_load_dwordx8 s[92:99], s[8:9], 0 glc")
        e.op("s_waitcnt lgkmcnt(0)")
        for k in range(4):
            e.op(f"s_xor_b64 s[{92+2*k}:{93+2*k}], s[{92+2*k}:{93+2*k}], s[10:11]")
        e.op("s_or_b64 s[92:93], s[92:93], s[94:95]")
        e.op("s_or_b64 s[96:97], s[96:97], s[98:99]")
        e.op("s_or_b64 s[92:93], s[92:93], s[96:97]")
        e.op("s_cmp_eq_u64 s[92:93], 0")
        e.branch("s_cbranch_scc1", done)
        g.spin_step(done)
        e.branch("s_branch", poll)
        e.label(done)

    def qaf_addr():
        e.op(f"s_lshl_b32 s7, s{S_KB}, 1")
        e.op(f"s_add_u32 s7, s7, s{S_HG}")
        e.op("s_lshl_b32 s7, s7, 8")
        e.op("s_lshl_b32 s8, s3, 5")
        e.op("s_add_u32 s7, s7, s8")
        e.op(f"s_add_u32 s7, s7, {QAF}")
        e.op(f"s_add_u32 s8, s{P_WS}, s7")
        e.op(f"s_addc_u32 s9, s{P_WS+1}, 0")
    scalar_flag_poll(qaf_addr)
    g.stamp(4)
    e.op(f"s_lshl_b32 s7, s{S_HG}, 14")
    e.op("s_lshl_b32 s8, s3, 11")
    e.op("s_add_u32 s7, s7, s8")
    e.op(f"s_add_u32 s7, s7, {QA}")
    for u in range(2):
        e.op(f"buffer_load_dwordx4 {vr(BUF0+4*u)}, v{vL16}, {sr(SRD_WS,4)}, s7 offen offset:{1024*u} sc1", tag=("qa", u))
    pf(6)
    e.wait_vm(("qa", 1))
    e.op(f"s_mul_i32 s7, s3, {2*C_STRIDE}")
    e.op(f"s_add_u32 s7, s7, {L_QA}")
    e.op(f"v_add_u32 v{T}, s7, v{vL16}")
    e.op(f"ds_write_b128 v{T}, {vr(BUF0)}")
    e.op(f"ds_write_b128 v{T}, {vr(BUF0+4)} offset:{C_STRIDE}")
    e.wait_vm(("ck", 15))
    e.op("s_waitcnt lgkmcnt(0)")
    e.op("s_barrier")
    g.stamp(5)
    pf(7)
    vA, vB = T, T + 1
    e.op("s_lshl_b32 s7, s3, 4")
    e.op(f"v_add_u32 v{vA}, s7, v{N_}")
    e.op(f"v_mul_u32_u24 v{vA}, {C_STRIDE}, v{vA}")
    e.op(f"v_lshlrev_b32 v{T+2}, 4, v{Gq}")
    e.op(f"v_add_u32 v{vA}, v{vA}, v{T+2}")
    e.op(f"v_mul_u32_u24 v{vB}, {C_STRIDE}, v{N_}")
    e.op(f"v_add_u32 v{vB}, v{vB}, v{T+2}")
    e.op(f"v_add_u32 v{vB}, {L_QA}, v{vB}")

    def s_reads(b):
        buf = BUF0 if b % 2 == 0 else BUF1
        for i in range(4):
            t = 4 * b + i
            e.op(f"ds_read_b128 {vr(buf+8*i)}, v{vA} offset:{64*t}")
            e.op(f"ds_read_b128 {vr(buf+8*i+4)}, v{vB} offset:{64*t}")
    t2stamp(1)
    s_reads(0)
    for b in range(4):
        if b + 1 < 4:
            s_reads(b + 1)
        buf = BUF0 if b % 2 == 0 else BUF1
        for i in range(4):
            left = (8 if b + 1 < 4 else 0) + (6 - 2 * i)
            e.op(f"s_waitcnt lgkmcnt({left})")
            first = (b == 0 and i == 0)
            e.op(f"v_mfma_f32_16x16x32_bf16 {vr(ACC)}, {vr(buf+8*i)}, {vr(buf+8*i+4)}, {'0' if first else vr(ACC)}")
    t2stamp(2)
    pf(8)
    SC = T + 4
    e.op(f"s_mov_b32 s7, {f32hex(SCALE)}")
    for r in range(4):
        e.op(f"v_mul_f32 v{SC+r}, s7, v{ACC+r}")
    MXr = T + 2
    e.op(f"v_max3_f32 v{MXr}, v{SC}, v{SC+1}, v{SC+2}")
    e.op(f"v_max_f32 v{MXr}, v{MXr}, v{SC+3}")
    g.xor16("v_max_f32", MXr, T + 3)
    g.xor32("v_max_f32", MXr, T + 3)
    vMX = 24
    e.op(f"v_lshlrev_b32 v{vMX}, 5, v{N_}")
    e.op(f"v_add_u32 v{vMX}, {L_MX}, v{vMX}")
    e.op("s_lshl_b32 s7, s3, 2")
    e.op(f"v_add_u32 v{T+3}, s7, v{vMX}")
    g.exec_set(0xffff)
    e.op(f"ds_write_b32 v{T+3}, v{MXr}")
    g.exec_set(-1)
    e.op("s_waitcnt lgkmcnt(0)")
    e.op("s_barrier")
    t2stamp(3)
    e.op(f"ds_read_b128 {vr(BUF0)}, v{vMX}")
    e.op(f"ds_read_b128 {vr(BUF0+4)}, v{vMX} offset:16")
    pf(9)
    e.op("s_waitcnt lgkmcnt(0)")
    vM = 25
    e.op(f"v_max3_f32 v{vM}, v{BUF0}, v{BUF0+1}, v{BUF0+2}")
    e.op(f"v_max3_f32 v{vM}, v{vM}, v{BUF0+3}, v{BUF0+4}")
    e.op(f"v_max3_f32 v{vM}, v{vM}, v{BUF0+5}, v{BUF0+6}")
    e.op(f"v_max_f32 v{vM}, v{vM}, v{BUF0+7}")
    for r in range(4):
        e.op(f"v_sub_f32 v{SC+r}, v{SC+r}, v{vM}")
    for r in range(4):
        e.op(f"v_exp_f32 v{SC+r}, v{SC+r}")
    PP = T + 8
    assert PP % 2 == 0
    e.op(f"v_cvt_pk_bf16_f32 v{PP}, v{SC}, v{SC+1}")
    e.op(f"v_cvt_pk_bf16_f32 v{PP+1}, v{SC+2}, v{SC+3}")
    e.op("s_mov_b32 s7, 0xffff0000")
    e.op(f"v_lshlrev_b32 v{SC}, 16, v{PP}")
    e.op(f"v_and_b32 v{SC+1}, s7, v{PP}")
    e.op(f"v_lshlrev_b32 v{SC+2}, 16, v{PP+1}")
    e.op(f"v_and_b32 v{SC+3}, s7, v{PP+1}")
    e.op(f"v_add_f32 v{SC}, v{SC}, v{SC+1}")
    e.op(f"v_add_f32 v{SC+2}, v{SC+2}, v{SC+3}")
    e.op(f"v_add_f32 v{SC}, v{SC}, v{SC+2}")
    g.xor16("v_add_f32", SC, SC + 1)
    g.xor32("v_add_f32", SC, SC + 1)
    e.op(f"v_mul_u32_u24 v{T}, {P_STRIDE}, v{N_}")
    e.op(f"v_lshlrev_b32 v{T+1}, 4, v{Gq}")
    e.op(f"v_add_u32 v{T}, v{T}, v{T+1}")
    e.op(f"v_add_u32 v{T}, {L_P}, v{T}")
    vPR = 30
    e.op(f"v_mov_b32 v{vPR}, v{T}")
    e.op("s_lshr_b32 s7, s3, 1")
    e.op("s_lshl_b32 s7, s7, 6")
    e.op("s_and_b32 s8, s3, 1")
    e.op("s_lshl_b32 s8, s8, 3")
    e.op("s_add_u32 s7, s7, s8")
    e.op(f"v_add_u32 v{T}, s7, v{T}")
    e.op(f"ds_write_b64 v{T}, {vr(PP,2)}")
    e.op(f"v_add_u32 v{T+3}, {L_LX-L_MX}, v{T+3}")
    g.exec_set(0xffff)
    e.op(f"ds_write_b32 v{T+3}, v{SC}")
    g.exec_set(-1)
    e.op("s_waitcnt lgkmcnt(0)")
    e.op("s_barrier")
    g.stamp(6)
    pf(10)
    PB = 48
    OACC = 64
    TR = 88
    for s in range(4):
        e.op(f"ds_read_b128 {vr(PB+4*s)}, v{vPR} offset:{64*s}")
    vT0, vT1 = T, T + 1
    e.op(f"v_lshrrev_b32 v{T+2}, 2, v{N_}")
    e.op(f"v_lshl_add_u32 v{T+2}, v{Gq}, 2, v{T+2}")
    e.op(f"v_mul_u32_u24 v{vT0}, {C_STRIDE}, v{T+2}")
    e.op(f"v_and_b32 v{T+2}, 3, v{N_}")
    e.op(f"v_lshlrev_b32 v{T+2}, 3, v{T+2}")
    e.op("s_lshl_b32 s7, s3, 7")
    e.op(f"v_add3_u32 v{vT0}, v{vT0}, v{T+2}, s7")
    e.op(f"v_add_u32 v{vT1}, {64*C_STRIDE}, v{vT0}")

    def tr_reads(tau):
        buf = TR if tau % 2 == 0 else BUF0
        for s in range(4):
            base = vT0 if s < 2 else vT1
            for u in range(2):
                off = (32 * (s & 1) + 16 * u) * C_STRIDE + 32 * tau
                e.op(f"ds_read_b64_tr_b16 {vr(buf+4*s+2*u,2)}, v{base} offset:{off}")
    tr_reads(0)
    for tau in range(4):
        if tau + 1 < 4:
            tr_reads(tau + 1)
        buf = TR if tau % 2 == 0 else BUF0
        for s in range(4):
            left = (8 if tau + 1 < 4 else 0) + (6 - 2 * s)
            e.op(f"s_waitcnt lgkmcnt({left})")
            e.op(f"v_mfma_f32_16x16x32_bf16 {vr(OACC+4*tau)}, {vr(buf+4*s)}, {vr(PB+4*s)}, {'0' if s == 0 else vr(OACC+4*tau)}")
    t2stamp(9)
    pf(11)
    e.op(f"v_mul_u32_u24 v{T}, {C_STRIDE}, v{N_}")
    e.op(f"v_lshlrev_b32 v{T+1}, 3, v{Gq}")
    e.op("s_lshl_b32 s7, s3, 7")
    e.op(f"s_add_u32 s7, s7, {L_QA}")
    e.op(f"v_add3_u32 v{T}, v{T}, v{T+1}, s7")
    for tau in range(4):
        o = OACC + 4 * tau
        e.op(f"v_cvt_pk_bf16_f32 v{o}, v{o}, v{o+1}")
        e.op(f"v_cvt_pk_bf16_f32 v{o+1}, v{o+2}, v{o+3}")
        e.op(f"ds_write_b64 v{T}, {vr(o,2)} offset:{32*tau}")
    e.op("s_waitcnt lgkmcnt(0)")
    e.op("s_barrier")
    g.stamp(7)
    e.op(f"s_mul_i32 s7, s3, {2*C_STRIDE}")
    e.op(f"s_add_u32 s7, s7, {L_QA}")
    e.op(f"v_add_u32 v{T}, s7, v{vL16}")
    e.op(f"ds_read_b128 {vr(BUF1)}, v{T}")
    e.op(f"ds_read_b128 {vr(BUF1+4)}, v{T} offset:{C_STRIDE}")
    e.op(f"v_add_u32 v{T+1}, {L_LX-L_MX}, v{vMX}")
    e.op(f"ds_read_b128 {vr(BUF1+8)}, v{T+1}")
    e.op(f"ds_read_b128 {vr(BUF1+12)}, v{T+1} offset:16")
    e.op(f"s_lshl_b32 s7, s{S_HG}, 4")
    e.op("s_lshl_b32 s8, s3, 1")
    e.op("s_add_u32 s7, s7, s8")
    e.op("s_lshl_b32 s7, s7, 5")
    e.op(f"s_add_u32 s7, s7, s{S_KB}")
    e.op("s_lshl_b32 s7, s7, 10")
    e.op(f"s_add_u32 s7, s7, {OA}")
    e.op("s_add_u32 s8, s7, 32768")
    e.op("s_mov_b32 s14, s7")
    e.op("s_waitcnt lgkmcnt(0)")
    lab = e.newlabel("ml")
    e.op("s_cmp_lg_u32 s3, 0")
    e.branch("s_cbranch_scc1", lab)
    b = BUF1 + 8
    e.op(f"v_add_f32 v{b}, v{b}, v{b+1}")
    e.op(f"v_add_f32 v{b+2}, v{b+2}, v{b+3}")
    e.op(f"v_add_f32 v{b+4}, v{b+4}, v{b+5}")
    e.op(f"v_add_f32 v{b+6}, v{b+6}, v{b+7}")
    e.op(f"v_add_f32 v{b}, v{b}, v{b+2}")
    e.op(f"v_add_f32 v{b+4}, v{b+4}, v{b+6}")
    e.op(f"v_add_f32 v{T+3}, v{b}, v{b+4}")
    e.op(f"v_mov_b32 v{T+2}, v{vM}")
    assert (T + 2) % 2 == 0
    e.op(f"v_lshlrev_b32 v{T+1}, 8, v{N_}")
    e.op(f"s_lshl_b32 s7, s{S_HG}, 12")
    e.op(f"s_lshl_b32 s9, s{S_KB}, 3")
    e.op("s_add_u32 s7, s7, s9")
    e.op(f"s_add_u32 s7, s7, {MLA}")
    g.exec_set(0xffff)
    e.op(f"buffer_store_dwordx2 {vr(T+2,2)}, v{T+1}, {sr(SRD_WS,4)}, s7 offen sc1", count=False)
    g.exec_set(-1)
    e.label(lab)
    e.op(f"buffer_store_dwordx4 {vr(BUF1)}, v{vL16}, {sr(SRD_WS,4)}, s14 offen sc1", tag="ost0")
    e.op(f"buffer_store_dwordx4 {vr(BUF1+4)}, v{vL16}, {sr(SRD_WS,4)}, s8 offen sc1", tag="ost1")
    pf(12)
    e.wait_vm("ost1")
    e.op("s_barrier")
    g.stamp(8)
    lab = e.newlabel("fl2")
    e.op("s_cmp_lg_u32 s3, 0")
    e.branch("s_cbranch_scc1", lab)
    e.op(f"v_lshlrev_b32 v{T}, 8, v{L}")
    e.op(f"s_lshl_b32 s7, s{S_HG}, 13")
    e.op(f"s_lshl_b32 s8, s{S_KB}, 3")
    e.op("s_add_u32 s7, s7, s8")
    e.op(f"s_add_u32 s7, s7, {OAF}")
    e.op(f"v_mov_b32 v{T+2}, s{S_N}")
    e.op(f"v_mov_b32 v{T+3}, s{S_N}")
    g.exec_set(0xffffffff)
    e.op(f"buffer_store_dwordx2 {vr(T+2,2)}, v{T}, {sr(SRD_WS,4)}, s7 offen sc1", count=False)
    g.exec_set(-1)
    e.label(lab)
    pf(13)

    def oaf_addr():
        e.op(f"s_lshl_b32 s7, s{S_P}, 8")
        e.op("s_lshl_b32 s8, s3, 5")
        e.op("s_add_u32 s7, s7, s8")
        e.op(f"s_add_u32 s7, s7, {OAF}")
        e.op(f"s_add_u32 s8, s{P_WS}, s7")
        e.op(f"s_addc_u32 s9, s{P_WS+1}, 0")
    scalar_flag_poll(oaf_addr)
    e.op("s_barrier")
    g.stamp(9)
    vKk = 30
    e.op(f"v_and_b32 v{vKk}, 7, v{L}")
    ML = T + 2
    e.op(f"v_and_b32 v{T}, 31, v{L}")
    e.op(f"v_lshlrev_b32 v{T}, 3, v{T}")
    e.op(f"s_lshl_b32 s7, s{S_H}, 8")
    e.op(f"s_add_u32 s7, s7, {MLA}")
    e.op(f"buffer_load_dwordx2 {vr(ML,2)}, v{T}, {sr(SRD_WS,4)}, s7 offen sc1", tag="ml")
    e.op(f"v_lshlrev_b32 v{T}, 10, v{vRHO}")
    e.op(f"v_lshlrev_b32 v{T+1}, 4, v{vKk}")
    e.op("s_lshl_b32 s7, s3, 7")
    e.op(f"v_add3_u32 v{T}, v{T}, v{T+1}, s7")
    e.op(f"s_lshl_b32 s7, s{S_H}, 15")
    e.op(f"s_add_u32 s7, s7, {OA}")
    OT = 48
    for t in range(4):
        e.op(f"buffer_load_dwordx4 {vr(OT+4*t)}, v{T}, {sr(SRD_WS,4)}, s7 offen sc1", tag=("ot", t))
        if t < 3:
            e.op("s_addk_i32 s7, 0x2000")
    pf(14, upto=issue_uv)
    e.wait_vm("ml")
    pstamp(1)
    W_ = T + 4
    e.op(f"v_mov_b32 v{W_}, v{ML}")
    g.wave_reduce("v_max_f32", W_, W_ + 1, lanes=32)
    e.op(f"v_sub_f32 v{W_}, v{ML}, v{W_}")
    e.op(f"v_exp_f32 v{W_}, v{W_}")
    e.op(f"v_mul_f32 v{W_+1}, v{W_}, v{ML+1}")
    g.wave_reduce("v_add_f32", W_ + 1, W_ + 2, lanes=32)
    e.op(f"v_rcp_f32 v{W_+1}, v{W_+1}")
    e.op(f"v_mul_f32 v{W_}, v{W_}, v{W_+1}")
    e.op(f"v_cvt_pk_bf16_f32 v{W_}, v{W_}, v{W_}")
    pstamp(2)
    e.op(f"v_lshlrev_b32 v{W_+1}, 2, v{vRHO}")
    WB = 64
    for t in range(4):
        if t:
            e.op(f"v_add_u32 v{W_+1}, 32, v{W_+1}")
        e.op(f"ds_bpermute_b32 v{WB+t}, v{W_+1}, v{W_}")
    e.op("s_waitcnt lgkmcnt(0)")
    pstamp(3)
    e.wait_vm(("ot", 3), keep=True)
    pstamp(4)
    for t in range(4):
        e.wait_vm(("ot", t))
        A = A0 if t % 2 == 0 else A1
        for r in range(4):
            e.op(f"v_and_b32 v{A+r}, v{WB+t}, v{M8+r}")
        e.op(f"v_mfma_f32_16x16x32_bf16 {vr(ACC)}, {vr(A)}, {vr(OT+4*t)}, {'0' if t == 0 else vr(ACC)}")
    pf(15, upto=issue_wo)
    e.op(f"v_lshlrev_b32 v{T}, 5, v{vKk}")
    e.op(f"v_lshlrev_b32 v{T+1}, 4, v{Gq}")
    e.op(f"v_and_b32 v{T+2}, 1, v{Gq}")
    e.op(f"v_lshlrev_b32 v{T+2}, 4, v{T+2}")
    e.op(f"v_lshrrev_b32 v{T+3}, 1, v{Gq}")
    e.op(f"v_lshlrev_b32 v{T+3}, 8, v{T+3}")
    e.op(f"v_add3_u32 v{T}, v{T}, v{T+2}, v{T+3}")
    e.op("s_lshl_b32 s7, s3, 9")
    e.op(f"v_add_u32 v{T}, s7, v{T}")
    g.exec_set(VALID)
    e.op(f"ds_write_b128 v{T}, {vr(ACC)}")
    g.exec_set(-1)
    e.op(f"v_lshlrev_b32 v{T+1}, 5, v{vRHO}")
    e.op(f"v_add_u32 v{T+1}, s7, v{T+1}")
    e.op("s_waitcnt lgkmcnt(0)")
    pstamp(5)
    CC = 68
    e.op(f"ds_read_b128 {vr(CC)}, v{T+1}")
    e.op(f"ds_read_b128 {vr(CC+4)}, v{T+1} offset:16")
    e.op(f"ds_read_b128 {vr(CC+8)}, v{T+1} offset:256")
    e.op(f"ds_read_b128 {vr(CC+12)}, v{T+1} offset:272")
    e.op("s_waitcnt lgkmcnt(0)")
    for t in range(8):
        e.op(f"v_add_f32 v{CC+t}, v{CC+t}, v{CC+8+t}")
    for t in range(8):
        e.op(f"v_cvt_pk_bf16_f32 v{CC+t}, v{CC+t}, v{CC+t}")
    pstamp(6)
    for t in range(8):
        e.wait_vm(("uv", t))
        A = A0 if t % 2 == 0 else A1
        for r in range(4):
            e.op(f"v_and_b32 v{A+r}, v{CC+t}, v{M8+r}")
        e.op(f"v_mfma_f32_16x16x32_bf16 {vr(ACC)}, {vr(A)}, {vr(UV(t))}, {'0' if t == 0 else vr(ACC)}")
    pstamp(7)
    LCP, CPS = 4096, 528
    e.op(f"v_lshlrev_b32 v{T}, 5, v{vKk}")
    e.op(f"v_and_b32 v{T+2}, 1, v{Gq}")
    e.op(f"v_lshlrev_b32 v{T+2}, 4, v{T+2}")
    e.op(f"v_lshrrev_b32 v{T+3}, 1, v{Gq}")
    e.op(f"v_lshlrev_b32 v{T+3}, 8, v{T+3}")
    e.op(f"v_add3_u32 v{T}, v{T}, v{T+2}, v{T+3}")
    e.op(f"s_mul_i32 s7, s3, {CPS}")
    e.op(f"s_add_u32 s7, s7, {LCP}")
    e.op(f"v_add_u32 v{T}, s7, v{T}")
    g.exec_set(VALID)
    e.op(f"ds_write_b128 v{T}, {vr(ACC)}")
    g.exec_set(-1)
    e.op(f"v_mul_u32_u24 v{T}, {CPS}, v{vKk}")
    e.op(f"v_lshrrev_b32 v{T+2}, 3, v{N_}")
    e.op(f"v_lshl_add_u32 v{T+2}, v{T+2}, 2, v{Gq}")
    e.op("s_lshl_b32 s7, s3, 3")
    e.op(f"v_add_u32 v{T+2}, s7, v{T+2}")
    e.op(f"v_lshl_add_u32 v{T}, v{T+2}, 2, v{T}")
    e.op("s_waitcnt lgkmcnt(0)")
    e.op("s_barrier")
    g.stamp(10)
    e.op(f"ds_read_b32 v{T+2}, v{T} offset:{LCP}")
    e.op(f"ds_read_b32 v{T+3}, v{T} offset:{LCP+256}")
    e.op("s_waitcnt lgkmcnt(0)")
    e.op(f"v_add_f32 v{T+2}, v{T+2}, v{T+3}")
    for perm in ("row_half_mirror", "quad_perm:[2,3,0,1]", "quad_perm:[1,0,3,2]"):
        e.op(f"v_add_f32_dpp v{T+2}, v{T+2}, v{T+2} {perm} row_mask:0xf bank_mask:0xf")
    e.op(f"v_cvt_pk_bf16_f32 v{T+2}, v{T+2}, v{T+2}")
    for r in range(4):
        e.op(f"v_and_b32_dpp v{A0+r}, v{T+2}, v{M4+r} row_newbcast:0 row_mask:0xf bank_mask:0xf")
    for r in range(4):
        e.op(f"v_and_b32_dpp v{A1+r}, v{T+2}, v{M4+r} row_newbcast:8 row_mask:0xf bank_mask:0xf")
    OA5 = 64
    for r2 in range(2):
        for cb in range(5):
            t = 5 * r2 + cb
            e.wait_vm(("wo", t))
            A = A0 if r2 == 0 else A1
            e.op(f"v_mfma_f32_16x16x32_bf16 {vr(OA5+4*cb)}, {vr(A)}, {vr(WO(t))}, {'0' if r2 == 0 else vr(OA5+4*cb)}")
    tstamp(1)
    LF = 12288
    e.op(f"v_lshlrev_b32 v{T}, 5, v{N_}")
    e.op(f"v_lshlrev_b32 v{T+1}, 4, v{Gq}")
    e.op(f"s_mul_i32 s7, s3, 2560")
    e.op(f"s_add_u32 s7, s7, {LF}")
    e.op(f"v_add3_u32 v{T}, v{T}, v{T+1}, s7")
    g.exec_set(0xffffffff)
    for cb in range(5):
        e.op(f"ds_write_b128 v{T}, {vr(OA5+4*cb)} offset:{512*cb}")
    g.exec_set(-1)
    e.op("s_waitcnt lgkmcnt(0)")
    e.op("s_barrier")
    tstamp(2)
    nopub = e.newlabel("nopub")
    e.op("s_cmp_ge_u32 s3, 5")
    e.branch("s_cbranch_scc1", nopub)
    a = 48
    e.op("s_lshl_b32 s7, s3, 9")
    e.op(f"v_lshlrev_b32 v{T}, 3, v{L}")
    e.op(f"v_add_u32 v{T}, s7, v{T}")
    for w in range(8):
        e.op(f"ds_read_b64 {vr(a+2*w,2)}, v{T} offset:{LF+2560*w}")
    gq = T + 4
    e.op(f"v_mov_b32 v{gq+1}, s{S_N}")
    e.op(f"v_mov_b32 v{gq+3}, s{S_N}")
    e.op(f"s_mul_i32 s7, s{S_A}, 5120")
    e.op("s_lshl_b32 s8, s3, 10")
    e.op("s_add_u32 s7, s7, s8")
    e.op(f"s_add_u32 s7, s7, {FA}")
    e.op("s_waitcnt lgkmcnt(0)")
    for w in (1, 3, 5, 7):
        e.op(f"v_add_f32 v{a+2*(w-1)}, v{a+2*(w-1)}, v{a+2*w}")
        e.op(f"v_add_f32 v{a+2*(w-1)+1}, v{a+2*(w-1)+1}, v{a+2*w+1}")
    for w in (2, 6):
        e.op(f"v_add_f32 v{a+2*(w-2)}, v{a+2*(w-2)}, v{a+2*w}")
        e.op(f"v_add_f32 v{a+2*(w-2)+1}, v{a+2*(w-2)+1}, v{a+2*w+1}")
    e.op(f"v_add_f32 v{gq}, v{a}, v{a+8}")
    e.op(f"v_add_f32 v{gq+2}, v{a+1}, v{a+9}")
    e.op(f"buffer_store_dwordx4 {vr(gq)}, v{vL16}, {sr(SRD_WS,4)}, s7 offen sc1", count=False)
    e.label(nopub)
    tstamp(3)
    e.vm = []
    lend = e.newlabel("aend")
    e.op(f"s_cmp_ge_u32 s{S_A}, 40")
    e.branch("s_cbranch_scc1", lend)
    e.op("s_cmp_lg_u32 s3, 5")
    e.branch("s_cbranch_scc1", lend)
    g.srd(SX, P_OUT, None, 2560)
    e.op(f"s_lshl_b32 s7, s{S_A}, 7")
    e.op(f"s_add_u32 s10, s7, {FA}")
    e.op(f"s_lshl_b32 s14, s{S_A}, 5")
    g.final_reduce(8, 5120, 10, 14, SX, T, 48, L, pipelined=c.FAPOLL)
    tstamp(6)
    e.op(f"s_cmp_lg_u32 s{S_A}, 0")
    e.branch("s_cbranch_scc1", lend)
    e.op(f"v_mov_b32 v{T}, {EPOCH}")
    e.op(f"v_mov_b32 v{T+1}, s{S_N}")
    g.exec_set(1)
    e.op(f"buffer_store_dword v{T+1}, v{T}, {sr(SRD_WS,4)}, 0 offen sc1", count=False)
    g.exec_set(-1)
    e.label(lend)
    g.stamp(11)
    g.dump_stamps("A")
    e.op("s_endpgm")
```

```python
import argparse
from emit import Emit

NAME = "concat_heads__compressed_kv_cla__mha_block_cached__decode_kernel"

EPOCH = 0
MLG = 0x1000
OB = 0x32000
FB = 0x62000
FA = 0x8A000
QA = 0xDA000
QAF = 0xEA000
MLA = 0xEE000
OAF = 0xF0000
OA = 0x100000
PROF = 0x200000
QB = 0x240000
QAQ = 0x280000
QAQX = 0x2C0000
OBX = 0x300000
FBX = 0x340000
WS_USED = 0x370000
NONCE_STEP = 0x9E3779B1
SCALE = 0.08838834764831845 * 1.4426950408889634


def f32hex(x):
    import struct
    return "0x%08x" % struct.unpack("<I", struct.pack("<f", x))[0]


class Cfg:
    def __init__(self, **kw):
        self.nt = "nt"
        self.nt_ckv = ""
        self.W = 4
        self.WK = 3
        self.K1 = 0
        self.K0 = 2
        self.POLL_A = 9
        self.PREV = 2
        self.WA = 6
        self.COMM = 0
        self.DUAL_TH = 64
        self.xmap, self.dualF = False, True
        self.avar, self.A1_UV, self.A1_HG = False, 8, 0
        self.PFA1 = [4, 4, 8, 2, 6, 8, 0, 3, 0, 0, 3, 0, 0, 4, 0, 0]
        self.dual = True
        self.OPOLL, self.FBPOLL, self.FAPOLL = 0, 'pipe', 4
        self.ckrot = True
        self.prof = False
        self.cpf = False
        self.spin = 200000
        self.only = None
        self.PFA = [4, 4, 8, 2, 6, 4, 2, 5, 0, 0, 3, 0, 0, 4, 0, 0]
        self.__dict__.update(kw)
        if self.WK is None:
            self.WK = self.W


S_WG, S_WAVE, S_N = 2, 3, 4
P_AX, P_CKV, P_WQA, P_WUK, P_WUV, P_WOA = 16, 18, 20, 22, 24, 26
P_BX, P_BK, P_BV, P_BWQ, P_BWO, P_OUT, P_DBG, P_WS = 32, 34, 36, 38, 40, 42, 44, 46
SRD_WS = 48
S_SPIN = 15


def sr(n, k=2):
    return f"s[{n}:{n+k-1}]"


def vr(n, k=4):
    return f"v[{n}:{n+k-1}]"


class Gen:
    def __init__(self, cfg):
        self.c = cfg
        self.e = Emit()
        self.nstamp = 0

    def srd(self, dst, ptr, off_sgpr, nrec):
        e = self.e
        if off_sgpr is None:
            e.op(f"s_mov_b32 s{dst}, s{ptr}")
            e.op(f"s_mov_b32 s{dst+1}, s{ptr+1}")
        else:
            e.op(f"s_add_u32 s{dst}, s{ptr}, {off_sgpr}")
            e.op(f"s_addc_u32 s{dst+1}, s{ptr+1}, 0")
        e.op(f"s_mov_b32 s{dst+2}, {nrec}")
        e.op(f"s_mov_b32 s{dst+3}, 0x20000")

    def stamp(self, idx, bw=False):
        if not self.c.prof:
            return
        if getattr(self, "in_B", False) and bool(getattr(self.c, "bw", False)) != bw and idx != 0:
            return
        e = self.e
        e.op("s_memrealtime s[78:79]")
        e.op("s_waitcnt lgkmcnt(0)")
        e.op(f"s_mov_b32 s{80+idx}, s78")

    def dump_dbg(self, role):
        e = self.e
        sel = {"A": [(2, 1), (3, 3), (4, 4), (5, 5), (6, 8), (7, 9), (8, 10), (1, 11)],
               "B": [(9, 1), (10, 2), (11, 3), (12, 4), (13, 5), (14, 8), (15, 10), (1, 10)]}[role]
        lab = e.newlabel("nodbg")
        if role == "A":
            e.op("s_cmp_eq_u32 s3, 0")
            e.op("s_cselect_b32 s5, 1, 0")
            e.op("s_cmp_eq_u32 s3, 5")
            e.op("s_cselect_b32 s5, 1, s5")
            e.op("s_cmp_eq_u32 s5, 0")
        else:
            e.op(f"s_cmp_lg_u32 s3, {self.c.COMM}")
        e.branch("s_cbranch_scc1", lab)
        e.op("s_mov_b64 exec, -1")
        e.op("v_mbcnt_lo_u32_b32 v2, -1, 0")
        e.op("v_mbcnt_hi_u32_b32 v2, -1, v2")
        e.op("s_not_b32 s5, s80")
        e.op("v_mov_b32 v3, 0")
        for slot, src in [(0, None)] + sel:
            e.op(f"v_mov_b32 v4, {'s5' if src is None else 's%d' % (80+src)}")
            e.op(f"v_cmp_eq_u32 vcc, {slot}, v2")
            e.op("v_cndmask_b32 v3, v3, v4, vcc")
        e.op("v_lshlrev_b32 v2, 2, v2")
        self.srd(52, P_DBG, None, 256)
        self.exec_set(0xffff)
        e.op("buffer_atomic_umax v3, v2, s[52:55], 0 offen")
        self.exec_set(-1)
        e.label(lab)

    def dump_stamps(self, role=None):
        if not self.c.prof:
            return
        if self.c.prof == "dbg":
            return self.dump_dbg(role)
        e = self.e
        e.op("s_mov_b64 exec, -1")
        e.op("v_mbcnt_lo_u32_b32 v2, -1, 0")
        e.op("v_mbcnt_hi_u32_b32 v2, -1, v2")
        e.op("s_lshl_b32 s5, s2, 3")
        e.op("s_add_u32 s5, s5, s3")
        e.op("s_lshl_b32 s5, s5, 6")
        e.op(f"s_add_u32 s5, s5, {PROF}")
        e.op("v_mov_b32 v3, 0")
        for i in range(16):
            e.op(f"v_mov_b32 v4, s{80+i}")
            e.op(f"v_cmp_eq_u32 vcc, {i}, v2")
            e.op("v_cndmask_b32 v3, v3, v4, vcc")
        e.op("v_lshlrev_b32 v2, 2, v2")
        e.op("v_add_u32 v2, s5, v2")
        e.op("s_mov_b32 exec_lo, 0xffff".replace("exec_lo", "exec_lo"))
        e.op("s_mov_b32 exec_hi, 0")
        e.op(f"buffer_store_dword v3, v2, {sr(SRD_WS,4)}, 0 offen")
        e.op("s_mov_b64 exec, -1")

    def spin_init(self):
        self.e.op(f"s_mov_b32 s{S_SPIN}, 0")

    def spin_step(self, out_label):
        e = self.e
        e.op(f"s_add_u32 s{S_SPIN}, s{S_SPIN}, 1")
        e.op(f"s_cmp_gt_u32 s{S_SPIN}, {self.c.spin}")
        e.branch("s_cbranch_scc1", out_label)

    def wave_reduce(self, op, v, t, lanes=64):
        e = self.e
        for k in (8, 4, 2, 1):
            e.op(f"{op}_dpp v{v}, v{v}, v{v} row_ror:{k} row_mask:0xf bank_mask:0xf")
        self.xor16(op, v, t)
        if lanes == 64:
            self.xor32(op, v, t)

    def xor16(self, op, v, t):
        e = self.e
        e.op(f"v_mov_b32 v{t}, v{v}")
        e.op(f"v_permlane16_swap_b32 v{v}, v{t}")
        e.op(f"{op} v{v}, v{v}, v{t}")

    def xor32(self, op, v, t):
        e = self.e
        e.op(f"v_mov_b32 v{t}, v{v}")
        e.op(f"v_permlane32_swap_b32 v{v}, v{t}")
        e.op(f"{op} v{v}, v{v}, v{t}")

    def make_masks(self, dst, idx_reg, n_reg, t0, t1):
        e = self.e
        e.op(f"v_and_b32 v{t0}, 1, v{n_reg}")
        e.op(f"v_lshlrev_b32 v{t0}, 4, v{t0}")
        e.op(f"v_mov_b32 v{t1}, 0xffff")
        e.op(f"v_lshlrev_b32 v{t0}, v{t0}, v{t1}")
        for r in range(4):
            e.op(f"v_cmp_eq_u32 vcc, {r}, v{idx_reg}")
            e.op(f"v_cndmask_b32 v{dst+r}, 0, v{t0}, vcc")

    def tags_bad(self, acc, tags, first=True):
        e = self.e
        tags = list(tags)
        while tags:
            a = tags.pop(0)
            e.op(f"v_xor_b32 v{a}, s{S_N}, v{a}")
            if tags:
                b = tags.pop(0)
                e.op(f"v_xor_b32 v{b}, s{S_N}, v{b}")
                if first:
                    e.op(f"v_or_b32 v{acc}, v{a}, v{b}")
                else:
                    e.op(f"v_or3_b32 v{acc}, v{acc}, v{a}, v{b}")
            else:
                if first:
                    e.op(f"v_mov_b32 v{acc}, v{a}")
                else:
                    e.op(f"v_or_b32 v{acc}, v{acc}, v{a}")
            first = False

    def poll2(self, issue, nloads, tags, acc, on_ok):
        e = self.e
        loop, ok0, ok1, out = (e.newlabel(n) for n in ("pl", "ok0", "ok1", "pout"))
        self.spin_init()
        issue(0)
        e.label(loop)
        for s_, ok in ((0, ok0), (1, ok1)):
            issue(1 - s_)
            e.op(f"s_waitcnt vmcnt({nloads})")
            self.tags_bad(acc, tags(s_))
            e.op(f"v_cmp_ne_u32 vcc, 0, v{acc}")
            e.op(f"s_cbranch_vccz {ok}")
        e.op(f"s_add_u32 s{S_SPIN}, s{S_SPIN}, 1")
        e.op(f"s_cmp_le_u32 s{S_SPIN}, {self.c.spin}")
        e.op(f"s_cbranch_scc1 {loop}")
        e.label(ok1)
        on_ok(1)
        e.op(f"s_branch {out}")
        e.label(ok0)
        on_ok(0)
        e.label(out)

    def poll1(self, issue, tags, acc, on_ok, sleep=0):
        e = self.e
        poll, done = e.newlabel("pq"), e.newlabel("pqd")
        self.spin_init()
        e.label(poll)
        issue(0)
        e.op("s_waitcnt vmcnt(0)")
        self.tags_bad(acc, tags(0))
        e.op(f"v_cmp_ne_u32 vcc, 0, v{acc}")
        e.op(f"s_cbranch_vccz {done}")
        if sleep:
            e.op(f"s_sleep {sleep}")
        e.op(f"s_add_u32 s{S_SPIN}, s{S_SPIN}, 1")
        e.op(f"s_cmp_le_u32 s{S_SPIN}, {self.c.spin}")
        e.op(f"s_cbranch_scc1 {poll}")
        e.label(done)
        on_ok(0)

    def exec_set(self, mask):
        e = self.e
        if mask == -1 or mask == (1 << 64) - 1:
            e.op("s_mov_b64 exec, -1")
        else:
            e.op(f"s_mov_b32 exec_lo, 0x{mask & 0xffffffff:x}")
            e.op(f"s_mov_b32 exec_hi, 0x{mask >> 32:x}")

    def code_prefetch(self, cond_ops, start_expr, nwaves, vtmp, vdst, srd):
        e = self.e
        if not self.c.cpf:
            return
        lab = e.newlabel("cpf")
        for o in cond_ops:
            e.op(o)
        e.branch("s_cbranch_scc0", lab)
        if nwaves < 8:
            e.op(f"s_cmp_lt_u32 s3, {nwaves}")
            e.branch("s_cbranch_scc0", lab)
        here = e.newlabel("pc")
        e.op("s_getpc_b64 s[8:9]")
        e.raw(here + ":")
        if start_expr is None:
            e.op(f"s_mov_b32 s{srd}, s8")
            e.op(f"s_mov_b32 s{srd+1}, s9")
        else:
            e.op(f"s_add_u32 s{srd}, s8, ({start_expr} - {here})")
            e.op(f"s_addc_u32 s{srd+1}, s9, 0")
            e.op(f"s_sub_u32 s{srd}, s{srd}, {nwaves*1024}")
            e.op(f"s_subb_u32 s{srd+1}, s{srd+1}, 0")
        e.op(f"s_mov_b32 s{srd+2}, {nwaves*1024}")
        e.op(f"s_mov_b32 s{srd+3}, 0x20000")
        e.op("s_lshl_b32 s8, s3, 10")
        e.op(f"v_lshlrev_b32 v{vtmp}, 4, v0")
        e.op(f"buffer_load_dwordx4 {vr(vdst)}, v{vtmp}, s[{srd}:{srd+3}], s8 offen", count=False)
        e.label(lab)

    def stage1_setup(self, s_s, s_h, vW, vX, vG, vN, T, SX, SW):
        e = self.e
        e.op(f"v_lshlrev_b32 v{vW}, 13, v{vG}")
        e.op(f"v_lshlrev_b32 v{T}, 4, v{vN}")
        e.op(f"v_add_u32 v{vW}, v{vW}, v{T}")
        e.op(f"s_mul_i32 s7, s{s_s}, 80")
        e.op("s_and_b32 s8, s3, 3")
        e.op("s_mul_i32 s8, s8, 20")
        e.op("s_add_u32 s7, s7, s8")
        e.op(f"v_add_u32 v{vX}, s7, v{vG}")
        e.op(f"v_lshlrev_b32 v{vX}, 1, v{vX}")
        e.op("s_lshl_b32 s14, s7, 13")
        e.op(f"s_lshl_b32 s8, s{s_h}, 8")
        e.op("s_add_u32 s14, s14, s8")

    def stage1_srds(self, SX, SW):
        e = self.e
        e.op("s_cmp_lt_u32 s3, 4")
        e.op(f"s_cselect_b32 s{SX}, s{P_AX}, s{P_BX}")
        e.op(f"s_cselect_b32 s{SX+1}, s{P_AX+1}, s{P_BX+1}")
        e.op(f"s_cselect_b32 s8, s{P_WQA}, s{P_BWQ}")
        e.op(f"s_cselect_b32 s9, s{P_WQA+1}, s{P_BWQ+1}")
        e.op(f"s_mov_b32 s{SX+2}, 1280")
        e.op(f"s_mov_b32 s{SX+3}, 0x20000")
        e.op(f"s_add_u32 s{SW}, s8, s14")
        e.op(f"s_addc_u32 s{SW+1}, s9, 0")
        e.op(f"s_mov_b32 s{SW+2}, {20*8192}")
        e.op(f"s_mov_b32 s{SW+3}, 0x20000")

    def stage1_issue(self, X, WQ, vX, vW, SX, SW):
        e, nt = self.e, self.c.nt
        for t in range(5):
            e.op(f"buffer_load_ushort v{X(t)}, v{vX}, {sr(SX,4)}, 0 offen offset:{8*t}", tag=("x", t))
        for t in range(5):
            e.op(f"s_mov_b32 s7, {t*32768}")
            e.op(f"buffer_load_dwordx4 {vr(WQ(t))}, v{vW}, {sr(SW,4)}, s7 offen {nt}", tag=("wq", t))

    def stage1_compute(self, X, WQ, MASK, A0, A1, ACC, vLDS, LQP, before_write=None):
        e = self.e
        for t in range(5):
            e.wait_vm(("wq", t))
            A = A0 if t % 2 == 0 else A1
            e.op(f"v_lshl_or_b32 v{X(t)}, v{X(t)}, 16, v{X(t)}")
            for r in range(4):
                e.op(f"v_and_b32 v{A+r}, v{X(t)}, v{MASK+r}")
            e.op(f"v_mfma_f32_16x16x32_bf16 {vr(ACC)}, {vr(A)}, {vr(WQ(t))}, {'0' if t == 0 else vr(ACC)}")
        if before_write:
            before_write()
        self.exec_set(0xffffffff)
        e.op(f"ds_write_b128 v{vLDS}, {vr(ACC)} offset:{LQP}")
        self.exec_set(-1)

    def stage1_publish(self, s_s, s_h, vL, vL16, T, R, gq, LQP):
        e = self.e
        lab = e.newlabel("s1p")
        e.op("s_and_b32 s7, s3, 3")
        e.op("s_cmp_lg_u32 s7, 3")
        e.branch("s_cbranch_scc1", lab)
        e.op("s_setprio 2")
        e.op("s_and_b32 s7, s3, 4")
        e.op("s_lshl_b32 s7, s7, 9")
        if LQP:
            e.op(f"s_add_u32 s7, s7, {LQP}")
        e.op(f"v_lshlrev_b32 v{T}, 3, v{vL}")
        e.op(f"v_add_u32 v{T}, s7, v{T}")
        for w in range(4):
            e.op(f"ds_read_b64 {vr(R+2*w,2)}, v{T} offset:{512*w}")
        e.op(f"s_lshl_b32 s8, s{s_h}, 3")
        e.op(f"s_add_u32 s8, s8, s{s_s}")
        e.op("s_lshl_b32 s8, s8, 10")
        e.op("s_cmp_eq_u32 s3, 3")
        e.op(f"s_mov_b32 s9, {QB}")
        e.op(f"s_cselect_b32 s9, {QAQ}, s9")
        e.op("s_add_u32 s9, s9, s8")
        e.op(f"v_mov_b32 v{gq+1}, s{S_N}")
        e.op(f"v_mov_b32 v{gq+3}, s{S_N}")
        e.op("s_waitcnt lgkmcnt(0)")
        e.op(f"v_add_f32 v{R}, v{R}, v{R+2}")
        e.op(f"v_add_f32 v{R+1}, v{R+1}, v{R+3}")
        e.op(f"v_add_f32 v{R+4}, v{R+4}, v{R+6}")
        e.op(f"v_add_f32 v{R+5}, v{R+5}, v{R+7}")
        e.op(f"v_add_f32 v{gq}, v{R}, v{R+4}")
        e.op(f"v_add_f32 v{gq+2}, v{R+1}, v{R+5}")
        if self.c.dual:
            lab2 = e.newlabel("s1x")
            e.op("s_cmp_lg_u32 s3, 3")
            e.branch("s_cbranch_scc1", lab2)
            e.op(f"s_add_u32 s8, s8, {QAQX}")
            e.op(f"buffer_store_dwordx4 {vr(gq)}, v{vL16}, {sr(SRD_WS,4)}, s8 offen", count=False)
            e.label(lab2)
        e.op(f"buffer_store_dwordx4 {vr(gq)}, v{vL16}, {sr(SRD_WS,4)}, s9 offen sc1", count=False)
        e.op("s_setprio 0")
        e.label(lab)

    def dual_base(self, dst, fast, slow):
        e = self.e
        e.op(f"s_cmp_lt_u32 s{S_SPIN}, {self.c.DUAL_TH}")
        e.op(f"s_mov_b32 s{dst}, {slow}")
        e.op(f"s_cselect_b32 s{dst}, {fast}, s{dst}")

    def qpoll_issue(self, base, s_h, POLL, vL16, fast=None):
        e = self.e
        if fast is not None:
            self.dual_base(9, fast, base)
            e.op(f"s_lshl_b32 s8, s{s_h}, 13")
            e.op("s_add_u32 s8, s8, s9")
        else:
            e.op(f"s_lshl_b32 s8, s{s_h}, 13")
            e.op(f"s_add_u32 s8, s8, {base}")
        for p in range(8):
            e.op(f"buffer_load_dwordx4 {vr(POLL(p))}, v{vL16}, {sr(SRD_WS,4)}, s8 offen sc1", count=False)
            if p < 7:
                e.op("s_addk_i32 s8, 0x400")

    def qpoll_finish(self, base, s_h, POLL, vL16, vL, T, LQF, fast=None):
        e = self.e
        if fast is None:
            self.spin_init()
        chk, done = e.newlabel("qchk"), e.newlabel("qdone")
        e.label(chk)
        self.tags_bad(T, [POLL(p) + k for p in range(8) for k in (1, 3)])
        e.op(f"v_cmp_ne_u32 vcc, 0, v{T}")
        e.op("s_cmp_eq_u64 vcc, 0")
        e.branch("s_cbranch_scc1", done)
        self.spin_step(done)
        self.qpoll_issue(base, s_h, POLL, vL16, fast)
        e.op("s_waitcnt vmcnt(0)")
        e.branch("s_branch", chk)
        e.label(done)
        for step in (1, 2, 4):
            for p in range(0, 8, 2 * step):
                for k in (0, 2):
                    e.op(f"v_add_f32 v{POLL(p)+k}, v{POLL(p)+k}, v{POLL(p+step)+k}")
        a = POLL(0)
        e.op(f"v_cvt_pk_bf16_f32 v{a}, v{a}, v{a+2}")
        e.op(f"v_lshlrev_b32 v{T}, 2, v{vL}")
        e.op(f"v_add_u32 v{T}, {LQF}, v{T}")
        e.op(f"ds_write_b32 v{T}, v{a}")
        e.op("s_waitcnt lgkmcnt(0)")

    def build(self):
        e = self.e
        c = self.c
        e.raw(f"; @launch grid=(256,1,1) block=(512,1,1) lds={LDS_TOTAL}")
        e.raw('.amdgcn_target "amdgcn-amd-amdhsa--gfx950"')
        e.raw(".text")
        e.raw(f".globl {NAME}")
        e.raw(".p2align 8")
        e.raw(f".type {NAME},@function")
        e.raw(f"{NAME}:")
        e.op("s_cmp_ge_u32 s2, 256")
        e.op("s_cbranch_scc1 L_end")
        e.op("s_load_dwordx16 s[16:31], s[0:1], 0")
        e.op("s_load_dwordx16 s[32:47], s[0:1], 48")
        if c.prof:
            e.op("s_memrealtime s[78:79]")
        e.op("v_lshrrev_b32 v1, 6, v0")
        e.op("v_and_b32 v0, 63, v0")
        e.op("v_readfirstlane_b32 s3, v1")
        if c.prof:
            for i in range(16):
                e.op(f"s_mov_b32 s{80+i}, 0")
        e.op("v_lshrrev_b32 v1, 4, v0")
        e.op("v_and_b32 v2, 15, v0")
        if c.xmap:
            e.op("s_and_b32 s5, s2, 7")
            e.op("s_cmp_lt_u32 s5, 2")
        else:
            e.op("s_cmp_lt_u32 s2, 64")
        e.op("s_cbranch_scc1 L_A")
        self.gen_B()
        e.label("L_A")
        self.gen_A()
        e.raw("L_end:")
        e.raw("    s_endpgm")
        e.raw('.section .rodata,"a"')
        e.raw(".p2align 6")
        e.raw(f".amdhsa_kernel {NAME}")
        e.raw("  .amdhsa_next_free_vgpr 256")
        e.raw("  .amdhsa_next_free_sgpr 102")
        e.raw("  .amdhsa_accum_offset 256")
        e.raw("  .amdhsa_group_segment_fixed_size 0")
        e.raw("  .amdhsa_kernarg_size 112")
        e.raw("  .amdhsa_user_sgpr_count 2")
        e.raw("  .amdhsa_user_sgpr_kernarg_segment_ptr 1")
        e.raw("  .amdhsa_system_sgpr_workgroup_id_x 1")
        e.raw(".end_amdhsa_kernel")
        return e.text()

    def gen_B(self):
        e, c = self.e, self.c
        self.in_B = True
        S_J, S_H = 5, 6
        if c.xmap:
            e.op(f"s_sub_u32 s{S_J}, s5, 2")
            e.op(f"s_lshr_b32 s{S_H}, s2, 3")
        else:
            e.op("s_sub_u32 s7, s2, 64")
            e.op("s_and_b32 s8, s7, 7")
            e.op("s_lshr_b32 s7, s7, 3")
            e.op("s_mul_i32 s9, s7, 43")
            e.op("s_lshr_b32 s9, s9, 8")
            e.op("s_mul_i32 s10, s9, 6")
            e.op(f"s_sub_u32 s{S_J}, s7, s10")
            e.op("s_lshl_b32 s8, s8, 2")
            e.op(f"s_add_u32 s{S_H}, s8, s9")
        B = self.B = type("R", (), {})()
        B.L, B.G, B.Nn = 0, 1, 2
        B.MASK = 4
        B.Q = 8
        B.ACC = 12
        B.A0, B.A1 = 16, 20
        B.vKV, B.vWQ, B.vX, B.vLDS, B.vWS = 24, 25, 26, 27, 28
        B.T = 29
        B.P0, B.P1, B.PD0, B.PD1, B.M, B.Lw = 40, 41, 42, 43, 44, 45
        B.FW = 46
        B.MW = 47
        B.WO = 48
        B.K = 64
        self.stage1_setup(S_J, S_H, B.vWQ, B.vX, B.G, B.Nn, B.T, 68, 60)
        e.op("s_waitcnt lgkmcnt(0)")
        if c.prof:
            e.op("s_mov_b32 s80, s78")
        SK, SV, SWQ, SWO, SX = 52, 56, 60, 64, 68
        self.SK, self.SV, self.SWQ, self.SWO, self.SX = SK, SV, SWQ, SWO, SX
        self.stage1_srds(SX, SWQ)
        self.stage1_issue(lambda t: B.T + 2 + t, lambda t: 236 + 4 * t, B.vX, B.vWQ, SX, SWQ)
        e.op(f"s_load_dword s{S_N}, {sr(P_WS)}, {EPOCH}")
        e.op(f"s_lshl_b32 s7, s3, 10")
        e.op(f"v_lshlrev_b32 v{B.vWS}, 4, v{B.L}")
        e.op(f"v_add_u32 v{B.vKV}, s7, v{B.vWS}")
        e.op(f"s_lshl_b32 s9, s{S_H}, 20")
        e.op(f"s_mul_i32 s10, s{S_J}, {168*1024}")
        e.op("s_add_u32 s9, s9, s10")
        self.srd(SK, P_BK, "s9", 184 * 1024)
        self.srd(SV, P_BV, "s9", 184 * 1024)
        self.srd(SRD_WS, P_WS, None, WS_USED)
        e.op(f"s_mul_i32 s9, s{S_H}, {128*1280}")
        e.op(f"s_lshl_b32 s10, s{S_J}, 8")
        e.op("s_add_u32 s9, s9, s10")
        self.srd(SWO, P_BWO, "s9", 128 * 1280)
        e.op(f"s_cmp_eq_u32 s{S_J}, 5")
        e.branch("s_cbranch_scc1", "L_B5")
        saved = list(e.vm)
        e.raw("L_B21:")
        self.gen_B_variant(21, True)
        e.label("L_B5")
        e.vm = saved
        self.gen_B_variant(23, False)

    def gen_B_variant(self, NR, has_wo):
        e, c, B = self.e, self.c, self.B
        S_J, S_H = 5, 6
        SK, SV, SWQ, SWO, SX = self.SK, self.SV, self.SWQ, self.SWO, self.SX
        nt = c.nt
        K = lambda t: B.K + 4 * t
        V = lambda t: B.K + 4 * NR + 4 * t
        assert V(NR - 1) + 3 <= 255
        WQ = lambda t: 236 + 4 * t
        POLL = lambda p: V(NR - 8 + p)
        X = lambda t: B.T + 2 + t
        LQP, LOP, LFP, LQF, LML = 0, 4096, 8192, 12288, 12544
        COMM = self.c.COMM
        S_KO, S_VO, S_T = 72, 73, 7

        def comm_begin():
            lab = e.newlabel("nc")
            e.op(f"s_cmp_lg_u32 s3, {COMM}")
            e.branch("s_cbranch_scc1", lab)
            return lab

        def comm_end(lab):
            e.label(lab)

        nK = [0]
        nV = [0]

        def issue_K():
            t = nK[0]
            nK[0] += 1
            e.op(f"buffer_load_dwordx4 {vr(K(t))}, v{B.vKV}, {sr(SK,4)}, s{S_KO} offen {nt}", tag=("K", t))
            e.op(f"s_addk_i32 s{S_KO}, 0x2000")

        def issue_V():
            t = nV[0]
            nV[0] += 1
            e.op(f"buffer_load_dwordx4 {vr(V(t))}, v{B.vKV}, {sr(SV,4)}, s{S_VO} offen {nt}", tag=("V", t))
            e.op(f"s_addk_i32 s{S_VO}, 0x2000")

        e.op(f"s_mov_b32 s{S_KO}, 0")
        e.op(f"s_mov_b32 s{S_VO}, 0")
        for _ in range(c.K0):
            issue_K()
        e.op(f"v_lshrrev_b32 v3, 1, v{B.Nn}")
        self.make_masks(B.MASK, 3, B.Nn, B.T, B.T + 1)
        e.op("s_lshl_b32 s9, s3, 9")
        e.op(f"v_lshlrev_b32 v{B.vLDS}, 5, v{B.Nn}")
        e.op(f"v_lshlrev_b32 v{B.T+1}, 4, v{B.G}")
        e.op(f"v_add3_u32 v{B.vLDS}, v{B.vLDS}, v{B.T+1}, s9")
        if has_wo:
            self.code_prefetch(["s_cmp_lt_u32 s2, 72"], None, 6, B.T + 8, B.WO, 92)
        else:
            self.code_prefetch([f"s_lshr_b32 s7, s2, 3", "s_cmp_eq_u32 s7, 13"], None, 5, B.T + 8, B.WO, 92)
        self.stamp(1)
        e.op("s_waitcnt lgkmcnt(0)")
        e.op(f"s_add_u32 s{S_N}, s{S_N}, 0x{NONCE_STEP:x}")
        self.stage1_compute(X, WQ, B.MASK, B.A0, B.A1, B.ACC, B.vLDS, LQP, before_write=lambda: [issue_K() for _ in range(c.K1)])
        e.op("s_waitcnt lgkmcnt(0)")
        e.op("s_barrier")
        self.stamp(2)
        self.stage1_publish(S_J, S_H, B.L, B.vWS, B.T, POLL(0), B.T + 7, LQP)
        while nK[0] < NR:
            e.wait_vm_window(c.WK - 1)
            if nK[0] in (4, 8, 12, 16, 20):
                self.stamp(nK[0] // 4, bw=True)
            issue_K()
            if nK[0] == c.POLL_A:
                lab = comm_begin()
                self.qpoll_issue(QB, S_H, POLL, B.vWS)
                comm_end(lab)
                e.mark("qpoll")
        for _ in range(c.PREV):
            e.wait_vm_window(c.WK - 1)
            issue_V()
        lab = comm_begin()
        e.op("s_setprio 2")
        e.wait_vm("qpoll", keep=True)
        self.qpoll_finish(QB, S_H, POLL, B.vWS, B.L, B.T, LQF)
        e.op("s_setprio 0")
        comm_end(lab)
        e.op("s_barrier")
        self.stamp(3)
        e.op(f"v_lshlrev_b32 v{B.T}, 4, v{B.Nn}")
        e.op(f"ds_read_b128 {vr(B.Q)}, v{B.T} offset:{LQF}")
        e.op("s_waitcnt lgkmcnt(0)")
        def dots(ts):
            for t in ts:
                e.wait_vm(("K", t))
            for k in range(4):
                for t in ts:
                    e.op(f"v_dot2_f32_bf16 v{K(t)}, v{K(t)+k}, v{B.Q+k}, {'0' if k == 0 else 'v%d' % K(t)}")
        chunks = [list(range(i, min(i + 4, NR))) for i in range(0, NR, 4)]
        for ci, ch in enumerate(chunks):
            if nV[0] < NR and ci in (0, 3):
                issue_V()
            dots(ch)
        S0 = self.transpose_reduce([K(t) for t in range(16)], B.P0)
        if nV[0] < NR:
            issue_V()
        S1 = self.transpose_reduce([K(t) for t in range(16, NR)], B.P1)
        nvalid = NR - 16
        e.op(f"s_mov_b32 s7, {f32hex(SCALE)}")
        e.op(f"v_mul_f32 v{B.P0}, s7, v{B.P0}")
        e.op(f"v_mul_f32 v{B.P1}, s7, v{B.P1}")
        e.op(f"v_mov_b32 v{B.T}, 0xff800000")
        e.op(f"v_cmp_gt_u32 vcc, {nvalid}, v{B.Nn}")
        e.op(f"v_cndmask_b32 v{B.P1}, v{B.T}, v{B.P1}, vcc")
        e.op(f"v_max_f32 v{B.M}, v{B.P0}, v{B.P1}")
        self.wave_reduce("v_max_f32", B.M, B.T)
        e.op(f"v_sub_f32 v{B.P0}, v{B.P0}, v{B.M}")
        e.op(f"v_sub_f32 v{B.P1}, v{B.P1}, v{B.M}")
        e.op(f"v_exp_f32 v{B.P0}, v{B.P0}")
        e.op(f"v_exp_f32 v{B.P1}, v{B.P1}")
        e.op(f"v_cvt_pk_bf16_f32 v{B.PD0}, v{B.P0}, v{B.P0}")
        e.op(f"v_cvt_pk_bf16_f32 v{B.PD1}, v{B.P1}, v{B.P1}")
        e.op(f"v_lshlrev_b32 v{B.P0}, 16, v{B.PD0}")
        e.op(f"v_lshlrev_b32 v{B.P1}, 16, v{B.PD1}")
        e.op(f"v_add_f32 v{B.Lw}, v{B.P0}, v{B.P1}")
        self.wave_reduce("v_add_f32", B.Lw, B.T)
        assert B.Lw == B.M + 1 and B.M % 2 == 0
        e.op("s_lshl_b32 s7, s3, 3")
        e.op(f"v_mov_b32 v{B.T}, s7")
        self.exec_set(1)
        e.op(f"ds_write_b64 v{B.T}, {vr(B.M,2)} offset:{LML}")
        self.exec_set(-1)
        e.op("s_waitcnt lgkmcnt(0)")
        e.op("s_barrier")
        self.stamp(4)
        T = B.T
        lab = comm_begin()
        e.op("s_setprio 2")
        e.op(f"v_and_b32 v{T}, 7, v{B.L}")
        e.op(f"v_lshlrev_b32 v{T+1}, 3, v{T}")
        e.op(f"ds_read_b64 {vr(T+3,2)}, v{T+1} offset:{LML}")
        e.op("s_waitcnt lgkmcnt(0)")
        e.op(f"v_mov_b32 v{B.MW}, v{T+3}")
        e.op(f"v_mov_b32 v{T+5}, v{T+3}")
        for k in (4, 2, 1):
            e.op(f"v_max_f32_dpp v{T+5}, v{T+5}, v{T+5} row_ror:{k} row_mask:0xf bank_mask:0xf")
        e.op(f"v_sub_f32 v{T+6}, v{T+3}, v{T+5}")
        e.op(f"v_exp_f32 v{T+6}, v{T+6}")
        e.op(f"v_mul_f32 v{T+6}, v{T+6}, v{T+4}")
        for k in (4, 2, 1):
            e.op(f"v_add_f32_dpp v{T+6}, v{T+6}, v{T+6} row_ror:{k} row_mask:0xf bank_mask:0xf")
        g4 = T + 7
        assert g4 % 2 == 0
        e.op(f"v_mov_b32 v{g4}, v{T+5}")
        e.op(f"v_mov_b32 v{g4+1}, s{S_N}")
        e.op(f"v_mov_b32 v{g4+2}, v{T+6}")
        e.op(f"v_mov_b32 v{g4+3}, s{S_N}")
        e.op(f"s_lshl_b32 s8, s{S_H}, 7")
        e.op(f"s_add_u32 s8, s8, {MLG}")
        e.op(f"s_lshl_b32 s9, s{S_J}, 4")
        e.op("s_add_u32 s9, s9, s8")
        e.op(f"v_mov_b32 v{T+1}, 0")
        self.exec_set(1)
        e.op(f"buffer_store_dwordx4 {vr(g4)}, v{T+1}, {sr(SRD_WS,4)}, s9 offen sc1", count=False)
        self.exec_set(-1)
        e.op("s_setprio 0")
        comm_end(lab)
        def a_regs(t):
            A = B.A0 if t % 2 == 0 else B.A1
            pd = B.PD0 if t < 16 else B.PD1
            for r in range(4):
                e.op(f"v_and_b32_dpp v{A+r}, v{pd}, v{B.MASK+r} row_newbcast:{t & 15} row_mask:0xf bank_mask:0xf")
            return A
        ML_ISSUE = min(6, NR - 8)
        ML_CHECK = NR - 5
        wo_issued = False
        A = a_regs(0)
        for t in range(NR):
            while nV[0] < NR and nV[0] < t + c.W:
                issue_V()
            if nV[0] == NR and has_wo and not wo_issued:
                for u in range(4):
                    if u == 0:
                        e.op("s_lshl_b32 s7, s3, 4")
                        e.op(f"v_add_u32 v{T}, s7, v{B.G}")
                        e.op(f"v_mul_u32_u24 v{T}, 1280, v{T}")
                        e.op(f"v_lshlrev_b32 v{T+1}, 4, v{B.Nn}")
                        e.op(f"v_add_u32 v{B.vWQ}, v{T}, v{T+1}")
                    e.op(f"s_mov_b32 s7, {5120*u}")
                    e.op(f"buffer_load_dwordx4 {vr(B.WO+4*u)}, v{B.vWQ}, {sr(SWO,4)}, s7 offen {nt}", tag=("wo", u))
                wo_issued = True
            e.wait_vm(("V", t))
            if t in (0, 4, 8, 12, 16, 20):
                self.stamp(6 + t // 4, bw=True)
            e.op(f"v_mfma_f32_16x16x32_bf16 {vr(B.ACC)}, {vr(A)}, {vr(V(t))}, {'0' if t == 0 else vr(B.ACC)}")
            if t + 1 < NR:
                A = a_regs(t + 1)
            if t == ML_ISSUE:
                lab = comm_begin()
                self.ml_poll_issue(B, T)
                comm_end(lab)
                e.mark("mlpoll")
            if t == ML_CHECK:
                lab = comm_begin()
                e.wait_vm("mlpoll", keep=True)
                self.ml_poll_finish(B, T)
                comm_end(lab)
        self.stamp(5)
        self.exec_set(0xffffffff)
        e.op(f"ds_write_b128 v{B.vLDS}, {vr(B.ACC)} offset:{LOP}")
        self.exec_set(-1)
        e.op("s_waitcnt lgkmcnt(0)")
        e.op("s_barrier")
        self.stamp(6)
        lab = comm_begin()
        e.op("s_setprio 2")
        a = K(0)
        e.op(f"v_lshlrev_b32 v{T}, 3, v{B.L}")
        for w in range(8):
            e.op(f"ds_read_b64 {vr(a+2*w,2)}, v{T} offset:{LOP+512*w}")
        e.op(f"s_mul_i32 s8, s{S_H}, 6")
        e.op(f"s_add_u32 s9, s8, s{S_J}")
        e.op("s_lshl_b32 s9, s9, 10")
        e.op(f"s_add_u32 s9, s9, {OB}")
        e.op(f"v_mov_b32 v{g4+1}, s{S_N}")
        e.op(f"v_mov_b32 v{g4+3}, s{S_N}")
        e.op("s_waitcnt lgkmcnt(0)")
        e.op(f"v_mul_f32 v{g4}, s92, v{a}")
        e.op(f"v_mul_f32 v{g4+2}, s92, v{a+1}")
        e.op(f"v_mul_f32 v{T+1}, s93, v{a+2}")
        e.op(f"v_mul_f32 v{T+2}, s93, v{a+3}")
        for w in range(2, 8, 2):
            e.op(f"v_fmac_f32 v{g4}, s{92+w}, v{a+2*w}")
            e.op(f"v_fmac_f32 v{g4+2}, s{92+w}, v{a+2*w+1}")
            e.op(f"v_fmac_f32 v{T+1}, s{93+w}, v{a+2*w+2}")
            e.op(f"v_fmac_f32 v{T+2}, s{93+w}, v{a+2*w+3}")
        e.op(f"v_add_f32 v{g4}, v{g4}, v{T+1}")
        e.op(f"v_add_f32 v{g4+2}, v{g4+2}, v{T+2}")
        if c.dual:
            e.op(f"s_add_u32 s8, s9, {OBX - OB}")
            e.op(f"buffer_store_dwordx4 {vr(g4)}, v{B.vWS}, {sr(SRD_WS,4)}, s8 offen", count=False)
        e.op(f"buffer_store_dwordx4 {vr(g4)}, v{B.vWS}, {sr(SRD_WS,4)}, s9 offen sc1", count=False)
        e.op("s_setprio 0")
        comm_end(lab)
        self.stamp(7)
        if has_wo:
            self.gen_B_tail(K, T, LFP, COMM, comm_begin, comm_end)
        elif not c.xmap:
            self.gen_B_final(K, T)
        self.stamp(10)
        self.dump_stamps("B")
        e.op("s_endpgm")

    def pending_K(self, e):
        return sum(1 for t in e.vm if isinstance(t, tuple) and t[0] == "K")

    def copy4(self, base):
        if base % 2 == 0:
            self.c4 = base
        else:
            raise AssertionError("odd base")

    def transpose_reduce(self, R, dst):
        e = self.e
        n = len(R)
        for t in range(8):
            if t < n:
                e.op(f"v_add_f32_dpp v{R[t]}, v{R[t]}, v{R[t]} row_ror:8 row_mask:0xf bank_mask:0x3")
        for t in range(8):
            if t + 8 < n:
                e.op(f"v_add_f32_dpp v{R[t]}, v{R[t+8]}, v{R[t+8]} row_ror:8 row_mask:0xf bank_mask:0xc")
        m = min(n, 8)
        for t in range(4):
            if t < m:
                e.op(f"v_add_f32_dpp v{R[t]}, v{R[t]}, v{R[t]} row_half_mirror row_mask:0xf bank_mask:0x5")
        for t in range(4):
            if t + 4 < m:
                e.op(f"v_add_f32_dpp v{R[t]}, v{R[t+4]}, v{R[t+4]} row_half_mirror row_mask:0xf bank_mask:0xa")
        assert m >= 4
        for t in range(4):
            e.op(f"v_add_f32_dpp v{R[t]}, v{R[t]}, v{R[t]} quad_perm:[2,3,0,1] row_mask:0xf bank_mask:0xf")
        e.op("s_mov_b32 s8, 0xcccccccc")
        e.op("s_mov_b32 s9, 0xcccccccc")
        e.op("s_mov_b32 s10, 0xaaaaaaaa")
        e.op("s_mov_b32 s11, 0xaaaaaaaa")
        e.op(f"v_cndmask_b32 v{R[0]}, v{R[0]}, v{R[2]}, s[8:9]")
        e.op(f"v_cndmask_b32 v{R[1]}, v{R[1]}, v{R[3]}, s[8:9]")
        for t in range(2):
            e.op(f"v_add_f32_dpp v{R[t]}, v{R[t]}, v{R[t]} quad_perm:[1,0,3,2] row_mask:0xf bank_mask:0xf")
        e.op(f"v_cndmask_b32 v{dst}, v{R[0]}, v{R[1]}, s[10:11]")
        return dst

    def ml_poll_issue(self, B, T):
        e = self.e
        S_H = 6
        e.op(f"v_and_b32 v{T}, 7, v{B.L}")
        e.op(f"v_min_u32 v{T}, 5, v{T}")
        e.op(f"v_lshlrev_b32 v{T}, 4, v{T}")
        e.op(f"s_lshl_b32 s8, s{S_H}, 7")
        e.op(f"s_add_u32 s8, s8, {MLG}")
        e.op(f"buffer_load_dwordx4 {vr(T+7)}, v{T}, {sr(SRD_WS,4)}, s8 offen sc1", count=False)

    def ml_poll_finish(self, B, T):
        e = self.e
        g4 = T + 7
        self.spin_init()
        chk, done = e.newlabel("mlchk"), e.newlabel("mldone")
        e.label(chk)
        self.tags_bad(T + 1, [g4 + 1, g4 + 3])
        e.op(f"v_cmp_ne_u32 vcc, 0, v{T+1}")
        e.op("s_cmp_eq_u64 vcc, 0")
        e.branch("s_cbranch_scc1", done)
        self.spin_step(done)
        self.ml_poll_issue(B, T)
        e.op("s_waitcnt vmcnt(0)")
        e.branch("s_branch", chk)
        e.label(done)
        e.op(f"v_and_b32 v{T}, 7, v{B.L}")
        e.op(f"v_cmp_gt_u32 vcc, 6, v{T}")
        e.op(f"v_cndmask_b32 v{g4+2}, 0, v{g4+2}, vcc")
        e.op(f"v_mov_b32 v{T+2}, v{g4}")
        for k in (4, 2, 1):
            e.op(f"v_max_f32_dpp v{T+2}, v{T+2}, v{T+2} row_ror:{k} row_mask:0xf bank_mask:0xf")
        e.op(f"v_sub_f32 v{T+3}, v{g4}, v{T+2}")
        e.op(f"v_exp_f32 v{T+3}, v{T+3}")
        e.op(f"v_mul_f32 v{T+3}, v{T+3}, v{g4+2}")
        for k in (4, 2, 1):
            e.op(f"v_add_f32_dpp v{T+3}, v{T+3}, v{T+3} row_ror:{k} row_mask:0xf bank_mask:0xf")
        e.op(f"v_rcp_f32 v{T+3}, v{T+3}")
        e.op(f"v_sub_f32 v{T+4}, v{B.MW}, v{T+2}")
        e.op(f"v_exp_f32 v{T+4}, v{T+4}")
        e.op(f"v_mul_f32 v{T+4}, v{T+4}, v{T+3}")
        for w in range(8):
            e.op(f"v_readlane_b32 s{92+w}, v{T+4}, {w}")

    def gen_B_final(self, K, T):
        e, c, B = self.e, self.c, self.B
        S_H = 6
        fin = e.newlabel("bfin")
        e.op(f"s_mov_b32 s14, s{S_H}")
        e.op("s_cmp_eq_u32 s3, 1")
        go = e.newlabel("bgo")
        e.branch("s_cbranch_scc1", go)
        e.op("s_cmp_lg_u32 s3, 2")
        e.branch("s_cbranch_scc1", fin)
        e.op(f"s_cmp_ge_u32 s{S_H}, 8")
        e.branch("s_cbranch_scc1", fin)
        e.op("s_add_u32 s14, s14, 32")
        e.label(go)
        self.srd(68, P_OUT, None, 2560)
        e.op("s_lshr_b32 s7, s14, 3")
        e.op("s_lshl_b32 s7, s7, 15")
        e.op("s_and_b32 s8, s14, 7")
        e.op("s_lshl_b32 s8, s8, 7")
        e.op("s_add_u32 s7, s7, s8")
        e.op(f"s_add_u32 s10, s7, {FB}")
        e.op("s_lshl_b32 s14, s14, 5")
        e.op("s_add_u32 s14, s14, 1280")
        self.final_reduce(4, 1024, 10, 14, 68, T, K(0), B.L, pipelined=c.FBPOLL)
        e.label(fin)

    def final_reduce(self, nload, stride, s_base, s_out, s_outsrd, T, D, vL, pipelined, bases=None):
        e = self.e
        e.op(f"v_lshrrev_b32 v{T}, 3, v{vL}")
        e.op(f"v_mul_u32_u24 v{T}, {stride}, v{T}")
        e.op(f"v_and_b32 v{T+1}, 7, v{vL}")
        e.op(f"v_lshlrev_b32 v{T+1}, 4, v{T+1}")
        e.op(f"v_add_u32 v{T}, v{T}, v{T+1}")
        R = D + 8 * nload
        S = lambda k, u: D + 4 * nload * k + 4 * u

        def issue(k):
            if bases is None:
                e.op(f"s_mov_b32 s7, s{s_base}")
            else:
                if bases[0] != bases[1]:
                    self.dual_base(7, *bases)
                else:
                    e.op(f"s_mov_b32 s7, {bases[0]}")
                e.op(f"s_add_u32 s7, s7, s{s_base}")
            for u in range(nload):
                e.op(f"buffer_load_dwordx4 {vr(S(k, u))}, v{T}, {sr(SRD_WS,4)}, s7 offen sc1", count=False)
                if u + 1 < nload:
                    e.op(f"s_add_u32 s7, s7, {8*stride}")

        def on_ok(k):
            n = nload
            while n > 2:
                h = n // 2
                for u in range(h):
                    for j in (0, 2):
                        e.op(f"v_add_f32 v{S(k,u)+j}, v{S(k,u)+j}, v{S(k,u+h)+j}")
                n = h
            for j in (0, 2):
                e.op(f"v_add_f32 v{R+j}, v{S(k,0)+j}, v{S(k,1)+j}")
        tags = lambda k: [S(k, u) + j for u in range(nload) for j in (1, 3)]
        if pipelined == "pipe":
            self.poll2(issue, nload, tags, T + 2, on_ok)
        else:
            self.poll1(issue, tags, T + 2, on_ok, sleep=pipelined)
        for j in (0, 2):
            e.op(f"v_add_f32_dpp v{R+j}, v{R+j}, v{R+j} row_ror:8 row_mask:0xf bank_mask:0xf")
        for j in (0, 2):
            e.op(f"v_mov_b32 v{T+2+j//2}, v{R+j}")
        for j in (0, 2):
            e.op(f"v_permlane16_swap_b32 v{R+j}, v{T+2+j//2}")
        for j in (0, 2):
            e.op(f"v_add_f32 v{R+j}, v{R+j}, v{T+2+j//2}")
        for j in (0, 2):
            e.op(f"v_mov_b32 v{T+2+j//2}, v{R+j}")
        for j in (0, 2):
            e.op(f"v_permlane32_swap_b32 v{R+j}, v{T+2+j//2}")
        for j in (0, 2):
            e.op(f"v_add_f32 v{R+j}, v{R+j}, v{T+2+j//2}")
        e.op(f"v_cvt_pk_bf16_f32 v{R}, v{R}, v{R+2}")
        e.op(f"v_lshlrev_b32 v{T}, 2, v{vL}")
        self.exec_set(0xff)
        e.op(f"buffer_store_dword v{R}, v{T}, s[{s_outsrd}:{s_outsrd+3}], s{s_out} offen", count=False)
        self.exec_set(-1)

    def gen_B_tail(self, K, T, LFP, COMM, comm_begin, comm_end):
        e, c, B = self.e, self.c, self.B
        S_J, S_H = 5, 6
        g4 = K(8)
        e.op(f"v_lshrrev_b32 v{T}, 3, v{B.L}")
        e.op(f"v_lshlrev_b32 v{T}, 10, v{T}")
        e.op(f"v_and_b32 v{T+1}, 7, v{B.L}")
        e.op(f"v_lshlrev_b32 v{T+1}, 4, v{T+1}")
        e.op(f"s_lshl_b32 s8, s3, 7")
        e.op(f"v_add3_u32 v{T}, v{T}, v{T+1}, s8")
        e.op(f"s_mul_i32 s10, s{S_H}, {6*1024}")
        e.op(f"s_add_u32 s8, s10, {OB}")
        S = lambda k: K(9 + k)
        for k in (0, 2):
            e.op(f"v_mov_b32 v{g4+k}, 0")
        self.exec_set(0x0000ffffffffffff)

        def issue(k):
            if c.dual:
                self.dual_base(8, OBX, OB)
                e.op("s_add_u32 s8, s8, s10")
            e.op(f"buffer_load_dwordx4 {vr(S(k))}, v{T}, {sr(SRD_WS,4)}, s8 offen sc1", count=False)

        def on_ok(k):
            e.op(f"v_mov_b32 v{g4}, v{S(k)}")
            e.op(f"v_mov_b32 v{g4+2}, v{S(k)+2}")
        if c.OPOLL == "pipe":
            self.poll2(issue, 1, lambda k: [S(k) + 1, S(k) + 3], T + 2, on_ok)
        else:
            self.poll1(issue, lambda k: [S(k) + 1, S(k) + 3], T + 2, on_ok, sleep=c.OPOLL)
        e.vm = []
        self.exec_set(-1)
        self.stamp(8)
        for k in (0, 2):
            e.op(f"v_add_f32_dpp v{g4+k}, v{g4+k}, v{g4+k} row_ror:8 row_mask:0xf bank_mask:0xf")
        for k in (0, 2):
            e.op(f"v_mov_b32 v{T+2+k//2}, v{g4+k}")
        for k in (0, 2):
            e.op(f"v_permlane16_swap_b32 v{g4+k}, v{T+2+k//2}")
        for k in (0, 2):
            e.op(f"v_add_f32 v{g4+k}, v{g4+k}, v{T+2+k//2}")
        for k in (0, 2):
            e.op(f"v_mov_b32 v{T+2+k//2}, v{g4+k}")
        for k in (0, 2):
            e.op(f"v_permlane32_swap_b32 v{g4+k}, v{T+2+k//2}")
        for k in (0, 2):
            e.op(f"v_add_f32 v{g4+k}, v{g4+k}, v{T+2+k//2}")
        e.op(f"v_cvt_pk_bf16_f32 v{g4}, v{g4}, v{g4}")
        e.op(f"v_cvt_pk_bf16_f32 v{g4+2}, v{g4+2}, v{g4+2}")
        e.op("s_mov_b32 s8, 0xffff0000")
        e.op("s_mov_b32 s9, 0xffff0000")
        e.op(f"v_cndmask_b32 v{g4}, v{g4}, v{g4+2}, s[8:9]")
        e.op(f"v_mov_b32_dpp v{g4}, v{g4} row_shl:1 row_mask:0xc bank_mask:0xf")
        for u in range(4):
            A = B.A0 if u % 2 == 0 else B.A1
            for r in range(4):
                e.op(f"v_and_b32_dpp v{A+r}, v{g4}, v{B.MASK+r} row_newbcast:{2*u} row_mask:0xf bank_mask:0xf")
            e.op(f"v_mfma_f32_16x16x32_bf16 {vr(B.ACC)}, {vr(A)}, {vr(B.WO+4*u)}, {'0' if u == 0 else vr(B.ACC)}")
        self.exec_set(0xffffffff)
        e.op(f"ds_write_b128 v{B.vLDS}, {vr(B.ACC)} offset:{LFP}")
        self.exec_set(-1)
        e.op("s_waitcnt lgkmcnt(0)")
        e.op("s_barrier")
        self.stamp(9)
        lab = comm_begin()
        a = K(0)
        e.op(f"v_lshlrev_b32 v{T}, 3, v{B.L}")
        for w in range(8):
            e.op(f"ds_read_b64 {vr(a+2*w,2)}, v{T} offset:{LFP+512*w}")
        e.op(f"s_lshl_b32 s8, s{S_J}, 5")
        e.op(f"s_add_u32 s8, s8, s{S_H}")
        e.op("s_lshl_b32 s8, s8, 10")
        e.op(f"s_add_u32 s8, s8, {FB}")
        g = T + 7
        e.op(f"v_mov_b32 v{g+1}, s{S_N}")
        e.op(f"v_mov_b32 v{g+3}, s{S_N}")
        e.op("s_waitcnt lgkmcnt(0)")
        for w in (1, 3, 5, 7):
            e.op(f"v_add_f32 v{a+2*(w-1)}, v{a+2*(w-1)}, v{a+2*w}")
            e.op(f"v_add_f32 v{a+2*(w-1)+1}, v{a+2*(w-1)+1}, v{a+2*w+1}")
        for w in (2, 6):
            e.op(f"v_add_f32 v{a+2*(w-2)}, v{a+2*(w-2)}, v{a+2*w}")
            e.op(f"v_add_f32 v{a+2*(w-2)+1}, v{a+2*(w-2)+1}, v{a+2*w+1}")
        e.op(f"v_add_f32 v{g}, v{a}, v{a+8}")
        e.op(f"v_add_f32 v{g+2}, v{a+1}, v{a+9}")
        if c.xmap and c.dualF:
            e.op(f"s_add_u32 s9, s8, {FBX - FB}")
            e.op(f"buffer_store_dwordx4 {vr(g)}, v{B.vWS}, {sr(SRD_WS,4)}, s9 offen", count=False)
        e.op(f"buffer_store_dwordx4 {vr(g)}, v{B.vWS}, {sr(SRD_WS,4)}, s8 offen sc1", count=False)
        comm_end(lab)
        if c.xmap:
            fin = e.newlabel("bfin")
            e.op("s_cmp_lg_u32 s3, 1")
            e.branch("s_cbranch_scc1", fin)
            e.op(f"s_cmp_ge_u32 s{S_H}, 8")
            e.branch("s_cbranch_scc1", fin)
            self.srd(68, P_OUT, None, 2560)
            e.op(f"s_lshl_b32 s7, s{S_J}, 15")
            e.op(f"s_lshl_b32 s8, s{S_H}, 7")
            e.op("s_add_u32 s10, s7, s8")
            e.op(f"s_lshl_b32 s14, s{S_J}, 3")
            e.op(f"s_add_u32 s14, s14, s{S_H}")
            e.op("s_lshl_b32 s14, s14, 5")
            e.op("s_add_u32 s14, s14, 1280")
            self.final_reduce(4, 1024, 10, 14, 68, T, K(0), B.L, pipelined=c.FBPOLL, bases=(FBX if c.dualF else FB, FB))
            e.label(fin)

    def gen_A(self):
        self.in_B = False
        from gen_a import gen_A
        gen_A(self)


L_C = 0
C_STRIDE = 1056
L_QA = 128 * C_STRIDE
L_P = L_QA + 16 * C_STRIDE
P_STRIDE = 288
L_QACC = L_P + 16 * P_STRIDE
L_MX = L_QACC + 256
L_LX = L_MX + 512
L_CTX = L_LX + 512
L_END = L_CTX + 256
LDS_TOTAL = 160 * 1024
assert L_END <= LDS_TOTAL


def main():
    ap = argparse.ArgumentParser()
    ap.add_argument("-o", default="concat_heads__compressed_kv_cla__mha_block_cached__decode.s")
    ap.add_argument("--set", nargs="*", default=[])
    a = ap.parse_args()
    kw = {}
    for s in a.set:
        k, v = s.split("=")
        try:
            v = eval(v) if v.startswith("[") else int(v)
        except ValueError:
            v = {"True": True, "False": False, "None": None}.get(v, v)
        kw[k] = v
    g = Gen(Cfg(**kw))
    txt = g.build()
    open(a.o, "w").write(txt)
    print("wrote", a.o, len(txt), "bytes;", g.e.nops, "nop pads")


if __name__ == "__main__":
    main()
```
